```python
import torch

def _softmax(x, axis=-1):
    return torch.softmax(x, dim=axis)
def _gelu(x):
    return torch.nn.functional.gelu(x, approximate="tanh")
def _silu(x):
    return torch.nn.functional.silu(x)
def _sigmoid(x):
    return torch.sigmoid(x)
def _layernorm(x, axis=-1, eps=1e-5):
    m = x.mean(dim=axis, keepdim=True)
    v = x.var(dim=axis, keepdim=True, unbiased=False)
    return (x - m) / torch.sqrt(v + eps)
def _scatter_add(tgt, idx, src, axis=0):
    return tgt.clone().index_add_(axis, idx, src)
def _segment_sum(src, seg, n):
    out = torch.zeros((n,) + src.shape[1:], dtype=src.dtype)
    return out.index_add_(0, seg, src)
def _pad(x, pw):
    flat = tuple(v for pair in reversed(pw) for v in pair)
    return torch.nn.functional.pad(x, flat)

kernel_name = 'parallel_sum__spectral_gfnet__dense_activation_gelu__prompt'

def setup_inputs():

    _w = (lambda a: (lambda t: t.to(torch.bfloat16) if t.is_floating_point() else t)(torch.as_tensor(a)))
    def _A_setup():
        B, S, D = 1, 2048, 576
        Df = D // 2 + 1
        return {
            "x": _w((lambda *s: torch.randn(*s, dtype=torch.bfloat16) * 0.05)(B, S, D)),
            "w_r": _w((lambda *s: torch.randn(*s, dtype=torch.bfloat16) * 0.8)(S, Df) * 0.02),
            "w_i": _w((lambda *s: torch.randn(*s, dtype=torch.bfloat16) * 0.8)(S, Df) * 0.02),
        }
    _A_in = _A_setup()

    def _B_setup():
        B, S, D, F = 1, 2048, 576, 4608
        return {
            "x": _w((lambda *s: torch.randn(*s, dtype=torch.bfloat16) * 0.05)(B, S, D)),
            "w1": _w((lambda *s: torch.randn(*s, dtype=torch.bfloat16) * 0.4)(D, F) * (D ** -0.5)),
            "b1": _w((lambda *s: torch.randn(*s, dtype=torch.bfloat16) * 12.8)(F) * 0.01),
            "w2": _w((lambda *s: torch.randn(*s, dtype=torch.bfloat16) * 0.2)(F, D) * (F ** -0.5)),
            "b2": _w((lambda *s: torch.randn(*s, dtype=torch.bfloat16) * 1.6)(D) * 0.01),
        }
    _B_in = _B_setup()

    return {
        "A_x": _A_in["x"],
        "A_w_r": _A_in["w_r"],
        "A_w_i": _A_in["w_i"],
        "B_x": _B_in["x"],
        "B_w1": _B_in["w1"],
        "B_b1": _B_in["b1"],
        "B_w2": _B_in["w2"],
        "B_b2": _B_in["b2"],
    }

def reference(A_x, A_w_r, A_w_i, B_x, B_w1, B_b1, B_w2, B_b2):
    def _A_ref(x, w_r, w_i):
        B, S, D = x.shape
        X = (lambda x, axes=(-2,-1): torch.fft.rfft2(x.float(), dim=axes))(x, axes=(-2, -1))
        W = w_r + 1j * w_i
        X = X * W
        y = (lambda x, s, axes=(-2,-1): torch.fft.irfft2(x, s=s, dim=axes).to(torch.bfloat16))(X, (S, D), axes=(-2, -1))
        return y

    def _B_ref(x, w1, b1, w2, b2):
        h = torch.einsum("bsd,df->bsf", x, w1) + b1
        h = _gelu(h)
        return torch.einsum("bsf,fd->bsd", h, w2) + b2

    x = A_x
    xn = _layernorm(x, axis=-1)
    return x + _A_ref(xn, A_w_r, A_w_i) + _B_ref(xn, B_w1, B_b1, B_w2, B_b2)
```

```python
import struct

def f32bits(x):
    return struct.unpack("<I", struct.pack("<f", x))[0]

def v(i, n=1):
    return "v%d" % i if n == 1 else "v[%d:%d]" % (i, i + n - 1)

def s(i, n=1):
    return "s%d" % i if n == 1 else "s[%d:%d]" % (i, i + n - 1)

class Asm:
    def __init__(self):
        self.L = []
        self.uid = 0
    def __call__(self, line):
        self.L.append("  " + line)
    def label(self, name):
        self.L.append(name + ":")
    def raw(self, line):
        self.L.append(line)
    def c(self, text):
        self.L.append("  ; " + text)
    def newlabel(self, base):
        self.uid += 1
        return "L_%s_%d" % (base, self.uid)
    def text(self):
        return "\n".join(self.L) + "\n"
    def srd(self, d, base, nbytes):
        self("s_mov_b32 s%d, s%d" % (d, base))
        self("s_and_b32 s%d, s%d, 0xffff" % (d + 1, base + 1))
        self("s_mov_b32 s%d, 0x%x" % (d + 2, nbytes))
        self("s_mov_b32 s%d, 0x00020000" % (d + 3))
    def vm_reset(self):
        self.vmq = []
    def vm(self, line, tag=None):
        self(line); self.vmq.append(tag)
    def vm_count_after(self, tag):
        idx = max(i for i, t in enumerate(self.vmq) if t == tag)
        return len(self.vmq) - 1 - idx
    def vm_wait(self, tag, extra=""):
        n = self.vm_count_after(tag)
        assert n <= 63, n
        self("s_waitcnt vmcnt(%d)%s" % (n, extra))
    stamps_on = False
    def stamp(self):
        if not self.stamps_on: return
        i = self.nstamp; self.nstamp += 1
        assert i < 20
        self("s_memtime s[%d:%d]" % (60 + 2 * i, 61 + 2 * i))
        self("s_waitcnt lgkmcnt(0)")
    def stamp_flush(self, srd, base_off, s_wave, vt=250):
        if not self.stamps_on: return
        self("s_lshl_b32 s58, s2, 4")
        self("s_add_u32 s58, s58, s%d" % s_wave)
        self("s_lshl_b32 s58, s58, 7")
        self("s_add_u32 s58, s58, 0x%x" % base_off)
        self("v_mov_b32 v%d, 0" % vt)
        for i in range(self.nstamp):
            self("v_mov_b32 v%d, s%d" % (vt + 1, 60 + 2 * i))
            self("buffer_store_dword v%d, v%d, s[%d:%d], s58 offen offset:%d" % (vt + 1, vt, srd, srd + 3, 4 * i))
            self("s_nop 1")
    def kernel_begin(self, name):
        self.nstamp = 0
        self.raw(".globl %s" % name)
        self.raw(".p2align 8")
        self.raw(".type %s,@function" % name)
        self.label(name)

def kd(name, vgpr, sgpr=102, accum=None):
    if accum is None:
        accum = (vgpr + 3) // 4 * 4
    return "\n".join([
        ".p2align 6",
        ".amdhsa_kernel %s" % name,
        "  .amdhsa_next_free_vgpr %d" % vgpr,
        "  .amdhsa_next_free_sgpr %d" % sgpr,
        "  .amdhsa_accum_offset %d" % accum,
        "  .amdhsa_group_segment_fixed_size 0",
        "  .amdhsa_kernarg_size 88",
        "  .amdhsa_user_sgpr_count 2",
        "  .amdhsa_user_sgpr_kernarg_segment_ptr 1",
        "  .amdhsa_system_sgpr_workgroup_id_x 1",
        ".end_amdhsa_kernel",
    ]) + "\n"
```

```python
from asmlib import *
from layout import *
from k2 import T_M32F, T_TW1, T_M64, T_TW2, T_M32I

def job_wt(a, V, s_wg, srd_ws, srd_wr, srd_wi, st):
    Rw = "s[%d:%d]" % (srd_ws, srd_ws + 3)
    sc, su, sx, sy = st, st + 1, st + 2, st + 3
    a("s_and_b32 s%d, s%d, 31" % (sc, s_wg))
    a("s_lshr_b32 s%d, s%d, 5" % (su, s_wg))
    a("s_lshl_b32 s%d, s%d, 8" % (sx, su))
    a("s_add_u32 s%d, s%d, s%d" % (sx, sx, sc))
    a("s_mul_i32 s%d, s%d, 578" % (sx, sx))
    a("v_lshlrev_b32 v%d, 1, v0" % (V + 8))
    a("v_mov_b32 v%d, 0x7ff00000" % (V + 9))
    a("v_cmp_gt_u32 vcc, 289, v0")
    a("s_nop 1")
    a("v_cndmask_b32 v%d, v%d, v%d, vcc" % (V + 8, V + 9, V + 8))
    for e in range(8):
        a.vm("buffer_load_ushort v%d, v%d, s[%d:%d], s%d offen" % (V + e, V + 8, srd_wr, srd_wr + 3, sx), "wt")
        a.vm("buffer_load_ushort v%d, v%d, s[%d:%d], s%d offen" % (V + 12 + e, V + 8, srd_wi, srd_wi + 3, sx), "wt")
        if e < 7: a("s_add_u32 s%d, s%d, %d" % (sx, sx, 32 * 578))
    a("s_lshr_b32 s%d, s%d, 4" % (sx, sc))
    a("s_lshl_b32 s%d, s%d, 12" % (sx, sx))
    a("s_lshr_b32 s%d, s%d, 1" % (sy, su))
    a("s_lshl_b32 s%d, s%d, 10" % (sy, sy))
    a("s_add_u32 s%d, s%d, s%d" % (sx, sx, sy))
    a("s_and_b32 s%d, s%d, 1" % (sy, su))
    a("s_lshl_b32 s%d, s%d, 9" % (sy, sy))
    a("s_add_u32 s%d, s%d, s%d" % (sx, sx, sy))
    a("s_and_b32 s%d, s%d, 15" % (sy, sc))
    a("s_lshl_b32 s%d, s%d, 4" % (sy, sy))
    a("s_add_u32 s%d, s%d, s%d" % (sx, sx, sy))
    a("s_add_u32 s%d, s%d, 0x%x" % (sx, sx, WT_OFF))
    a("v_lshlrev_b32 v%d, 13, v0" % (V + 10))
    a("v_cndmask_b32 v%d, v%d, v%d, vcc" % (V + 10, V + 9, V + 10))
    def finish():
        a.vm_wait("wt")
        for e in range(8):
            a("v_lshl_or_b32 v%d, v%d, 16, v%d" % (V + e, V + 12 + e, V + e))
        a.vm("buffer_store_dwordx4 %s, v%d, %s, s%d offen" % (v(V, 4), V + 10, Rw, sx))
        a.vm("buffer_store_dwordx4 %s, v%d, %s, s%d offen offset:256" % (v(V + 4, 4), V + 10, Rw, sx))
    return finish

def job_w2p(a, V, s_wg, s_wave, srd_ws, srd_w2, ldsbase, st):
    su, sk, sg, sx, sl = st, st + 1, st + 2, st + 3, st + 4
    Rw = "s[%d:%d]" % (srd_ws, srd_ws + 3)
    a("s_lshl_b32 s%d, s%d, 8" % (su, s_wave))
    a("s_add_u32 s%d, s%d, s%d" % (su, su, s_wg))
    a("s_min_u32 s%d, s%d, 1295" % (sx, su))
    a("s_mul_hi_u32 s%d, s%d, 0x%x" % (sk, sx, (2**32 + 8) // 9))
    a("s_mul_i32 s%d, s%d, 9" % (sg, sk))
    a("s_sub_u32 s%d, s%d, s%d" % (sg, sx, sg))
    a("s_mul_i32 s%d, s%d, %d" % (sx, sk, 32 * 1152))
    a("s_lshl_b32 s%d, s%d, 7" % (sl, sg))
    a("s_add_u32 s%d, s%d, s%d" % (sx, sx, sl))
    a("v_lshrrev_b32 v%d, 3, v1" % (V + 16))
    a("v_mul_u32_u24 v%d, 1152, v%d" % (V + 16, V + 16))
    a("v_and_b32 v%d, 7, v1" % (V + 17))
    a("v_lshl_add_u32 v%d, v%d, 4, v%d" % (V + 16, V + 17, V + 16))
    a("s_lshl_b32 s%d, s%d, 12" % (sl, s_wave))
    a("s_add_u32 s%d, s%d, %d" % (sl, sl, ldsbase))
    for n in range(4):
        a("s_add_u32 m0, s%d, %d" % (sl, n * 1024))
        a("s_nop 0")
        a.vm("buffer_load_dwordx4 v%d, s[%d:%d], s%d offen lds" % (V + 16, srd_w2, srd_w2 + 3, sx), "w2p")
        if n < 3: a("s_add_u32 s%d, s%d, %d" % (sx, sx, 8 * 1152))
    a("v_lshrrev_b32 v%d, 5, v1" % (V + 17))
    a("v_lshlrev_b32 v%d, 4, v%d" % (V + 17, V + 17))
    a("v_bfe_u32 v%d, v1, 4, 1" % (V + 18))
    a("v_lshl_add_u32 v%d, v%d, 2, v%d" % (V + 17, V + 18, V + 17))
    a("v_bfe_u32 v%d, v1, 2, 2" % (V + 18))
    a("v_add_u32 v%d, v%d, v%d" % (V + 17, V + 17, V + 18))
    a("v_lshlrev_b32 v%d, 7, v%d" % (V + 17, V + 17))
    a("v_and_b32 v%d, 3, v1" % (V + 18))
    a("v_lshl_add_u32 v%d, v%d, 3, v%d" % (V + 17, V + 18, V + 17))
    a("v_add_u32 v%d, s%d, v%d" % (V + 17, sl, V + 17))
    a("s_mul_i32 s%d, s%d, 36" % (sx, sk))
    a("s_lshl_b32 s%d, s%d, 2" % (sg, sg))
    a("s_add_u32 s%d, s%d, s%d" % (sx, sx, sg))
    a("s_lshl_b32 s%d, s%d, 10" % (sx, sx))
    a("s_add_u32 s%d, s%d, 0x%x" % (sx, sx, W2P_OFF))
    a("s_cmp_lt_u32 s%d, 1296" % su)
    a("s_cselect_b32 s%d, 0, 0x7ff00000" % sg)
    a("v_lshlrev_b32 v%d, 4, v1" % (V + 18))
    a("v_add_u32 v%d, s%d, v%d" % (V + 18, sg, V + 18))
    def finish():
        a.vm_wait("w2p")
        for nt in range(4):
            for h in range(2):
                a("ds_read_b64_tr_b16 %s, v%d offset:%d" % (v(V + 4 * nt + 2 * h, 2), V + 17, nt * 32 + h * 1024))
        a("s_waitcnt lgkmcnt(0)")
        for nt in range(4):
            a.vm("buffer_store_dwordx4 %s, v%d, %s, s%d offen offset:%d" % (v(V + 4 * nt, 4), V + 18, Rw, sx, nt * 1024))
    return finish

def cos576(a, dst, n, t0, t1):
    a("v_cvt_f32_u32 v%d, v%d" % (t0, n))
    a("v_mul_f32 v%d, 0x%x, v%d" % (t0, f32bits(1.0 / 576), t0))
    a("v_cvt_u32_f32 v%d, v%d" % (t0, t0))
    a("v_mul_u32_u24 v%d, 576, v%d" % (t0, t0))
    a("v_sub_u32 v%d, v%d, v%d" % (t0, n, t0))
    a("v_cvt_f32_i32 v%d, v%d" % (t0, t0))
    a("v_mul_f32 v%d, 0x%x, v%d" % (t0, f32bits(1.0 / 576), t0))
    a("v_cos_f32 v%d, v%d" % (dst, t0))

def job_finv(a, V, s_gw, srd_ws, st):
    sk, sn, sx = st, st + 1, st + 2
    Rw = "s[%d:%d]" % (srd_ws, srd_ws + 3)
    skip = a.newlabel("finv_skip")
    a("s_cmp_ge_u32 s%d, 648" % s_gw)
    a("s_cbranch_scc1 %s" % skip)
    a("s_mul_hi_u32 s%d, s%d, 0x%x" % (sk, s_gw, (2**32 + 35) // 36))
    a("s_mul_i32 s%d, s%d, 36" % (sn, sk))
    a("s_sub_u32 s%d, s%d, s%d" % (sn, s_gw, sn))
    a("s_lshl_b32 s%d, s%d, 4" % (sn, sn))
    a("v_and_b32 v%d, 15, v1" % (V + 8))
    a("v_add_u32 v%d, s%d, v%d" % (V + 8, sn, V + 8))
    a("v_lshrrev_b32 v%d, 5, v1" % (V + 9))
    a("v_lshlrev_b32 v%d, 3, v%d" % (V + 9, V + 9))
    a("v_bfe_u32 v%d, v1, 4, 1" % (V + 10))
    a("v_lshl_add_u32 v%d, v%d, 1, v%d" % (V + 9, V + 10, V + 9))
    a("s_lshl_b32 s%d, s%d, 4" % (sx, sk))
    a("v_add_u32 v%d, s%d, v%d" % (V + 9, sx, V + 9))
    for j in range(8):
        koff = (j & 3) + 8 * (j >> 2)
        a("v_add_u32 v%d, %d, v%d" % (V + 10, koff >> 1, V + 9))
        a("v_mul_u32_u24 v%d, v%d, v%d" % (V + 11, V + 10, V + 8))
        if koff & 1:
            a("v_add_u32 v%d, 144, v%d" % (V + 11, V + 11))
            if j == 1:
                a("v_mul_u32_u24 v%d, 288, v%d" % (V + 12, V + 8))
                a("v_cmp_eq_u32 vcc, 0, v%d" % (V + 10))
                a("s_nop 1")
                a("v_cndmask_b32 v%d, v%d, v%d, vcc" % (V + 11, V + 11, V + 12))
        cos576(a, V + j, V + 11, V + 12, V + 13)
        if j < 2:
            a("v_cmp_eq_u32 vcc, 0, v%d" % (V + 10))
            a("v_add_f32 v%d, v%d, v%d" % (V + 12, V + j, V + j))
            a("s_nop 0")
            a("v_cndmask_b32 v%d, v%d, v%d, vcc" % (V + j, V + 12, V + j))
        else:
            a("s_nop 0")
            a("v_add_f32 v%d, v%d, v%d" % (V + j, V + j, V + j))
    for i in range(4):
        a("v_cvt_pk_bf16_f32 v%d, v%d, v%d" % (V + 16 + i, V + 2 * i, V + 2 * i + 1))
    a("s_add_u32 s%d, s%d, %d" % (sx, s_gw, 144 * 36))
    a("s_lshl_b32 s%d, s%d, 10" % (sx, sx))
    a("s_add_u32 s%d, s%d, 0x%x" % (sx, sx, W2P_OFF))
    a("v_lshlrev_b32 v%d, 4, v1" % (V + 8))
    a("buffer_store_dwordx4 %s, v%d, %s, s%d offen sc1" % (v(V + 16, 4), V + 8, Rw, sx))
    a.label(skip)

def job_tab(a, V, s_f, srd_ws, st):
    Rw = "s[%d:%d]" % (srd_ws, srd_ws + 3)
    sx, sy, sz = st, st + 1, st + 2
    end = a.newlabel("tab_end"); st16 = a.newlabel("tab_s16"); st32 = a.newlabel("tab_s32")
    vg, vi, vA, vB, vt = V + 8, V + 9, V + 10, V + 11, V + 12
    a("s_cmp_ge_u32 s%d, 62" % s_f)
    a("s_cbranch_scc1 %s" % end)
    a("v_lshrrev_b32 v%d, 4, v1" % vg)
    a("v_and_b32 v%d, 15, v1" % vi)
    def entry(dst, ph_s=None, ph_c=0):
        if ph_s is not None: a("v_add_u32 v%d, s%d, v%d" % (vt, ph_s, vt))
        if ph_c: a("v_add_u32 v%d, %d, v%d" % (vt, ph_c, vt))
        a("v_and_b32 v%d, 2047, v%d" % (vt, vt))
        a("v_cvt_f32_u32 v%d, v%d" % (vt, vt))
        a("v_mul_f32 v%d, 0x%x, v%d" % (vt, f32bits(1.0 / 2048), vt))
        a("v_cos_f32 v%d, v%d" % (dst, vt))
    labs = [a.newlabel("tab_t%d" % i) for i in range(5)]
    for i, lim in enumerate([T_TW1, T_M64, T_TW2, T_M32I]):
        a("s_cmp_lt_u32 s%d, %d" % (s_f, lim))
        a("s_cbranch_scc1 %s" % labs[i])
    a("s_branch %s" % labs[4])
    a.label(labs[0])
    a("s_cmp_ge_u32 s%d, 3" % s_f)
    a("s_cselect_b32 s%d, 1, 0" % sx)
    a("s_mul_i32 s%d, s%d, 3" % (sy, sx))
    a("s_sub_u32 s%d, s%d, s%d" % (sy, s_f, sy))
    a("s_lshl_b32 s%d, s%d, 9" % (sz, sy))
    a("s_cmp_eq_u32 s%d, 2" % sy)
    a("s_cselect_b32 s%d, 1536, s%d" % (sz, sz))
    a("s_lshl_b32 s%d, s%d, 4" % (sx, sx))
    a("v_add_u32 v%d, s%d, v%d" % (vB, sx, vi))
    a("v_lshlrev_b32 v%d, 6, v%d" % (vB, vB))
    a("v_lshlrev_b32 v%d, 3, v%d" % (vA, vg))
    for j in range(8):
        a("v_add_u32 v%d, %d, v%d" % (vt, j, vA))
        a("v_mul_u32_u24 v%d, v%d, v%d" % (vt, vt, vB))
        entry(V + j, sz)
    a("s_nop 0")
    for j in range(8):
        a("v_mul_f32 v%d, 0x%x, v%d" % (V + j, f32bits(0.125), V + j))
    a("s_branch %s" % st16)
    a.label(labs[1])
    a("s_sub_u32 s%d, s%d, %d" % (sx, s_f, T_TW1))
    a("s_and_b32 s%d, s%d, 1" % (sz, sx))
    a("s_lshl_b32 s%d, s%d, 9" % (sz, sz))
    a("s_lshr_b32 s%d, s%d, 3" % (sy, sx))
    a("s_lshl_b32 s%d, s%d, 4" % (sy, sy))
    a("v_add_u32 v%d, s%d, v%d" % (vB, sy, vi))
    a("s_bfe_u32 s%d, s%d, 0x20001" % (sy, sx))
    a("s_lshl_b32 s%d, s%d, 4" % (sy, sy))
    a("v_lshlrev_b32 v%d, 2, v%d" % (vA, vg))
    a("v_add_u32 v%d, s%d, v%d" % (vA, sy, vA))
    a("s_branch %s" % st32)
    a.label(labs[2])
    a("s_sub_u32 s%d, s%d, %d" % (sx, s_f, T_M64))
    a("s_and_b32 s%d, s%d, 1" % (sz, sx))
    a("s_lshl_b32 s%d, s%d, 9" % (sz, sz))
    a("s_lshr_b32 s%d, s%d, 2" % (sy, sx))
    a("s_lshl_b32 s%d, s%d, 4" % (sy, sy))
    a("v_add_u32 v%d, s%d, v%d" % (vB, sy, vi))
    a("v_lshlrev_b32 v%d, 5, v%d" % (vB, vB))
    a("s_bfe_u32 s%d, s%d, 0x10001" % (sy, sx))
    a("s_lshl_b32 s%d, s%d, 5" % (sy, sy))
    a("v_lshlrev_b32 v%d, 2, v%d" % (vA, vg))
    a("v_add_u32 v%d, s%d, v%d" % (vA, sy, vA))
    for j in range(8):
        a("v_add_u32 v%d, %d, v%d" % (vt, 16 * (j >> 2) + (j & 3), vA))
        a("v_mul_u32_u24 v%d, v%d, v%d" % (vt, vt, vB))
        entry(V + j, sz)
    a("s_branch %s" % st16)
    a.label(labs[3])
    a("s_sub_u32 s%d, s%d, %d" % (sx, s_f, T_TW2))
    a("s_and_b32 s%d, s%d, 1" % (sz, sx))
    a("s_mul_i32 s%d, s%d, 1536" % (sz, sz))
    a("s_bfe_u32 s%d, s%d, 0x20001" % (sy, sx))
    a("s_lshl_b32 s%d, s%d, 4" % (sy, sy))
    a("v_add_u32 v%d, s%d, v%d" % (vB, sy, vi))
    a("s_lshr_b32 s%d, s%d, 3" % (sy, sx))
    a("s_lshl_b32 s%d, s%d, 4" % (sy, sy))
    a("v_lshlrev_b32 v%d, 2, v%d" % (vA, vg))
    a("v_add_u32 v%d, s%d, v%d" % (vA, sy, vA))
    a.label(st32)
    for r in range(4):
        a("v_add_u32 v%d, %d, v%d" % (vt, r, vA))
        a("v_mul_u32_u24 v%d, v%d, v%d" % (vt, vt, vB))
        entry(V + 16 + r, sz)
    a("s_nop 0")
    for r in range(4):
        a("v_mul_f32 v%d, 0x%x, v%d" % (V + 16 + r, f32bits(0.125), V + 16 + r))
    fin = a.newlabel("tab_fin")
    a("s_branch %s" % fin)
    a.label(labs[4])
    a("s_sub_u32 s%d, s%d, %d" % (sx, s_f, T_M32I))
    a("s_and_b32 s%d, s%d, 1" % (sz, sx))
    a("s_mul_i32 s%d, s%d, 1536" % (sz, sz))
    a("s_lshr_b32 s%d, s%d, 2" % (sy, sx))
    a("s_lshl_b32 s%d, s%d, 4" % (sy, sy))
    a("v_add_u32 v%d, s%d, v%d" % (vB, sy, vi))
    a("v_lshlrev_b32 v%d, 6, v%d" % (vB, vB))
    a("s_bfe_u32 s%d, s%d, 0x10001" % (sy, sx))
    a("s_lshl_b32 s%d, s%d, 4" % (sy, sy))
    a("v_lshlrev_b32 v%d, 2, v%d" % (vA, vg))
    a("v_add_u32 v%d, s%d, v%d" % (vA, sy, vA))
    for j in range(8):
        a("v_add_u32 v%d, %d, v%d" % (vt, j & 3, vA))
        a("v_mul_u32_u24 v%d, v%d, v%d" % (vt, vt, vB))
        entry(V + j, sz, 512 if j >= 4 else 0)
    a.label(st16)
    a("s_nop 0")
    for i in range(4):
        a("v_cvt_pk_f16_f32 v%d, v%d, v%d" % (V + 16 + i, V + 2 * i, V + 2 * i + 1))
    a.label(fin)
    a("s_lshl_b32 s%d, s%d, 10" % (sx, s_f))
    a("s_add_u32 s%d, s%d, 0x%x" % (sx, sx, TAB_OFF))
    a("v_lshlrev_b32 v%d, 4, v1" % (V + 8))
    a("buffer_store_dwordx4 %s, v%d, %s, s%d offen sc1" % (v(V + 16, 4), V + 8, Rw, sx))
    a.label(end)

def gen_k0(a):
    a.kernel_begin("k0_kernel")
    a.vm_reset()
    a("s_cmp_ge_u32 s2, 256")
    a("s_cbranch_scc1 L_k0_end")
    a("s_load_dwordx4 s[20:23], s[0:1], %d" % KA_WR)
    a("s_load_dwordx2 s[24:25], s[0:1], %d" % KA_WS)
    a("s_load_dwordx2 s[26:27], s[0:1], %d" % KA_W2)
    a("v_lshrrev_b32 v1, 6, v0")
    a("s_nop 0")
    a("v_readfirstlane_b32 s18, v1")
    a("v_and_b32 v1, 63, v0")
    a("s_waitcnt lgkmcnt(0)")
    a.srd(4, 24, WS_USED)
    a.srd(8, 20, S * 289 * 2)
    a.srd(12, 22, S * 289 * 2)
    a.srd(28, 26, F * D * 2)
    f1 = job_wt(a, 4, 2, 4, 8, 12, 40)
    f2 = job_w2p(a, 24, 2, 18, 4, 28, 0, 44)
    f1(); f2()
    a("s_lshl_b32 s50, s18, 8")
    a("s_add_u32 s50, s50, s2")
    job_finv(a, 44, 50, 4, 52)
    a("s_sub_u32 s50, s50, 1024")
    job_tab(a, 44, 50, 4, 52)
    a.label("L_k0_end")
    a("s_endpgm")
    return ("k0_kernel", 256, 512, 32768, 64)
```

```python
from asmlib import *
from layout import *

SLOT = 73728
BIAS_LDS = 2 * SLOT
K1_LDS = BIAS_LDS + 288 * 4

XN = 64
ACC = 16
FR = 32
NFR = 6
TMP = 208

def ids(a):
    a("s_and_b32 s30, s2, 7")
    a("s_lshr_b32 s31, s2, 3")
    a("s_lshr_b32 s16, s30, 1")
    a("s_lshl_b32 s16, s16, 2")
    a("s_and_b32 s28, s31, 3")
    a("s_add_u32 s16, s16, s28")
    a("s_and_b32 s17, s30, 1")
    a("s_lshl_b32 s17, s17, 3")
    a("s_lshr_b32 s28, s31, 2")
    a("s_and_b32 s28, s28, 1")
    a("s_lshl_b32 s28, s28, 2")
    a("s_add_u32 s17, s17, s28")
    a("s_lshr_b32 s28, s31, 3")
    a("s_add_u32 s17, s17, s28")
    a("v_lshrrev_b32 v1, 6, v0")
    a("s_nop 0")
    a("v_readfirstlane_b32 s18, v1")
    a("v_and_b32 v1, 63, v0")
    a("s_and_b32 s19, s18, 3")
    a("s_lshr_b32 s26, s18, 2")
    a("s_and_b32 s27, s17, 1")

def dma_pair(a, srd, voff, s_col, rowstride, slot):
    a("s_mul_i32 s28, s18, %d" % (8 * rowstride))
    a("s_add_u32 s28, s28, s%d" % s_col)
    a("s_lshl_b32 s29, s18, 10")
    for n in range(9):
        a("s_add_u32 m0, s29, %d" % (slot * SLOT + n * 8192))
        a("s_add_u32 s30, s28, %d" % (n * 64 * rowstride))
        a("buffer_load_dwordx4 v%d, s[%d:%d], s30 offen lds" % (voff, srd, srd + 3))

def tr_addr(slot, sstep, second):
    addr = slot * SLOT + sstep * 2048 + (256 if second else 0)
    k = addr // 49152
    return 4 + k, addr - k * 49152

def mfma_tile(a, slot, dft):
    def rd(st):
        b = FR + 4 * (st % NFR)
        for h in range(2):
            br, off = tr_addr(slot, st, h)
            a("ds_read_b64_tr_b16 %s, v%d offset:%d" % (v(b + 2 * h, 2), br, off))
    for st in range(NFR - 1):
        rd(st)
    for st in range(36):
        if st + NFR - 1 < 36:
            rd(st + NFR - 1)
            out = 2 * (NFR - 1)
        else:
            out = 2 * (35 - st)
        a("s_waitcnt lgkmcnt(%d)" % out)
        b = FR + 4 * (st % NFR)
        x = XN + 4 * st
        if dft:
            c = "0" if st == 0 else v(ACC, 16)
            a("v_mfma_f32_32x32x16_bf16 %s, %s, %s, %s" % (v(ACC, 16), v(x, 4), v(b, 4), c))
        else:
            a("v_mfma_f32_32x32x16_bf16 %s, %s, %s, %s" % (v(ACC, 16), v(b, 4), v(x, 4), v(ACC, 16)))

def bias_init(a, s_kt):
    a("s_lshl_b32 s28, s%d, 7" % s_kt)
    a("v_add_u32 v11, s28, v8")
    for i in range(4):
        a("ds_read_b128 %s, v11 offset:%d" % (v(ACC + 4 * i, 4), 32 * i))

def epi_gelu(a, s_kt):
    T = TMP
    a("s_nop 7"); a("s_nop 7")
    for i in range(16): a("v_mul_f32 v%d, v%d, v%d" % (T + i, ACC + i, ACC + i))
    for i in range(16): a("v_fma_f32 v%d, v%d, v10, v9" % (T + i, T + i))
    for i in range(16): a("v_mul_f32 v%d, v%d, v%d" % (T + i, ACC + i, T + i))
    for i in range(16): a("v_exp_f32 v%d, v%d" % (T + i, T + i))
    for i in range(16): a("v_add_f32 v%d, 1.0, v%d" % (T + i, T + i))
    for i in range(16): a("v_rcp_f32 v%d, v%d" % (T + i, T + i))
    for i in range(16): a("v_mul_f32 v%d, v%d, v%d" % (ACC + i, ACC + i, T + i))
    for i in range(8): a("v_cvt_pk_bf16_f32 v%d, v%d, v%d" % (T + i, ACC + 2 * i, ACC + 2 * i + 1))
    a("s_mul_i32 s28, s17, 9")
    a("s_add_u32 s28, s28, s%d" % s_kt)
    a("s_lshl_b32 s28, s28, 10")
    a("buffer_store_dwordx4 %s, v7, s[4:7], s28 offen" % v(T, 4))
    a("buffer_store_dwordx4 %s, v7, s[4:7], s28 offen offset:512" % v(T + 4, 4))
    return 2

def epi_dft(a):
    T = TMP
    a("s_nop 7"); a("s_nop 7")
    a("v_mov_b32 v11, 0x%x" % f32bits(1.0 / 24))
    for i in range(16): a("v_mul_f32 v%d, v%d, v11" % (ACC + i, ACC + i))
    for i in range(8): a("v_cvt_pk_f16_f32 v%d, v%d, v%d" % (T + i, ACC + 2 * i, ACC + 2 * i + 1))
    for i in range(4):
        a("buffer_store_dwordx2 %s, v12, s[4:7], 0 offen offset:%d" % (v(T + 2 * i, 2), 16 * i))
    return 4

def gen_k1(a):
    a.kernel_begin("k1_kernel")
    a("s_cmp_ge_u32 s2, 256")
    a("s_cbranch_scc1 L_k1_end")
    a.stamp()
    a("s_load_dwordx2 s[20:21], s[0:1], %d" % KA_W1)
    a("s_load_dwordx2 s[22:23], s[0:1], %d" % KA_B1)
    a("s_load_dwordx2 s[24:25], s[0:1], %d" % KA_WS)
    ids(a)
    a("s_lshl_b32 s28, s16, 7")
    a("s_lshl_b32 s29, s19, 5")
    a("s_add_u32 s28, s28, s29")
    a("s_mov_b32 s33, s28")
    a("v_and_b32 v11, 31, v1")
    a("v_lshrrev_b32 v14, 5, v1")
    a("v_add_u32 v13, s28, v11")
    a("v_mul_u32_u24 v13, 1152, v13")
    a("v_lshl_add_u32 v13, v14, 4, v13")
    if XN_OFF: a("v_add_u32 v13, 0x%x, v13" % XN_OFF)
    a("v_bfe_u32 v15, v1, 2, 3")
    a("v_and_b32 v12, 3, v1")
    a("v_lshlrev_b32 v12, 4, v12")
    a("v_lshl_add_u32 v12, v14, 6, v12")
    a("v_mul_u32_u24 v2, 9216, v15")
    a("v_add_u32 v2, v2, v12")
    a("v_lshlrev_b32 v3, 11, v15")
    a("v_add_u32 v3, v3, v12")
    a("v_bfe_u32 v15, v1, 2, 2")
    a("v_lshlrev_b32 v4, 6, v15")
    a("v_bfe_u32 v15, v1, 4, 1")
    a("v_lshl_add_u32 v4, v15, 5, v4")
    a("v_and_b32 v15, 3, v1")
    a("v_lshl_add_u32 v4, v15, 3, v4")
    a("v_lshl_add_u32 v4, v14, 10, v4")
    a("s_lshl_b32 s29, s26, 9")
    a("v_add_u32 v4, s29, v4")
    a("v_add_u32 v5, 49152, v4")
    a("v_add_u32 v6, 98304, v4")
    a("s_lshr_b32 s29, s33, 4")
    a("v_bfe_u32 v15, v1, 4, 1")
    a("v_add_u32 v15, s29, v15")
    a("s_mov_b32 s29, %d" % (144 * 1024))
    a("v_mul_lo_u32 v7, v15, s29")
    a("v_lshl_add_u32 v7, v14, 8, v7")
    a("v_and_b32 v15, 15, v1")
    a("v_lshl_add_u32 v7, v15, 4, v7")
    a("v_add_u32 v7, 0x%x, v7" % H_OFF)
    a("v_lshlrev_b32 v8, 4, v14")
    a("v_add_u32 v8, %d, v8" % BIAS_LDS)
    c0 = -2.0 * 1.4426950408889634 * 0.7978845608028654
    a("v_mov_b32 v9, 0x%x" % f32bits(c0))
    a("v_mov_b32 v10, 0x%x" % f32bits(c0 * 0.044715))
    a("s_lshl_b32 s29, s26, 5")
    a("v_add_u32 v15, s29, v11")
    a("s_mul_i32 s29, s17, 36")
    a("v_add_u32 v12, s29, v15")
    a("v_lshlrev_b32 v12, 12, v12")
    a("v_lshl_add_u32 v12, v14, 3, v12")
    a("s_lshl_b32 s29, s33, 1")
    a("s_add_u32 s29, s29, 0x%x" % X1_OFF)
    a("v_add_u32 v12, s29, v12")
    a("v_cmp_gt_u32 vcc, 36, v15")
    a("v_mov_b32 v15, 0x7ff00000")
    a("s_nop 1")
    a("v_cndmask_b32 v12, v15, v12, vcc")
    a("s_mul_i32 s29, s17, 288")
    a("v_add_u32 v11, s29, v0")
    a("v_lshlrev_b32 v11, 1, v11")
    a("v_cmp_gt_u32 vcc, 288, v0")
    a("s_nop 1")
    a("v_cndmask_b32 v11, v15, v11, vcc")
    a("s_waitcnt lgkmcnt(0)")
    a.srd(4, 24, WS_USED)
    a.srd(8, 20, D * F * 2)
    a.srd(12, 22, F * 2)
    a("buffer_load_ushort v14, v11, s[12:15], 0 offen")
    for st in range(36):
        a("buffer_load_dwordx4 %s, v13, s[4:7], 0 offen offset:%d" % (v(XN + 4 * st, 4), 32 * st))
    a("s_lshl_b32 s34, s17, 7")
    a("s_add_u32 s34, s34, 0x%x" % FT_OFF)
    dma_pair(a, 4, 3, 34, 2048, 0)
    a("s_mul_i32 s35, s17, 576")
    a("s_lshl_b32 s29, s27, 6")
    a("s_add_u32 s35, s35, s29")
    dma_pair(a, 8, 2, 35, 9216, 1)
    a.stamp()
    a("s_waitcnt vmcnt(54)")
    a("v_lshlrev_b32 v14, 16, v14")
    a("v_lshlrev_b32 v11, 2, v0")
    a("v_add_u32 v11, %d, v11" % BIAS_LDS)
    a("v_cmp_gt_u32 vcc, 288, v0")
    a("s_and_saveexec_b64 s[36:37], vcc")
    a("ds_write_b32 v11, v14")
    a("s_mov_b64 exec, s[36:37]")
    a("s_waitcnt vmcnt(9) lgkmcnt(0)")
    a.stamp()
    a("s_barrier")
    a.stamp()
    ns0 = a.nstamp
    a("s_cmp_eq_u32 s26, 1")
    a("s_cbranch_scc1 L_k1_g1")

    def next_pair(i):
        pi = i
        if pi > 4: return
        a("s_add_u32 s34, s35, %d" % (128 * pi))
        if pi == 4:
            a("s_mul_i32 s29, s27, 640")
            a("s_sub_u32 s34, s34, s29")
        dma_pair(a, 8, 2, 34, 9216, (i + 1) & 1)

    mfma_tile(a, 0, True)
    a.stamp()
    n = epi_dft(a)
    a("s_waitcnt vmcnt(%d)" % n)
    a("s_barrier")
    a.stamp()
    for i in range(1, 6):
        next_pair(i)
        pi = i - 1
        a("s_add_u32 s38, s27, %d" % (2 * pi))
        if pi == 4:
            a("s_cmp_eq_u32 s27, 1")
            a("s_cselect_b32 s38, 0, 8")
            a("s_lshl_b32 s29, s27, 9")
            a("v_add_u32 v4, s29, v4")
            a("v_add_u32 v5, s29, v5")
            a("v_add_u32 v6, s29, v6")
        bias_init(a, 38)
        mfma_tile(a, i & 1, False)
        a.stamp()
        n = epi_gelu(a, 38)
        if i < 5:
            a("s_waitcnt vmcnt(%d)" % n)
            a("s_barrier")
        a.stamp()
    a.stamp_flush(4, STAMP_OFF, 18, 224)
    a("s_endpgm")
    a.nstamp = ns0
    a.label("L_k1_g1")
    mfma_tile(a, 0, True)
    a.stamp()
    a("s_waitcnt vmcnt(0)")
    a("s_barrier")
    a.stamp()
    for i in range(1, 6):
        next_pair(i)
        n = epi_dft(a) if i == 1 else epi_gelu(a, 38)
        a.stamp()
        if i < 5:
            pi = i - 1
            a("s_add_u32 s38, s27, %d" % (2 * pi + 1))
            bias_init(a, 38)
            mfma_tile(a, i & 1, False)
            a("s_waitcnt vmcnt(%d)" % n)
            a("s_barrier")
            a.stamp()
    a.stamp_flush(4, STAMP_OFF, 18, 224)
    a.label("L_k1_end")
    a("s_endpgm")
    return ("k1_kernel", 256, 512, K1_LDS, 226 if a.stamps_on else 224)
```

```python
from asmlib import *
from layout import *
from k1 import ids
import k0

UNIT = 36864
STAT_LDS = 4 * UNIT
BIAS_LDS = STAT_LDS + 4096
K1_LDS = BIAS_LDS + 288 * 4

XN = 88
ACCS = [16, 32]
FR = 48
NFR = 6
TMP = 72
NV = 232

def w2p_gather(a, V, s_wg, s_wave, srd_ws, srd_w2, st):
    su, sk, sg, sx = st, st + 1, st + 2, st + 3
    Rw = "s[%d:%d]" % (srd_ws, srd_ws + 3)
    vA, vS = V + 32, V + 33
    a("s_lshl_b32 s%d, s%d, 8" % (su, s_wave))
    a("s_add_u32 s%d, s%d, s%d" % (su, su, s_wg))
    a("s_mul_hi_u32 s%d, s%d, 0x%x" % (sk, su, (2**32 + 8) // 9))
    a("s_mul_i32 s%d, s%d, 9" % (sg, sk))
    a("s_sub_u32 s%d, s%d, s%d" % (sg, su, sg))
    a("s_mul_i32 s%d, s%d, %d" % (sx, sk, 32 * 1152))
    a("s_lshl_b32 s%d, s%d, 7" % (st + 4, sg))
    a("s_add_u32 s%d, s%d, s%d" % (sx, sx, st + 4))
    a("v_lshrrev_b32 v%d, 5, v1" % vA)
    a("v_lshlrev_b32 v%d, 4, v%d" % (vA, vA))
    a("v_bfe_u32 v%d, v1, 4, 1" % vS)
    a("v_lshl_add_u32 v%d, v%d, 2, v%d" % (vA, vS, vA))
    a("v_mul_u32_u24 v%d, 1152, v%d" % (vA, vA))
    a("v_and_b32 v%d, 15, v1" % vS)
    a("v_lshl_add_u32 v%d, v%d, 1, v%d" % (vA, vS, vA))
    a("v_add_u32 v%d, s%d, v%d" % (vA, sx, vA))
    a("v_add_u32 v%d, %d, v%d" % (V + 34, 8 * 1152, vA))
    for j in range(8):
        for nt in range(4):
            a.vm("buffer_load_ushort v%d, v%d, s[%d:%d], 0 offen offset:%d" % (V + 8 * nt + j, vA if j < 4 else V + 34, srd_w2, srd_w2 + 3, (j & 3) * 1152 + nt * 32), "w2p")
    a("s_mul_i32 s%d, s%d, 36" % (sx, sk))
    a("s_lshl_b32 s%d, s%d, 2" % (sg, sg))
    a("s_add_u32 s%d, s%d, s%d" % (sx, sx, sg))
    a("s_lshl_b32 s%d, s%d, 10" % (sx, sx))
    a("s_add_u32 s%d, s%d, 0x%x" % (sx, sx, W2P_OFF))
    a("s_cmp_lt_u32 s%d, 1296" % su)
    a("s_cselect_b32 s%d, 0, 0x7ff00000" % sg)
    a("v_lshlrev_b32 v%d, 4, v1" % vS)
    a("v_add_u32 v%d, s%d, v%d" % (vS, sg, vS))
    def finish():
        a.vm_wait("w2p")
        for nt in range(4):
            for i in range(4):
                a("v_lshl_or_b32 v%d, v%d, 16, v%d" % (V + 8 * nt + i, V + 8 * nt + 2 * i + 1, V + 8 * nt + 2 * i))
            a.vm("buffer_store_dwordx4 %s, v%d, %s, s%d offen offset:%d" % (v(V + 8 * nt, 4), vS, Rw, sx, nt * 1024))
    return finish

def gen_k1(a, side=True):
    a.kernel_begin("k1_kernel")
    a.vm_reset()
    a("s_cmp_ge_u32 s2, 256")
    a("s_cbranch_scc1 L_k1_end")
    a.stamp()
    a("s_load_dwordx4 s[20:23], s[0:1], %d" % KA_X)
    a("s_load_dwordx2 s[24:25], s[0:1], %d" % KA_WI)
    a("s_load_dwordx4 s[36:39], s[0:1], %d" % KA_W1)
    a("s_load_dwordx2 s[56:57], s[0:1], %d" % KA_W2)
    a("s_load_dwordx2 s[58:59], s[0:1], %d" % KA_WS)
    ids(a)
    a("s_lshl_b32 s28, s16, 7")
    a("s_lshl_b32 s29, s19, 5")
    a("s_add_u32 s33, s28, s29")
    a("v_and_b32 v11, 31, v1")
    a("v_lshrrev_b32 v14, 5, v1")
    a("s_waitcnt lgkmcnt(0)")
    a.srd(40, 20, S * D * 2)
    a("s_cmp_eq_u32 s26, 1")
    a("s_cbranch_scc1 L_k1_g1")
    ns0 = a.nstamp
    FG = 16
    T = TMP
    def prologue(g):
        OWN = XN + 72 * g
        OTH = XN + 72 * (1 - g)
        a("s_mul_i32 s34, s16, %d" % (128 * 1152))
        a("s_lshl_b32 s29, s18, 6")
        a("v_add_u32 v12, s29, v1")
        a("s_lshl_b32 s29, s18, 10")
        for i in range(18):
            t = 2 + (i & 1)
            a("v_lshrrev_b32 v%d, 4, v12" % t)
            a("v_mul_u32_u24 v%d, 7282, v%d" % (t, t))
            a("v_bfe_u32 v%d, v%d, 16, 3" % (t, t))
            a("v_xor_b32 v%d, v%d, v12" % (t, t))
            a("v_lshlrev_b32 v%d, 4, v%d" % (t, t))
            a("s_add_u32 m0, s29, %d" % (i * 8192))
            a("v_add_u32 v12, 512, v12")
            a.vm("buffer_load_dwordx4 v%d, s[40:43], s34 offen lds" % t, "x")
        a.srd(4, 58, WS_USED)
        a.srd(8, 36, D * F * 2)
        a.srd(12, 38, F * 2)
        a.srd(44, 22, S * 289 * 2)
        a.srd(48, 24, S * 289 * 2)
        a.srd(52, 56, F * D * 2)
        a("v_mov_b32 v15, 0x7ff00000")
        a("s_mul_i32 s29, s17, 288")
        a("v_add_u32 v13, s29, v0")
        a("v_lshlrev_b32 v13, 1, v13")
        a("v_cmp_gt_u32 vcc, 288, v0")
        a("s_nop 1")
        a("v_cndmask_b32 v13, v15, v13, vcc")
        a.vm("buffer_load_ushort v10, v13, s[12:15], 0 offen", "bias")
        a("s_mul_i32 s35, s17, 576")
        a("s_and_b32 s28, s35, 0xffffff80")
        a("s_and_b32 s29, s16, 3")
        a("s_mul_i32 s29, s29, %d" % (144 * 9216))
        a("s_add_u32 s28, s28, s29")
        for rd in range(2):
            a("v_add_u32 v13, %d, v0" % (512 * rd))
            a("v_mul_u32_u24 v12, 13108, v13")
            a("v_lshrrev_b32 v12, 16, v12")
            a("v_mul_u32_u24 v9, 5, v12")
            a("v_sub_u32 v9, v13, v9")
            a("v_mul_u32_u24 v12, 9216, v12")
            a("v_lshl_add_u32 v12, v9, 7, v12")
            a("v_cmp_gt_u32 vcc, 720, v13")
            a("s_nop 1")
            a("v_cndmask_b32 v12, v15, v12, vcc")
            a.vm("buffer_load_dword v%d, v12, s[8:11], s28 offen" % (60 + rd), "pf")
        fin = []
        if side:
            fin.append(k0.job_wt(a, OTH, 2, 4, 44, 48, 20))
            fin.append(w2p_gather(a, OTH + 20, 2, 18, 4, 52, 60 if False else 28))
        a("v_bfe_u32 v15, v1, 2, 3")
        a("v_and_b32 v12, 3, v1")
        a("v_lshlrev_b32 v12, 4, v12")
        a("v_lshl_add_u32 v12, v14, 6, v12")
        a("v_mul_u32_u24 v2, 9216, v15")
        a("v_add_u32 v2, v2, v12")
        a.stamp()
        a("s_mul_i32 s36, s17, 36")
        a("s_lshl_b32 s37, s26, 5")
        a("s_add_u32 s36, s36, s37")
        a("v_add_u32 v%d, s36, v11" % T)
        a("v_lshrrev_b32 v%d, 1, v%d" % (T + 1, T))
        a("v_and_b32 v%d, 1, v%d" % (T + 2, T))
        a("v_mul_u32_u24 v%d, 144, v%d" % (T + 2, T + 2))
        a("v_cmp_eq_u32 vcc, 1, v%d" % T)
        a("v_mov_b32 v%d, 288" % (T + 3))
        a("s_nop 0")
        a("v_cndmask_b32 v%d, v%d, v%d, vcc" % (T + 1, T + 1, T + 3))
        a("v_cndmask_b32 v%d, v%d, 0, vcc" % (T + 2, T + 2))
        a("s_mul_i32 s37, s19, 144")
        a("v_lshlrev_b32 v%d, 3, v14" % (T + 3))
        a("v_add_u32 v%d, s37, v%d" % (T + 3, T + 3))
        a("v_mad_u32_u24 v%d, v%d, v%d, v%d" % (T + 3, T + 3, T + 1, T + 2))
        def mod576(x, t):
            a("v_cvt_f32_u32 v%d, v%d" % (t, x))
            a("v_mul_f32 v%d, 0x%x, v%d" % (t, f32bits(1.0 / 576), t))
            a("v_cvt_u32_f32 v%d, v%d" % (t, t))
            a("v_mul_u32_u24 v%d, 576, v%d" % (t, t))
            a("v_sub_u32 v%d, v%d, v%d" % (x, x, t))
        mod576(T + 3, T + 4)
        a("v_mul_u32_u24 v%d, 9, v%d" % (T + 5, T + 1))
        mod576(T + 5, T + 4)
        rN, rJ, rJ9 = T + 3, T + 1, T + 5
        for i in range(9):
            for j in range(8):
                tv = T + 8 + j
                a("v_cvt_f32_u32 v%d, v%d" % (tv, rN))
                a("v_add_u32 v%d, v%d, v%d" % (rN, rN, rJ if j < 7 else rJ9))
                a("v_mul_f32 v%d, 0x%x, v%d" % (tv, f32bits(1.0 / 576), tv))
                a("v_subrev_u32 v%d, 576, v%d" % (T + 4, rN))
                a("v_cos_f32 v%d, v%d" % (tv, tv))
                a("v_min_u32 v%d, v%d, v%d" % (rN, rN, T + 4))
            a("s_nop 0")
            for k in range(4):
                a("v_cvt_pk_bf16_f32 v%d, v%d, v%d" % (FG + 4 * i + k, T + 8 + 2 * k, T + 8 + 2 * k + 1))
        if side:
            a("s_lshl_b32 s36, s18, 8")
            a("s_add_u32 s36, s36, s2")
            k0.job_finv(a, OWN, 36, 4, 37)
            a("s_sub_u32 s36, s36, 1024")
            k0.job_tab(a, OWN, 36, 4, 37)
        a.stamp()
        a.vm_wait("bias")
        a("v_lshlrev_b32 v10, 16, v10")
        a("v_lshlrev_b32 v13, 2, v0")
        a("v_add_u32 v13, %d, v13" % BIAS_LDS)
        a("v_cmp_gt_u32 vcc, 288, v0")
        a("s_and_saveexec_b64 s[36:37], vcc")
        a("ds_write_b32 v13, v10")
        a("s_mov_b64 exec, s[36:37]")
        a("s_lshl_b32 s36, s19, 5")
        a("v_add_u32 v13, s36, v11")
        a("v_bfe_u32 v12, v13, 1, 3")
        a("v_mul_u32_u24 v15, 1152, v13")
        for q in range(4):
            a("v_add_u32 v%d, %d, v14" % (4 + q, 2 * q))
            a("v_xor_b32 v%d, v%d, v12" % (4 + q, 4 + q))
            a("v_lshl_add_u32 v%d, v%d, 4, v15" % (4 + q, 4 + q))
        a("v_lshlrev_b32 v9, 5, v13")
        a("v_add_u32 v9, %d, v9" % STAT_LDS)
        a("s_lshl_b32 s36, s26, 4")
        a("v_lshl_add_u32 v8, v14, 3, v9")
        a("v_add_u32 v8, s36, v8")
        a.stamp()
        a("s_waitcnt lgkmcnt(0)")
        a("s_barrier")
        a.stamp()
        return fin

    def xaddr(s_):
        return 4 + (s_ & 3), (s_ >> 2) * 128

    def group(g):
        a.nstamp = ns0
        a.vm_reset()
        fin = prologue(g)
        own = range(18 * g, 18 * g + 18)
        oth = range(18 * (1 - g), 18 * (1 - g) + 18)
        for s_ in own:
            r_, off = xaddr(s_)
            a("ds_read_b128 %s, v%d offset:%d" % (v(XN + 4 * s_, 4), r_, off))
        A1, A2 = T, T + 4
        for i in range(8): a("v_mov_b32 v%d, 0" % (T + i))
        a("v_mov_b32 v%d, 0x3f803f80" % (T + 8))
        for n, s_ in enumerate(own):
            a("s_waitcnt lgkmcnt(%d)" % min(15, 17 - n))
            for k in range(4):
                x = XN + 4 * s_ + k
                a("v_dot2c_f32_bf16 v%d, v%d, v%d" % (A1 + k, x, T + 8))
                a("v_dot2c_f32_bf16 v%d, v%d, v%d" % (A2 + k, x, x))
        a("s_nop 2")
        for A in (A1, A2):
            a("v_add_f32 v%d, v%d, v%d" % (A, A, A + 1))
            a("v_add_f32 v%d, v%d, v%d" % (A + 2, A + 2, A + 3))
        a("v_add_f32 v%d, v%d, v%d" % (T + 8, A1, A1 + 2))
        a("v_add_f32 v%d, v%d, v%d" % (T + 9, A2, A2 + 2))
        a("ds_write_b64 v8, %s" % v(T + 8, 2))
        a("s_waitcnt lgkmcnt(0)")
        a("s_barrier")
        a("ds_read_b128 %s, v9" % v(T, 4))
        a("ds_read_b128 %s, v9 offset:16" % v(T + 4, 4))
        a("s_waitcnt lgkmcnt(0)")
        a("v_add_f32 v%d, v%d, v%d" % (T, T, T + 2))
        a("v_add_f32 v%d, v%d, v%d" % (T + 4, T + 4, T + 6))
        a("v_add_f32 v%d, v%d, v%d" % (T + 1, T + 1, T + 3))
        a("v_add_f32 v%d, v%d, v%d" % (T + 5, T + 5, T + 7))
        a("v_add_f32 v%d, v%d, v%d" % (T, T, T + 4))
        a("v_add_f32 v%d, v%d, v%d" % (T + 1, T + 1, T + 5))
        a("v_mul_f32 v%d, 0x%x, v%d" % (T, f32bits(1.0 / 576), T))
        a("v_mul_f32 v%d, 0x%x, v%d" % (T + 1, f32bits(1.0 / 576), T + 1))
        a("v_fma_f32 v%d, -v%d, v%d, v%d" % (T + 1, T, T, T + 1))
        a("v_max_f32 v%d, 0, v%d" % (T + 1, T + 1))
        a("v_cvt_pk_bf16_f32 v%d, v%d, v%d" % (T + 2, T, T + 1))
        a("v_lshlrev_b32 v%d, 16, v%d" % (T, T + 2))
        a("v_and_b32 v%d, 0xffff0000, v%d" % (T + 1, T + 2))
        a("v_add_f32 v%d, 0x%x, v%d" % (T + 1, f32bits(1e-5), T + 1))
        a("v_cvt_pk_bf16_f32 v%d, v%d, v%d" % (T + 1, T + 1, T + 1))
        a("v_lshlrev_b32 v%d, 16, v%d" % (T + 1, T + 1))
        a("v_sqrt_f32 v%d, v%d" % (T + 1, T + 1))
        a("s_nop 0")
        a("v_cvt_pk_bf16_f32 v%d, v%d, v%d" % (T + 1, T + 1, T + 1))
        a("v_lshlrev_b32 v%d, 16, v%d" % (T + 1, T + 1))
        a("v_rcp_f32 v%d, v%d" % (T + 1, T + 1))
        a("s_nop 0")
        a("v_mul_f32 v%d, -v%d, v%d" % (T, T, T + 1))
        for s_ in own:
            for k in range(4):
                x = XN + 4 * s_ + k
                t0, t1 = T + 2 + 2 * k, T + 3 + 2 * k
                a("v_lshlrev_b32 v%d, 16, v%d" % (t0, x))
                a("v_and_b32 v%d, 0xffff0000, v%d" % (t1, x))
                a("v_fma_f32 v%d, v%d, v%d, v%d" % (t0, t0, T + 1, T))
                a("v_fma_f32 v%d, v%d, v%d, v%d" % (t1, t1, T + 1, T))
                a("v_cvt_pk_bf16_f32 v%d, v%d, v%d" % (x, t0, t1))
            r_, off = xaddr(s_)
            a("ds_write_b128 v%d, %s offset:%d" % (r_, v(XN + 4 * s_, 4), off))
        for f in fin: f()
        a.vm_wait("pf")
        a("s_waitcnt lgkmcnt(0)")
        a("s_barrier")
        for s_ in oth:
            r_, off = xaddr(s_)
            a("ds_read_b128 %s, v%d offset:%d" % (v(XN + 4 * s_, 4), r_, off))
        a("v_bfe_u32 v15, v1, 2, 2")
        a("v_lshlrev_b32 v12, 6, v15")
        a("v_bfe_u32 v15, v1, 4, 1")
        a("v_lshl_add_u32 v12, v15, 5, v12")
        a("v_and_b32 v15, 3, v1")
        a("v_lshl_add_u32 v12, v15, 3, v12")
        a("v_lshl_add_u32 v12, v14, 10, v12")
        a("v_add_u32 v12, %d, v12" % (512 * g))
        a("v_lshlrev_b32 v3, 4, v1")
        a("s_waitcnt lgkmcnt(0)")
        a("s_barrier")
        a("v_mov_b32 v4, v12")
        a("v_add_u32 v5, 49152, v12")
        a("v_add_u32 v6, 98304, v12")
        a("s_lshr_b32 s36, s19, 1")
        a("s_mul_i32 s36, s36, %d" % UNIT)
        a("s_and_b32 s37, s19, 1")
        a("s_mul_i32 s37, s37, %d" % (9 * 2048))
        a("s_add_u32 s36, s36, s37")
        a("v_add_u32 v13, s36, v3")
        for i in range(9):
            a("ds_write_b128 v13, %s offset:%d" % (v(FG + 4 * i, 4), i * 2048 + g * 1024))
        a("s_lshl_b32 s29, s27, 6")
        a("s_add_u32 s35, s35, s29")
        a("s_mul_i32 s34, s18, %d" % (8 * 9216))
        a("s_add_u32 s35, s35, s34")
        a("s_lshl_b32 s34, s18, 10")
        ndma = 5 if g == 0 else 4
        def dma_list(u):
            pi, kh = (u - 2) >> 1, u & 1
            out = []
            for n in range(ndma):
                off = 128 * pi + (kh * 288 + n * 64) * 9216
                ins = ["s_add_u32 m0, s34, %d" % ((u % 4) * UNIT + n * 8192),
                       "s_add_u32 s30, s%d, %d" % (35 if pi < 4 else 31, off)]
                out.append((ins, "buffer_load_dwordx4 v2, s[8:11], s30 offen lds", "u%d" % u))
            return out
        a("s_mul_i32 s29, s27, 640")
        a("s_sub_u32 s31, s35, s29")
        for u in (2, 3):
            for ins, ld, tag in dma_list(u):
                for x in ins: a(x)
                a.vm(ld, tag)
        a("s_lshr_b32 s29, s33, 4")
        a("v_bfe_u32 v15, v1, 4, 1")
        a("v_add_u32 v15, s29, v15")
        a("s_mov_b32 s29, %d" % (144 * 1024))
        a("v_mul_lo_u32 v7, v15, s29")
        a("v_lshl_add_u32 v7, v14, 8, v7")
        a("v_and_b32 v15, 15, v1")
        a("v_lshl_add_u32 v7, v15, 4, v7")
        a("v_add_u32 v7, 0x%x, v7" % H_OFF)
        a("v_lshlrev_b32 v8, 4, v14")
        a("v_add_u32 v8, %d, v8" % BIAS_LDS)
        c0 = -2.0 * 1.4426950408889634 * 0.7978845608028654
        a("v_mov_b32 v9, 0x%x" % f32bits(c0))
        a("v_mov_b32 v10, 0x%x" % f32bits(c0 * 0.044715))
        a("v_add_u32 v15, %d, v11" % (32 * g))
        a("s_mul_i32 s29, s17, 36")
        a("v_add_u32 v12, s29, v15")
        a("v_lshlrev_b32 v12, 12, v12")
        a("v_lshl_add_u32 v12, v14, 3, v12")
        a("s_lshl_b32 s29, s33, 1")
        a("s_add_u32 s29, s29, 0x%x" % X1_OFF)
        a("v_add_u32 v12, s29, v12")
        a("v_cmp_gt_u32 vcc, 36, v15")
        a("v_mov_b32 v15, 0x7ff00000")
        a("s_nop 1")
        a("v_cndmask_b32 v12, v15, v12, vcc")
        a("v_add_u32 v13, %d, v3" % (1024 * g))
        a("s_mul_i32 s39, s17, 9")
        a("s_waitcnt lgkmcnt(0)")
        a("s_barrier")
        a.stamp()

        def m18(phi):
            p, kh = phi >> 1, phi & 1
            acc = ACCS[p & 1]
            base = (phi % 4) * UNIT
            dft = p == 0
            if not dft and kh == 0:
                sk = 36 + (p & 1)
                pi = p - 1
                a("s_add_u32 s%d, s27, %d" % (sk, 2 * pi + g))
                if pi == 4:
                    a("s_cmp_eq_u32 s27, 1")
                    a("s_cselect_b32 s%d, 0, 8" % sk)
                    a("s_lshl_b32 s29, s27, 9")
                    for r_ in (4, 5, 6): a("v_add_u32 v%d, s29, v%d" % (r_, r_))
                a("s_lshl_b32 s28, s%d, 7" % sk)
                a("v_add_u32 v15, s28, v8")
                for i in range(4):
                    a("ds_read_b128 %s, v15 offset:%d" % (v(acc + 4 * i, 4), 32 * i))
            if dft and kh == 1:
                a("v_add_u32 v13, %d, v13" % UNIT)
            per = 1 if dft else 2
            def rd(st):
                b = FR + 4 * (st % NFR)
                if dft:
                    a("ds_read_b128 %s, v13 offset:%d" % (v(b, 4), st * 2048))
                else:
                    for h in range(2):
                        addr = base + st * 2048 + 256 * h
                        k = addr // 49152
                        a("ds_read_b64_tr_b16 %s, v%d offset:%d" % (v(b + 2 * h, 2), 4 + k, addr - k * 49152))
            for st in range(NFR - 1): rd(st)
            for st in range(18):
                if st + NFR - 1 < 18:
                    rd(st + NFR - 1); out = per * (NFR - 1)
                else:
                    out = per * (17 - st)
                a("s_waitcnt lgkmcnt(%d)" % out)
                b = FR + 4 * (st % NFR)
                x = XN + 4 * (18 * kh + st)
                if dft:
                    c = "0" if (st == 0 and kh == 0) else v(acc, 16)
                    a("v_mfma_f32_32x32x16_bf16 %s, %s, %s, %s" % (v(acc, 16), v(x, 4), v(b, 4), c))
                else:
                    a("v_mfma_f32_32x32x16_bf16 %s, %s, %s, %s" % (v(acc, 16), v(b, 4), v(x, 4), v(acc, 16)))

        def ehalf(p, h2, dmas, pad):
            acc = ACCS[p & 1] + 8 * h2
            ops = []
            TT = T + 8 * (h2 & 1) if False else T
            if p is None or p < 0:
                pass
            elif p == 0:
                for i in range(8): ops.append("v_mul_f32 v%d, 0x%x, v%d" % (acc + i, f32bits(1.0 / 24), acc + i))
                for i in range(4): ops.append("v_cvt_pk_f16_f32 v%d, v%d, v%d" % (T + 8 + 4 * h2 + i, acc + 2 * i, acc + 2 * i + 1))
                for i in range(2): ops.append(("st", "buffer_store_dwordx2 %s, v12, s[4:7], 0 offen offset:%d" % (v(T + 8 + 4 * h2 + 2 * i, 2), 32 * h2 + 16 * i)))
            else:
                for i in range(8): ops.append("v_mul_f32 v%d, v%d, v%d" % (T + i, acc + i, acc + i))
                for i in range(8): ops.append("v_fma_f32 v%d, v%d, v10, v9" % (T + i, T + i))
                for i in range(8): ops.append("v_mul_f32 v%d, v%d, v%d" % (T + i, acc + i, T + i))
                for i in range(8): ops.append("v_exp_f32 v%d, v%d" % (T + i, T + i))
                for i in range(8): ops.append("v_add_f32 v%d, 1.0, v%d" % (T + i, T + i))
                for i in range(8): ops.append("v_rcp_f32 v%d, v%d" % (T + i, T + i))
                for i in range(8): ops.append("v_mul_f32 v%d, v%d, v%d" % (T + i, acc + i, T + i))
                for i in range(4): ops.append("v_cvt_pk_bf16_f32 v%d, v%d, v%d" % (T + 8 + 4 * h2 + i, T + 2 * i, T + 2 * i + 1))
                ops.append("s_add_u32 s28, s39, s%d" % (36 + (p & 1)))
                ops.append("s_lshl_b32 s28, s28, 10")
                ops.append(("st", "buffer_store_dwordx4 %s, v7, s[4:7], s28 offen offset:%d" % (v(T + 8 + 4 * h2, 4), 512 * h2)))
            dm = list(dmas)
            if pad:
                if dm:
                    ins, ld, tag = dm.pop(0)
                    for x in ins: a(x)
                    a.vm(ld, tag)
                    a("s_nop 7"); a("s_nop 1")
                else:
                    a("s_nop 7"); a("s_nop 4")
            step = max(1, len(ops) // (len(dm) + 1)) if dm else 0
            for i, o in enumerate(ops):
                if dm and i % step == 0:
                    ins, ld, tag = dm.pop(0)
                    for x in ins: a(x)
                    a.vm(ld, tag)
                if isinstance(o, tuple): a.vm(o[1], "st")
                else: a(o)
            for ins, ld, tag in dm:
                for x in ins: a(x)
                a.vm(ld, tag)

        for phi in range(12):
            p, kh = phi >> 1, phi & 1
            dmas = dma_list(phi + 3) if 1 <= phi <= 8 else []
            if g == 0:
                m18(phi)
                if kh == 1:
                    ehalf(p, 0, dmas, True)
                    if phi == 11: ehalf(p, 1, [], False)
                else:
                    ehalf(p - 1, 1, dmas, False)
            else:
                ehalf(p - 1, kh, dmas, False)
                if p < 5: m18(phi)
            if phi < 11:
                if phi + 1 >= 2:
                    a.vm_wait("u%d" % (phi + 1))
                a("s_barrier")
            if phi % 2 == 1 or phi == 0: a.stamp()
        a.stamp_flush(4, STAMP_OFF, 18, NV)
        a("s_endpgm")

    group(0)
    a.label("L_k1_g1")
    group(1)
    a.label("L_k1_end")
    a("s_endpgm")
    return ("k1_kernel", 256, 512, K1_LDS, NV + 2 if a.stamps_on else NV)
```

```python
from asmlib import *
from layout import *

T_M32F = 0
T_TW1 = 6
T_M64 = 22
T_TW2 = 38
T_M32I = 54
TAB_KB = 62

COL_LDS = 12288
K2_LDS = 2 * COL_LDS + 64

def fft_body(a, ldsbase, V0, srd, s_col, s_hw, s_cs, st, oobv):
    ZA = V0
    MF = V0 + 32
    AC = V0 + 44
    TW = V0 + 76
    PK = V0 + 108
    M64 = V0 + 132
    WV = V0 + 196
    T0 = V0 + 212
    vL16, vTR, vST, vSTI, vSC, vX, vY = T0 + 8, T0 + 9, T0 + 10, T0 + 11, T0 + 12, T0 + 13, T0 + 14
    sRE, sIM, sT, sU, sL = st, st + 1, st + 2, st + 3, st + 4
    R = "s[%d:%d]" % (srd, srd + 3)
    OOB = 0x7ff00000
    a("s_lshl_b32 s%d, s%d, 13" % (sRE, s_col))
    a("s_add_u32 s%d, s%d, 4096" % (sIM, sRE))
    a("s_cmp_eq_u32 s%d, 0" % s_col)
    a("s_cselect_b32 s%d, 0x%x, s%d" % (sIM, OOB, sIM))
    a("s_cmp_eq_u32 s%d, 288" % s_col)
    a("s_cselect_b32 s%d, 0x%x, s%d" % (sIM, OOB, sIM))
    a("s_cselect_b32 s%d, 4096, s%d" % (sRE, sRE))
    a("s_cmp_gt_u32 s%d, 288" % s_col)
    a("s_cselect_b32 s%d, 0x%x, s%d" % (sRE, OOB, sRE))
    a("s_cselect_b32 s%d, 0x%x, s%d" % (sIM, OOB, sIM))
    a("s_mul_i32 s%d, s%d, %d" % (sL, s_cs, COL_LDS))
    a("s_add_u32 s%d, s%d, %d" % (sL, sL, ldsbase))
    a("v_lshlrev_b32 v%d, 4, v1" % vL16)
    a("s_cmp_eq_u32 s%d, 0" % s_hw)
    a("s_cselect_b32 s%d, s%d, s%d" % (sT, sRE, sIM))
    a("v_add_u32 v%d, s%d, v%d" % (vX, sT, vL16))
    a("s_lshl_b32 s%d, s%d, 12" % (sU, s_hw))
    a("s_add_u32 s%d, s%d, s%d" % (sU, sU, sL))
    a("s_mov_b32 s%d, 0x%x" % (sT, X1_OFF))
    for n in range(4):
        a("s_add_u32 m0, s%d, %d" % (sU, 0))
        a("s_nop 0")
        a("buffer_load_dwordx4 v%d, %s, s%d offen offset:%d lds" % (vX, R, sT, n * 1024))
    def tload(dst, kb_static, hw_kb=0, sreg=None):
        a("buffer_load_dwordx4 %s, v%d, %s, s%d offen offset:%d" % (v(dst, 4), vL16, R, sreg, (kb_static % 4) * 1024))
    def tgroup(dst, kb0, n, hwmul):
        for i in range(n):
            if i % 4 == 0:
                a("s_mul_i32 s%d, s%d, %d" % (sT, s_hw, hwmul * 1024))
                a("s_add_u32 s%d, s%d, 0x%x" % (sT, sT, TAB_OFF + (kb0 + i) * 1024))
            a("buffer_load_dwordx4 %s, v%d, %s, s%d offen offset:%d" % (v(dst + 4 * i, 4), vL16, R, sT, (i % 4) * 1024))
    tgroup(MF, T_M32F, 3, 3)
    tgroup(TW, T_TW1, 8, 8)
    a("s_lshl_b32 s%d, s%d, 13" % (sT, s_col))
    a("s_lshl_b32 s%d, s%d, 12" % (sU, s_hw))
    a("s_add_u32 s%d, s%d, s%d" % (sT, sT, sU))
    a("s_add_u32 s%d, s%d, 0x%x" % (sT, sT, WT_OFF))
    a("s_cmp_gt_u32 s%d, 288" % s_col)
    a("s_cselect_b32 s%d, 0x%x, s%d" % (sT, WT_OFF, sT))
    for t in range(4):
        a("buffer_load_dwordx4 %s, v%d, %s, s%d offen offset:%d" % (v(WV + 4 * t, 4), vL16, R, sT, t * 1024))
    tgroup(M64, T_M64, 16, 0)
    a("v_lshrrev_b32 v%d, 4, v1" % vX)
    a("v_bfe_u32 v%d, v1, 2, 2" % vY)
    a("v_lshl_add_u32 v%d, v%d, 3, v%d" % (vY, vX, vY))
    a("v_lshlrev_b32 v%d, 7, v%d" % (vTR, vY))
    a("v_and_b32 v%d, 3, v1" % vY)
    a("v_lshl_add_u32 v%d, v%d, 3, v%d" % (vTR, vY, vTR))
    a("v_add_u32 v%d, s%d, v%d" % (vTR, sL, vTR))
    a("v_and_b32 v%d, 15, v1" % vY)
    a("v_lshlrev_b32 v%d, 7, v%d" % (vY, vY))
    a("v_lshl_add_u32 v%d, v%d, 3, v%d" % (vY, vX, vY))
    a("s_lshl_b32 s%d, s%d, 6" % (sT, s_hw))
    a("s_add_u32 s%d, s%d, 0x%x" % (sT, sT, Y1_OFF))
    a("v_add_u32 v%d, s%d, v%d" % (vY, sT, vY))
    a("v_add_u32 v%d, s%d, v%d" % (vST, sRE, vY))
    a("v_add_u32 v%d, s%d, v%d" % (vSTI, sIM, vY))
    a("s_lshl_b32 s%d, s%d, 2" % (sT, s_cs))
    a("s_add_u32 s%d, s%d, %d" % (sT, sT, ldsbase + 2 * COL_LDS))
    a("v_mov_b32 v%d, s%d" % (vSC, sT))
    a("v_mov_b32 v%d, 0" % vX)
    a("ds_write_b32 v%d, v%d" % (vSC, vX))
    a("s_waitcnt vmcnt(31) lgkmcnt(0)")
    a("s_barrier")
    for t in range(4):
        for p in range(2):
            for h in range(2):
                a("ds_read_b64_tr_b16 %s, v%d offset:%d" % (v(ZA + (2 * t + p) * 4 + 2 * h, 2), vTR, p * 4096 + t * 32 + h * 512))
    a("s_waitcnt vmcnt(28) lgkmcnt(0)")
    CR, CI, NCI = MF, MF + 4, MF + 8
    mf = "v_mfma_f32_16x16x32_f16"
    for t in range(4):
        zr, zi = ZA + 8 * t, ZA + 8 * t + 4
        a("%s %s, %s, %s, 0" % (mf, v(AC + 8 * t, 4), v(zr, 4), v(CR, 4)))
        a("%s %s, %s, %s, 0" % (mf, v(AC + 8 * t + 4, 4), v(zr, 4), v(CI, 4)))
    for t in range(4):
        zr, zi = ZA + 8 * t, ZA + 8 * t + 4
        a("%s %s, %s, %s, %s" % (mf, v(AC + 8 * t, 4), v(zi, 4), v(NCI, 4), v(AC + 8 * t, 4)))
        a("%s %s, %s, %s, %s" % (mf, v(AC + 8 * t + 4, 4), v(zi, 4), v(CR, 4), v(AC + 8 * t + 4, 4)))
    a("s_waitcnt vmcnt(16)")
    a("v_mov_b32 v%d, 0x7fff7fff" % vY)
    a("v_and_b32 v%d, v%d, v%d" % (vX, WV, vY))
    for i in range(1, 16):
        a("v_and_b32 v%d, v%d, v%d" % (T0, WV + i, vY))
        a("v_pk_max_u16 v%d, v%d, v%d" % (vX, vX, T0))
    a("v_lshrrev_b32 v%d, 16, v%d" % (T0, vX))
    a("v_and_b32 v%d, 0xffff, v%d" % (vX, vX))
    a("v_max_u32 v%d, v%d, v%d" % (vX, vX, T0))
    a("ds_max_u32 v%d, v%d" % (vSC, vX))
    tgroup(ZA, T_TW2, 8, 8)
    def cmul(xr, xi, wr, wi, t0, t1):
        a("v_mul_f32 v%d, v%d, v%d" % (t0, xi, wi))
        a("v_mul_f32 v%d, v%d, v%d" % (t1, xr, wi))
        a("v_fma_f32 v%d, v%d, v%d, -v%d" % (xr, xr, wr, t0))
        a("v_fma_f32 v%d, v%d, v%d, v%d" % (xi, xi, wr, t1))
    for t in range(4):
        for r in range(4):
            cmul(AC + 8 * t + r, AC + 8 * t + 4 + r, TW + 8 * t + r, TW + 8 * t + 4 + r, T0 + (2 * r) % 8, T0 + (2 * r + 1) % 8)
    def packs(neg_first):
        for u in range(2):
            for tt in range(2):
                t = 2 * u + tt
                for hh in range(2):
                    re0, im0 = AC + 8 * t + 2 * hh, AC + 8 * t + 4 + 2 * hh
                    d = 4 * u + 2 * tt + hh
                    a("v_cvt_pk_f16_f32 v%d, v%d, v%d" % (PK + d, re0, re0 + 1))
                    a("v_cvt_pk_f16_f32 v%d, v%d, v%d" % (PK + 8 + d, im0, im0 + 1))
                    n0 = re0 if neg_first else im0
                    a("v_cvt_pk_f16_f32 v%d, -v%d, -v%d" % (PK + 16 + d, n0, n0 + 1))
    packs(False)
    for nt in range(2):
        for oo in range(2):
            a("s_xor_b32 s%d, s%d, %d" % (sT, s_hw, oo))
            a("s_lshl_b32 s%d, s%d, 11" % (sT, sT))
            a("s_add_u32 s%d, s%d, 0x%x" % (sT, sT, TAB_OFF + (T_M32I + 4 * nt) * 1024))
            for p in range(2):
                a("buffer_load_dwordx4 %s, v%d, %s, s%d offen offset:%d" % (v(TW + ((2 * nt + oo) * 2 + p) * 4, 4), vL16, R, sT, p * 1024))
    a("s_waitcnt vmcnt(16)")
    def m64(t, u, ci): return M64 + ((2 * t + u) * 2 + ci) * 4
    for u in range(2):
        for t in range(4):
            c0 = "0" if u == 0 else v(AC + 8 * t, 4)
            c1 = "0" if u == 0 else v(AC + 8 * t + 4, 4)
            a("%s %s, %s, %s, %s" % (mf, v(AC + 8 * t, 4), v(m64(t, u, 0), 4), v(PK + 4 * u, 4), c0))
            a("%s %s, %s, %s, %s" % (mf, v(AC + 8 * t + 4, 4), v(m64(t, u, 1), 4), v(PK + 4 * u, 4), c1))
        for t in range(4):
            a("%s %s, %s, %s, %s" % (mf, v(AC + 8 * t, 4), v(m64(t, u, 1), 4), v(PK + 16 + 4 * u, 4), v(AC + 8 * t, 4)))
            a("%s %s, %s, %s, %s" % (mf, v(AC + 8 * t + 4, 4), v(m64(t, u, 0), 4), v(PK + 8 + 4 * u, 4), v(AC + 8 * t + 4, 4)))
    a("s_waitcnt lgkmcnt(0)")
    a("s_barrier")
    a("ds_read_b32 v%d, v%d" % (vX, vSC))
    a("s_waitcnt lgkmcnt(0)")
    a("v_lshrrev_b32 v%d, 7, v%d" % (vX, vX))
    a("v_sub_u32 v%d, 250, v%d" % (vY, vX))
    a("v_max_i32 v%d, 1, v%d" % (vY, vY))
    a("v_lshlrev_b32 v%d, 23, v%d" % (vY, vY))
    a("v_subrev_u32 v%d, 126, v%d" % (vX, vX))
    a("v_mov_b32 v%d, 0x%x" % (vSC, f32bits(1.0 / 96)))
    a("v_ldexp_f32 v%d, v%d, v%d" % (vSC, vSC, vX))
    for t in range(4):
        for r in range(4):
            w = WV + 4 * t + r
            t0, t1, t2, t3 = T0 + 4 * (r & 1), T0 + 4 * (r & 1) + 1, T0 + 4 * (r & 1) + 2, T0 + 4 * (r & 1) + 3
            a("v_lshlrev_b32 v%d, 16, v%d" % (t2, w))
            a("v_and_b32 v%d, 0xffff0000, v%d" % (t3, w))
            a("v_mul_f32 v%d, v%d, v%d" % (t2, t2, vY))
            a("v_mul_f32 v%d, v%d, v%d" % (t3, t3, vY))
            cmul(AC + 8 * t + r, AC + 8 * t + 4 + r, t2, t3, t0, t1)
    packs(True)
    a("s_nop 1")
    for u in range(2):
        for t in range(4):
            c0 = "0" if u == 0 else v(AC + 8 * t, 4)
            c1 = "0" if u == 0 else v(AC + 8 * t + 4, 4)
            a("%s %s, %s, %s, %s" % (mf, v(AC + 8 * t, 4), v(PK + 4 * u, 4), v(m64(t, u, 0), 4), c0))
            a("%s %s, %s, %s, %s" % (mf, v(AC + 8 * t + 4, 4), v(PK + 8 + 4 * u, 4), v(m64(t, u, 0), 4), c1))
        for t in range(4):
            a("%s %s, %s, %s, %s" % (mf, v(AC + 8 * t, 4), v(PK + 8 + 4 * u, 4), v(m64(t, u, 1), 4), v(AC + 8 * t, 4)))
            a("%s %s, %s, %s, %s" % (mf, v(AC + 8 * t + 4, 4), v(PK + 16 + 4 * u, 4), v(m64(t, u, 1), 4), v(AC + 8 * t + 4, 4)))
    a("s_waitcnt vmcnt(8)")
    a("s_nop 7")
    for t in range(4):
        for r in range(4):
            cmul(AC + 8 * t + r, AC + 8 * t + 4 + r, ZA + 8 * t + r, ZA + 8 * t + 4 + r, T0 + (2 * r) % 8, T0 + (2 * r + 1) % 8)
    for t in range(4):
        for k in range(4):
            a("v_cvt_pk_f16_f32 v%d, v%d, v%d" % (PK + 4 * t + k, AC + 8 * t + 2 * k, AC + 8 * t + 2 * k + 1))
    a("s_xor_b32 s%d, s%d, 1" % (sT, s_hw))
    a("s_lshl_b32 s%d, s%d, 11" % (sT, sT))
    a("s_add_u32 s%d, s%d, s%d" % (sT, sT, sL))
    a("v_add_u32 v%d, s%d, v%d" % (vX, sT, vL16))
    a("s_lshl_b32 s%d, s%d, 11" % (sT, s_hw))
    a("s_add_u32 s%d, s%d, s%d" % (sT, sT, sL))
    a("v_add_u32 v%d, s%d, v%d" % (vTR, sT, vL16))
    lab = a.newlabel("fft_hw1"); lab2 = a.newlabel("fft_j")
    a("s_cmp_eq_u32 s%d, 1" % s_hw)
    a("s_cbranch_scc1 %s" % lab)
    a("ds_write_b128 v%d, %s offset:8192" % (vX, v(PK + 8, 4)))
    a("ds_write_b128 v%d, %s offset:9216" % (vX, v(PK + 12, 4)))
    a("s_branch %s" % lab2)
    a.label(lab)
    a("ds_write_b128 v%d, %s offset:8192" % (vX, v(PK, 4)))
    a("ds_write_b128 v%d, %s offset:9216" % (vX, v(PK + 4, 4)))
    a("s_waitcnt lgkmcnt(0)")
    for i in range(8):
        a("v_mov_b32 v%d, v%d" % (PK + i, PK + 8 + i))
    a.label(lab2)
    a("s_waitcnt lgkmcnt(0)")
    a("s_barrier")
    a("ds_read_b128 %s, v%d offset:8192" % (v(PK + 8, 4), vTR))
    a("ds_read_b128 %s, v%d offset:9216" % (v(PK + 12, 4), vTR))
    a("s_waitcnt vmcnt(0) lgkmcnt(0)")
    def m32i(nt, oo, p): return TW + ((2 * nt + oo) * 2 + p) * 4
    def accy(bt, nt, p): return AC + ((2 * bt + nt) * 2 + p) * 4
    for oo in range(2):
        for bt in range(2):
            for nt in range(2):
                for p in range(2):
                    c = "0" if oo == 0 else v(accy(bt, nt, p), 4)
                    a("%s %s, %s, %s, %s" % (mf, v(accy(bt, nt, p), 4), v(PK + 8 * oo + 4 * bt, 4), v(m32i(nt, oo, p), 4), c))
    a("s_nop 7")
    for i in range(32):
        a("v_mul_f32 v%d, v%d, v%d" % (AC + i, AC + i, vSC))
    for i in range(16):
        a("v_cvt_pk_bf16_f32 v%d, v%d, v%d" % (ZA + i, AC + 2 * i, AC + 2 * i + 1))
    for bt in range(2):
        for nt in range(2):
            for p in range(2):
                k = (2 * bt + nt) * 2 + p
                a("buffer_store_dwordx2 %s, v%d, %s, 0 offen offset:%d" % (v(ZA + 2 * k, 2), vSTI if p else vST, R, nt * 2048 + bt * 32))

def gen_k2(a):
    a.kernel_begin("k2_kernel")
    a("s_cmp_ge_u32 s2, 145")
    a("s_cbranch_scc1 L_k2_end")
    a("s_load_dwordx2 s[24:25], s[0:1], %d" % KA_WS)
    a("v_lshrrev_b32 v1, 6, v0")
    a("s_nop 0")
    a("v_readfirstlane_b32 s18, v1")
    a("v_and_b32 v1, 63, v0")
    a("s_and_b32 s19, s18, 1")
    a("s_lshr_b32 s20, s18, 1")
    a("s_lshl_b32 s21, s2, 1")
    a("s_add_u32 s21, s21, s20")
    a("s_waitcnt lgkmcnt(0)")
    a.srd(4, 24, WS_USED)
    fft_body(a, 0, 4, 4, 21, 19, 20, 30, None)
    a.label("L_k2_end")
    a("s_endpgm")
    return ("k2_kernel", 145, 256, K2_LDS, 232)
```

```python
from asmlib import *
from layout import *
from k1 import ids

KS = 17408
NSLOT = 8
K3_LDS = KS * NSLOT

ACC = 96
BUF = [8, 52]

def lds_ref(addr, basereg0):
    k = addr // 49152
    return basereg0 + k, addr - k * 49152

def gen_k3(a):
    a.kernel_begin("k3_kernel")
    a("s_cmp_ge_u32 s2, 256")
    a("s_cbranch_scc1 L_k3_end")
    a.stamp()
    a("s_load_dwordx2 s[24:25], s[0:1], %d" % KA_WS)
    ids(a)
    a("s_lshr_b32 s20, s17, 2")
    a("s_and_b32 s21, s17, 3")
    a("s_mul_i32 s22, s20, 9")
    a("s_add_u32 s22, s22, 1")
    a("s_lshr_b32 s22, s22, 1")
    a("s_and_b32 s23, s20, 1")
    a("s_waitcnt lgkmcnt(0)")
    a.srd(4, 24, WS_USED)
    a("s_cmp_eq_u32 s26, 1")
    a("s_cbranch_scc1 L_k3_loader")

    a("v_lshlrev_b32 v2, 4, v1")
    a("v_add_u32 v3, 49152, v2")
    a("v_add_u32 v4, 98304, v2")
    a("s_lshl_b32 s28, s19, 11")
    a("s_add_u32 s28, s28, 9216")
    a("v_add_u32 v5, s28, v2")
    a("v_add_u32 v6, 49152, v5")
    a("v_add_u32 v7, 98304, v5")
    a("v_lshrrev_b32 v174, 5, v1")
    a("v_lshlrev_b32 v174, 4, v174")
    a("v_bfe_u32 v175, v1, 4, 1")
    a("v_lshl_add_u32 v174, v175, 2, v174")
    a("v_bfe_u32 v175, v1, 2, 2")
    a("v_add_u32 v174, v174, v175")
    a("v_bfe_u32 v175, v1, 1, 1")
    a("s_lshl_b32 s28, s19, 2")
    a("v_add_u32 v175, s28, v175")
    a("v_and_b32 v176, 7, v174")
    a("v_lshlrev_b32 v176, 1, v176")
    a("v_xor_b32 v175, v175, v176")
    a("v_xor_b32 v176, 2, v175")
    a("v_lshlrev_b32 v174, 8, v174")
    a("v_and_b32 v177, 1, v1")
    a("v_lshl_add_u32 v174, v177, 3, v174")
    a("v_add_u32 v174, 9216, v174")
    a("v_lshl_add_u32 v168, v175, 4, v174")
    a("v_lshl_add_u32 v171, v176, 4, v174")
    for b in (168, 171):
        a("v_add_u32 v%d, 49152, v%d" % (b + 1, b))
        a("v_add_u32 v%d, 98304, v%d" % (b + 2, b))
    for i in range(72):
        a("v_mov_b32 v%d, 0" % (ACC + i))

    def reads(n):
        B = BUF[n & 1]
        slot = (n % NSLOT) * KS
        out = []
        if n < 36:
            for mt in range(2):
                br, off = lds_ref(slot + mt * 1024, 5)
                out.append("ds_read_b128 %s, v%d offset:%d" % (v(B + 4 * mt, 4), br, off))
        else:
            for mt in range(2):
                for hh in range(2):
                    br, off = lds_ref(slot + hh * 2048, 168 + 3 * mt)
                    out.append("ds_read_b64_tr_b16 %s, v%d offset:%d" % (v(B + 4 * mt + 2 * hh, 2), br, off))
        for t in range(9):
            br, off = lds_ref(slot + t * 1024, 2)
            out.append("ds_read_b128 %s, v%d offset:%d" % (v(B + 8 + 4 * t, 4), br, off))
        return out

    def kstep(n, last):
        B = BUF[n & 1]
        rd = [] if last else reads(n + 1)
        a("s_waitcnt lgkmcnt(0)")
        if n % 2 == 0 and n > 0:
            a("s_barrier")
        k = 0
        for t in range(9):
            for mt in range(2):
                acc = ACC + (2 * t + mt) * 4
                a("v_mfma_f32_16x16x32_bf16 %s, %s, %s, %s" % (v(acc, 4), v(B + 8 + 4 * t, 4), v(B + 4 * mt, 4), v(acc, 4)))
                if k < len(rd):
                    a(rd[k]); k += 1
        assert k == len(rd)

    ns0 = a.nstamp
    a.stamp()
    a("s_barrier")
    a.stamp()
    for r_ in reads(0): a(r_)
    for n in range(39):
        kstep(n, False)
        if n % 4 == 3: a.stamp()
    a("s_cmp_eq_u32 s23, 1")
    a("s_cbranch_scc1 L_k3_c39last")
    kstep(39, False)
    kstep(40, True)
    a("s_branch L_k3_epi")
    a.label("L_k3_c39last")
    kstep(39, True)
    a("s_barrier")
    a.label("L_k3_epi")
    a.stamp()
    a("s_lshl_b32 s28, s20, 4")
    a("s_add_u32 s28, s28, s16")
    a("s_lshl_b32 s28, s28, 2")
    a("s_add_u32 s28, s28, s21")
    a("s_lshl_b32 s28, s28, 2")
    a("s_add_u32 s28, s28, s19")
    a("s_mul_i32 s28, s28, %d" % (18 * 1024))
    a("s_add_u32 s28, s28, 0x%x" % P_OFF)
    a("s_nop 7")
    for tl in range(18):
        if tl % 4 == 0 and tl > 0:
            a("s_add_u32 s28, s28, 4096")
        a("buffer_store_dwordx4 %s, v2, s[4:7], s28 offen offset:%d" % (v(ACC + 4 * tl, 4), (tl % 4) * 1024))
    a.stamp()
    a("s_waitcnt vmcnt(0)")
    a.stamp()
    a.stamp_flush(4, STAMP_OFF, 18, 8)
    a("s_endpgm")

    a.label("L_k3_loader")
    a("v_lshlrev_b32 v2, 4, v1")
    a("v_lshrrev_b32 v4, 4, v1")
    a("s_and_b32 s28, s19, 1")
    a("s_lshl_b32 s28, s28, 2")
    a("v_add_u32 v5, s28, v4")
    a("v_lshlrev_b32 v5, 1, v5")
    a("v_and_b32 v6, 15, v1")
    a("v_xor_b32 v5, v5, v6")
    a("v_lshlrev_b32 v5, 4, v5")
    a("v_lshl_add_u32 v3, v4, 12, v5")
    a("s_mul_i32 s34, s20, %d" % (36 * 36 * 1024))
    a("s_mul_i32 s28, s21, 9216")
    a("s_add_u32 s34, s34, s28")
    a("s_add_u32 s34, s34, 0x%x" % W2P_OFF)
    a("s_add_u32 s35, s22, 144")
    a("s_mul_i32 s35, s35, %d" % (36 * 1024))
    a("s_add_u32 s35, s35, s28")
    a("s_add_u32 s35, s35, 0x%x" % W2P_OFF)
    a("s_lshl_b32 s36, s16, 3")
    a("s_add_u32 s36, s36, s19")
    a("s_mul_i32 s36, s36, 144")
    a("s_mul_i32 s28, s20, 36")
    a("s_add_u32 s36, s36, s28")
    a("s_lshl_b32 s36, s36, 10")
    a("s_add_u32 s36, s36, 0x%x" % H_OFF)
    a("s_lshl_b32 s37, s22, 5")
    a("s_lshl_b32 s28, s19, 2")
    a("s_add_u32 s37, s37, s28")
    a("s_lshl_b32 s37, s37, 12")
    a("s_lshl_b32 s28, s16, 8")
    a("s_add_u32 s37, s37, s28")
    a("s_add_u32 s37, s37, 0x%x" % Y1_OFF)
    a("s_lshl_b32 s38, s19, 10")
    a("s_cmp_eq_u32 s19, 0")
    a("s_cbranch_scc1 L_k3_loader0")

    def loader(first):
        cnt = 5 if first else 4
        def issue(n):
            slot = (n % NSLOT) * KS
            tiles = [0, 4] + ([8] if first else [])
            for t in tiles:
                a("s_add_u32 m0, s38, %d" % (slot + t * 1024))
                if n < 36:
                    a("s_add_u32 s30, s34, %d" % (n * 36 * 1024 + t * 1024))
                else:
                    a("s_add_u32 s30, s35, %d" % ((n - 36) * 36 * 1024 + t * 1024))
                a("s_add_u32 s30, s30, s38")
                a("buffer_load_dwordx4 v2, s[4:7], s30 offen lds")
            for u in range(2):
                a("s_add_u32 m0, s38, %d" % (slot + 9216 + u * 4096))
                if n < 36:
                    a("s_add_u32 s30, s36, %d" % (n * 1024 + u * 4 * 144 * 1024))
                    a("buffer_load_dwordx4 v2, s[4:7], s30 offen lds")
                else:
                    a("s_add_u32 s30, s37, %d" % (((n - 36) * 32 + u * 16) * 4096))
                    a("buffer_load_dwordx4 v3, s[4:7], s30 offen lds")
        a.nstamp = ns0
        a.stamp()
        for n in range(7):
            issue(n)
        a.stamp()
        issued = 7
        for u in range(21):
            need = min(2 * u + 2, 40)
            a("s_waitcnt vmcnt(%d)" % ((issued - 1 - need) * cnt))
            if u % 5 == 0: a.stamp()
            a("s_barrier")
            if u % 5 == 0: a.stamp()
            for n in (2 * u + 7, 2 * u + 8):
                if n <= 40:
                    issue(n); issued = n + 1
            if u % 5 == 0: a.stamp()
        a.stamp_flush(4, STAMP_OFF, 18, 8)
        a("s_endpgm")
    loader(False)
    a.label("L_k3_loader0")
    loader(True)
    a.label("L_k3_end")
    a("s_endpgm")
    return ("k3_kernel", 256, 512, K3_LDS, 180)

def gen_k4(a):
    a.kernel_begin("k4_kernel")
    a("s_cmp_ge_u32 s2, 1152")
    a("s_cbranch_scc1 L_k4_end")
    a("s_load_dwordx2 s[20:21], s[0:1], %d" % KA_X)
    a("s_load_dwordx2 s[22:23], s[0:1], %d" % KA_B2)
    a("s_load_dwordx2 s[24:25], s[0:1], %d" % KA_WS)
    a("s_load_dwordx2 s[26:27], s[0:1], %d" % KA_OUT)
    a("v_lshrrev_b32 v1, 6, v0")
    a("s_nop 0")
    a("v_readfirstlane_b32 s18, v1")
    a("v_and_b32 v1, 63, v0")
    a("s_lshl_b32 s28, s2, 2")
    a("s_add_u32 s28, s28, s18")
    a("s_mul_hi_u32 s29, s28, 0x%x" % ((2**32 + 17) // 18))
    a("s_mul_i32 s30, s29, 18")
    a("s_sub_u32 s30, s28, s30")
    a("s_and_b32 s31, s29, 3")
    a("s_lshr_b32 s32, s29, 2")
    a("s_and_b32 s33, s32, 3")
    a("s_lshr_b32 s32, s32, 2")
    a("s_lshl_b32 s34, s32, 7")
    a("s_lshl_b32 s35, s31, 5")
    a("s_add_u32 s34, s34, s35")
    a("s_and_b32 s35, s30, 1")
    a("s_lshl_b32 s35, s35, 4")
    a("s_add_u32 s34, s34, s35")
    a("s_mul_i32 s35, s33, 144")
    a("s_lshr_b32 s36, s30, 1")
    a("s_lshl_b32 s36, s36, 4")
    a("s_add_u32 s35, s35, s36")
    a("v_and_b32 v2, 15, v1")
    a("v_add_u32 v2, s34, v2")
    a("v_mul_u32_u24 v2, 1152, v2")
    a("v_lshrrev_b32 v3, 4, v1")
    a("v_lshlrev_b32 v3, 2, v3")
    a("v_add_u32 v3, s35, v3")
    a("v_lshlrev_b32 v3, 1, v3")
    a("v_add_u32 v2, v2, v3")
    a("v_lshlrev_b32 v4, 4, v1")
    a("s_lshl_b32 s28, s28, 10")
    a("s_add_u32 s28, s28, 0x%x" % P_OFF)
    a("s_waitcnt lgkmcnt(0)")
    a.srd(4, 24, WS_USED)
    a.srd(8, 20, S * D * 2)
    a.srd(12, 22, D * 2)
    a.srd(40, 26, S * D * 2)
    for q in range(4):
        a("buffer_load_dwordx4 %s, v4, s[4:7], s28 offen" % v(8 + 4 * q, 4))
        if q < 3: a("s_add_u32 s28, s28, %d" % (S * D * 4))
    a("buffer_load_dwordx2 v[24:25], v2, s[8:11], 0 offen")
    a("buffer_load_dwordx2 v[26:27], v3, s[12:15], 0 offen")
    a("s_waitcnt vmcnt(0)")
    for i in range(4):
        a("v_add_f32 v%d, v%d, v%d" % (8 + i, 8 + i, 12 + i))
        a("v_add_f32 v%d, v%d, v%d" % (16 + i, 16 + i, 20 + i))
    for i in range(4):
        a("v_add_f32 v%d, v%d, v%d" % (8 + i, 8 + i, 16 + i))
    for src in (26, 24):
        a("v_lshlrev_b32 v12, 16, v%d" % src)
        a("v_and_b32 v13, 0xffff0000, v%d" % src)
        a("v_lshlrev_b32 v14, 16, v%d" % (src + 1))
        a("v_and_b32 v15, 0xffff0000, v%d" % (src + 1))
        for i in range(4):
            a("v_add_f32 v%d, v%d, v%d" % (8 + i, 8 + i, 12 + i))
    a("v_cvt_pk_bf16_f32 v16, v8, v9")
    a("v_cvt_pk_bf16_f32 v17, v10, v11")
    a("buffer_store_dwordx2 v[16:17], v2, s[40:43], 0 offen")
    a.label("L_k4_end")
    a("s_endpgm")
    return ("k4_kernel", 1152, 256, 0, 32)
```

```python
S, D, F = 2048, 576, 4608
def al(x, a=4096): return (x + a - 1) // a * a
XN_OFF = 0
XN_SZ = S * D * 2
FT_OFF = al(XN_OFF + XN_SZ)
FT_SZ = D * 1024 * 2
H_OFF = al(FT_OFF + FT_SZ)
H_SZ = S * F * 2
X1_OFF = al(H_OFF + H_SZ)
X1_SZ = D * S * 2
Y1_OFF = al(X1_OFF + X1_SZ)
Y1_SZ = D * S * 2
WT_OFF = al(Y1_OFF + Y1_SZ)
WT_SZ = 289 * 8192
W2P_OFF = al(WT_OFF + WT_SZ)
W2P_SZ = 162 * 36 * 1024
TAB_OFF = al(W2P_OFF + W2P_SZ)
TAB_SZ = 65536
P_OFF = al(TAB_OFF + TAB_SZ)
P_SZ = 4 * S * D * 4
FLAG_OFF = al(P_OFF + P_SZ)
FLAG_SZ = 65536
CS_OFF = al(FLAG_OFF + FLAG_SZ)
CS_SZ = 16 * 16 * 1152
STAMP_OFF = al(CS_OFF + CS_SZ)
STAMP_SZ = 4 * 2048 * 16 * 128
WS_USED = STAMP_OFF + STAMP_SZ
KA_X, KA_WR, KA_WI, KA_BX, KA_W1, KA_B1, KA_W2, KA_B2, KA_OUT, KA_DBG, KA_WS = [8 * i for i in range(11)]
```

```python
import sys
from asmlib import *
from layout import *

HEADER = open("parallel_sum__spectral_gfnet__dense_activation_gelu__prompt.s.ref").read().split("; Override")[0]

def build(gens, path, stamps=False):
    a = Asm()
    a.stamps_on = stamps
    infos = [g(a) for g in gens]
    out = HEADER
    for (name, grid, block, lds, vg) in infos:
        out += "; @launch kernel=%s grid=(%d,1,1) block=(%d,1,1) lds=%d\n" % (name, grid, block, lds)
    out += '.amdgcn_target "amdgcn-amd-amdhsa--gfx950"\n.text\n'
    out += a.text()
    out += '.section .rodata,"a"\n'
    seen = set()
    for (name, grid, block, lds, vg) in infos:
        if name in seen: continue
        seen.add(name)
        out += kd(name, vg)
    open(path, "w").write(out)

if __name__ == "__main__":
    import k0, k1, k1b, k2, k3
    build([k1b.gen_k1, k2.gen_k2, k3.gen_k3, k3.gen_k4], 'v3.s')
    build([k1b.gen_k1], 'k1bt.s', True)
    build([k0.gen_k0], 'k0.s')
    build([k1.gen_k1, k2.gen_k2, k3.gen_k3, k3.gen_k4], 'v2.s')
    build([k1.gen_k1, k3.gen_k3, k3.gen_k4], "v1.s")
    build([k1.gen_k1, k3.gen_k3, k3.gen_k4], "v1t.s", True)
    build([k3.gen_k3], "k3t.s", True)
```

```python
import struct

def f32bits(x):
    return struct.unpack("<I", struct.pack("<f", x))[0]

def v(i, n=1):
    return "v%d" % i if n == 1 else "v[%d:%d]" % (i, i + n - 1)

def s(i, n=1):
    return "s%d" % i if n == 1 else "s[%d:%d]" % (i, i + n - 1)

class Asm:
    def __init__(self):
        self.L = []
        self.uid = 0
    def __call__(self, line):
        self.L.append("  " + line)
    def label(self, name):
        self.L.append(name + ":")
    def raw(self, line):
        self.L.append(line)
    def c(self, text):
        self.L.append("  ; " + text)
    def newlabel(self, base):
        self.uid += 1
        return "L_%s_%d" % (base, self.uid)
    def text(self):
        return "\n".join(self.L) + "\n"
    def srd(self, d, base, nbytes):
        self("s_mov_b32 s%d, s%d" % (d, base))
        self("s_and_b32 s%d, s%d, 0xffff" % (d + 1, base + 1))
        self("s_mov_b32 s%d, 0x%x" % (d + 2, nbytes))
        self("s_mov_b32 s%d, 0x00020000" % (d + 3))
    def vm_reset(self):
        self.vmq = []
    def vm(self, line, tag=None):
        self(line); self.vmq.append(tag)
    def vm_count_after(self, tag):
        idx = max(i for i, t in enumerate(self.vmq) if t == tag)
        return len(self.vmq) - 1 - idx
    def vm_wait(self, tag, extra=""):
        n = self.vm_count_after(tag)
        n = min(n, 63)
        self("s_waitcnt vmcnt(%d)%s" % (n, extra))
    def vm_mark(self, name):
        if not hasattr(self, "marks"): self.marks = {}
        self.marks[name] = len(self.vmq)
    def vm_wait_mark(self, name):
        self("s_waitcnt vmcnt(%d)" % min(63, len(self.vmq) - self.marks[name]))
    def lg_reset(self):
        self.lgq = []
    def ds(self, line, tag=None):
        self(line); self.lgq.append(tag)
    def lg_wait(self, tag):
        idx = [i for i, t in enumerate(self.lgq) if t == tag]
        if not idx: return
        n = min(len(self.lgq) - 1 - max(idx), 15)
        self("s_waitcnt lgkmcnt(%d)" % n)
        self.lgq = self.lgq[len(self.lgq) - n:] if n else []
    def lg_all(self):
        self("s_waitcnt lgkmcnt(0)"); self.lgq = []
    stamps_on = False
    def stamp(self, real=False):
        if not self.stamps_on: return
        i = self.nstamp; self.nstamp += 1
        assert i < 20
        self("%s s[%d:%d]" % ("s_memrealtime" if real else "s_memtime", 60 + 2 * i, 61 + 2 * i))
        self("s_waitcnt lgkmcnt(0)")
        self.lgq = []
    def stamp_flush(self, srd, base_off, s_wave, vt=250):
        if not self.stamps_on: return
        self("s_lshl_b32 s58, s2, 4")
        self("s_add_u32 s58, s58, s%d" % s_wave)
        self("s_lshl_b32 s58, s58, 7")
        self("s_add_u32 s58, s58, 0x%x" % base_off)
        self("v_mov_b32 v%d, 0" % vt)
        for i in range(self.nstamp):
            self("v_mov_b32 v%d, s%d" % (vt + 1, 60 + 2 * i))
            self("buffer_store_dword v%d, v%d, s[%d:%d], s58 offen offset:%d" % (vt + 1, vt, srd, srd + 3, 4 * i))
            self("s_nop 1")
    def kernel_begin(self, name):
        self.nstamp = 0
        self.raw(".globl %s" % name)
        self.raw(".p2align 8")
        self.raw(".type %s,@function" % name)
        self.label(name)

def kd(name, vgpr, sgpr=102, accum=None):
    if accum is None:
        accum = (vgpr + 3) // 4 * 4
    return "\n".join([
        ".p2align 6",
        ".amdhsa_kernel %s" % name,
        "  .amdhsa_next_free_vgpr %d" % vgpr,
        "  .amdhsa_next_free_sgpr %d" % sgpr,
        "  .amdhsa_accum_offset %d" % accum,
        "  .amdhsa_group_segment_fixed_size 0",
        "  .amdhsa_kernarg_size 88",
        "  .amdhsa_user_sgpr_count 2",
        "  .amdhsa_user_sgpr_kernarg_segment_ptr 1",
        "  .amdhsa_system_sgpr_workgroup_id_x 1",
        ".end_amdhsa_kernel",
    ]) + "\n"
```

```python
import sys
from asmlib import *
from layout import *

HEADER = open("parallel_sum__spectral_gfnet__dense_activation_gelu__prompt.s.ref").read().split("; Override")[0]

def build(gens, path, stamps=False):
    a = Asm()
    a.stamps_on = stamps
    infos = [g(a) for g in gens]
    out = HEADER
    for (name, grid, block, lds, vg) in infos:
        out += "; @launch kernel=%s grid=(%d,1,1) block=(%d,1,1) lds=%d\n" % (name, grid, block, lds)
    out += '.amdgcn_target "amdgcn-amd-amdhsa--gfx950"\n.text\n'
    out += a.text()
    out += '.section .rodata,"a"\n'
    seen = set()
    for (name, grid, block, lds, vg) in infos:
        if name in seen: continue
        seen.add(name)
        out += kd(name, vg)
    open(path, "w").write(out)

if __name__ == "__main__":
    import k0, k1, k1b, k1c, k1d, k2, k3
    build([k1d.gen_k1, k2.gen_k2, k3.gen_k3, k3.gen_k4], 'v5.s')
    build([k1d.gen_k1], 'k1dt.s', True)
    build([k1c.gen_k1, k2.gen_k2, k3.gen_k3, k3.gen_k4], 'v4.s')
    build([k1c.gen_k1], 'k1ct.s', True)
    build([k1b.gen_k1, k2.gen_k2, k3.gen_k3, k3.gen_k4], 'v3.s')
    build([k1b.gen_k1], 'k1bt.s', True)
    build([k0.gen_k0], 'k0.s')
    build([k1.gen_k1, k2.gen_k2, k3.gen_k3, k3.gen_k4], 'v2.s')
    build([k1.gen_k1, k3.gen_k3, k3.gen_k4], "v1.s")
    build([k1.gen_k1, k3.gen_k3, k3.gen_k4], "v1t.s", True)
    build([k3.gen_k3], "k3t.s", True)
```

```python
from asmlib import *
from layout import *
from k1 import ids
import k0

UNIT = 36864
STAT_LDS = 4 * UNIT
BIAS_LDS = STAT_LDS + 4096
K1_LDS = BIAS_LDS + 288 * 4

XN = 88
ACCS = [16, 32]
FR = 48
NFR = 6
TMP = 72
NV = 232

def w2p_gather(a, V, s_wg, s_wave, srd_ws, srd_w2, st):
    su, sk, sg, sx = st, st + 1, st + 2, st + 3
    Rw = "s[%d:%d]" % (srd_ws, srd_ws + 3)
    vA, vS = V + 32, V + 33
    a("s_lshl_b32 s%d, s%d, 8" % (su, s_wave))
    a("s_add_u32 s%d, s%d, s%d" % (su, su, s_wg))
    a("s_mul_hi_u32 s%d, s%d, 0x%x" % (sk, su, (2**32 + 8) // 9))
    a("s_mul_i32 s%d, s%d, 9" % (sg, sk))
    a("s_sub_u32 s%d, s%d, s%d" % (sg, su, sg))
    a("s_mul_i32 s%d, s%d, %d" % (sx, sk, 32 * 1152))
    a("s_lshl_b32 s%d, s%d, 7" % (st + 4, sg))
    a("s_add_u32 s%d, s%d, s%d" % (sx, sx, st + 4))
    a("v_lshrrev_b32 v%d, 5, v1" % vA)
    a("v_lshlrev_b32 v%d, 4, v%d" % (vA, vA))
    a("v_bfe_u32 v%d, v1, 4, 1" % vS)
    a("v_lshl_add_u32 v%d, v%d, 2, v%d" % (vA, vS, vA))
    a("v_mul_u32_u24 v%d, 1152, v%d" % (vA, vA))
    a("v_and_b32 v%d, 15, v1" % vS)
    a("v_lshl_add_u32 v%d, v%d, 1, v%d" % (vA, vS, vA))
    a("v_add_u32 v%d, s%d, v%d" % (vA, sx, vA))
    a("v_add_u32 v%d, %d, v%d" % (V + 34, 8 * 1152, vA))
    for j in range(8):
        for nt in range(4):
            a.vm("buffer_load_ushort v%d, v%d, s[%d:%d], 0 offen offset:%d" % (V + 8 * nt + j, vA if j < 4 else V + 34, srd_w2, srd_w2 + 3, (j & 3) * 1152 + nt * 32), "w2p")
    a("s_mul_i32 s%d, s%d, 36" % (sx, sk))
    a("s_lshl_b32 s%d, s%d, 2" % (sg, sg))
    a("s_add_u32 s%d, s%d, s%d" % (sx, sx, sg))
    a("s_lshl_b32 s%d, s%d, 10" % (sx, sx))
    a("s_add_u32 s%d, s%d, 0x%x" % (sx, sx, W2P_OFF))
    a("s_cmp_lt_u32 s%d, 1296" % su)
    a("s_cselect_b32 s%d, 0, 0x7ff00000" % sg)
    a("v_lshlrev_b32 v%d, 4, v1" % vS)
    a("v_add_u32 v%d, s%d, v%d" % (vS, sg, vS))
    def finish():
        a.vm_wait("w2p")
        for nt in range(4):
            for i in range(4):
                a("v_lshl_or_b32 v%d, v%d, 16, v%d" % (V + 8 * nt + i, V + 8 * nt + 2 * i + 1, V + 8 * nt + 2 * i))
            a.vm("buffer_store_dwordx4 %s, v%d, %s, s%d offen offset:%d" % (v(V + 8 * nt, 4), vS, Rw, sx, nt * 1024))
    return finish

def gen_k1(a, side=True):
    a.kernel_begin("k1_kernel")
    a.vm_reset()
    a("s_cmp_ge_u32 s2, 256")
    a("s_cbranch_scc1 L_k1_end")
    a.stamp()
    a.stamp(True)
    a("s_load_dwordx4 s[20:23], s[0:1], %d" % KA_X)
    a("s_load_dwordx2 s[24:25], s[0:1], %d" % KA_WI)
    a("s_load_dwordx4 s[36:39], s[0:1], %d" % KA_W1)
    a("s_load_dwordx2 s[56:57], s[0:1], %d" % KA_W2)
    a("s_load_dwordx2 s[58:59], s[0:1], %d" % KA_WS)
    ids(a)
    a("s_lshl_b32 s28, s16, 7")
    a("s_lshl_b32 s29, s19, 5")
    a("s_add_u32 s33, s28, s29")
    a("v_and_b32 v11, 31, v1")
    a("v_lshrrev_b32 v14, 5, v1")
    a("s_waitcnt lgkmcnt(0)")
    a.srd(40, 20, S * D * 2)
    a("s_cmp_eq_u32 s26, 1")
    a("s_cbranch_scc1 L_k1_g1")
    ns0 = a.nstamp
    FG = 16
    T = TMP
    def prologue(g):
        OWN = XN + 72 * g
        OTH = XN + 72 * (1 - g)
        a("s_mul_i32 s34, s16, %d" % (128 * 1152))
        a("s_lshl_b32 s29, s18, 6")
        a("v_add_u32 v12, s29, v1")
        a("s_lshl_b32 s29, s18, 10")
        for i in range(18):
            t = 2 + (i & 1)
            a("v_lshrrev_b32 v%d, 4, v12" % t)
            a("v_mul_u32_u24 v%d, 7282, v%d" % (t, t))
            a("v_bfe_u32 v%d, v%d, 16, 3" % (t, t))
            a("v_xor_b32 v%d, v%d, v12" % (t, t))
            a("v_lshlrev_b32 v%d, 4, v%d" % (t, t))
            a("s_add_u32 m0, s29, %d" % (i * 8192))
            a("v_add_u32 v12, 512, v12")
            a.vm("buffer_load_dwordx4 v%d, s[40:43], s34 offen lds" % t, "x")
        a.srd(4, 58, WS_USED)
        a.srd(8, 36, D * F * 2)
        a.srd(12, 38, F * 2)
        a.srd(44, 22, S * 289 * 2)
        a.srd(48, 24, S * 289 * 2)
        a.srd(52, 56, F * D * 2)
        a("v_mov_b32 v15, 0x7ff00000")
        a("s_mul_i32 s29, s17, 288")
        a("v_add_u32 v13, s29, v0")
        a("v_lshlrev_b32 v13, 1, v13")
        a("v_cmp_gt_u32 vcc, 288, v0")
        a("s_nop 1")
        a("v_cndmask_b32 v13, v15, v13, vcc")
        a.vm("buffer_load_ushort v10, v13, s[12:15], 0 offen", "bias")
        a("s_mul_i32 s35, s17, 576")
        a("s_and_b32 s28, s35, 0xffffff80")
        a("s_and_b32 s29, s16, 3")
        a("s_mul_i32 s29, s29, %d" % (144 * 9216))
        a("s_add_u32 s28, s28, s29")
        for rd in range(2):
            a("v_add_u32 v13, %d, v0" % (512 * rd))
            a("v_mul_u32_u24 v12, 13108, v13")
            a("v_lshrrev_b32 v12, 16, v12")
            a("v_mul_u32_u24 v9, 5, v12")
            a("v_sub_u32 v9, v13, v9")
            a("v_mul_u32_u24 v12, 9216, v12")
            a("v_lshl_add_u32 v12, v9, 7, v12")
            a("v_cmp_gt_u32 vcc, 720, v13")
            a("s_nop 1")
            a("v_cndmask_b32 v12, v15, v12, vcc")
            a.vm("buffer_load_dword v%d, v12, s[8:11], s28 offen" % (60 + rd), "pf")
        fin = []
        if side:
            fin.append(k0.job_wt(a, OTH, 2, 4, 44, 48, 20))
            fin.append(w2p_gather(a, OTH + 20, 2, 18, 4, 52, 60 if False else 28))
        a("v_bfe_u32 v15, v1, 2, 3")
        a("v_and_b32 v12, 3, v1")
        a("v_lshlrev_b32 v12, 4, v12")
        a("v_lshl_add_u32 v12, v14, 6, v12")
        a("v_mul_u32_u24 v2, 9216, v15")
        a("v_add_u32 v2, v2, v12")
        a.stamp()
        a("s_mul_i32 s36, s17, 36")
        a("s_lshl_b32 s37, s26, 5")
        a("s_add_u32 s36, s36, s37")
        a("v_add_u32 v%d, s36, v11" % T)
        a("v_lshrrev_b32 v%d, 1, v%d" % (T + 1, T))
        a("v_and_b32 v%d, 1, v%d" % (T + 2, T))
        a("v_mul_u32_u24 v%d, 144, v%d" % (T + 2, T + 2))
        a("v_cmp_eq_u32 vcc, 1, v%d" % T)
        a("v_mov_b32 v%d, 288" % (T + 3))
        a("s_nop 0")
        a("v_cndmask_b32 v%d, v%d, v%d, vcc" % (T + 1, T + 1, T + 3))
        a("v_cndmask_b32 v%d, v%d, 0, vcc" % (T + 2, T + 2))
        a("s_mul_i32 s37, s19, 144")
        a("v_lshlrev_b32 v%d, 3, v14" % (T + 3))
        a("v_add_u32 v%d, s37, v%d" % (T + 3, T + 3))
        a("v_mad_u32_u24 v%d, v%d, v%d, v%d" % (T + 3, T + 3, T + 1, T + 2))
        def mod576(x, t):
            a("v_cvt_f32_u32 v%d, v%d" % (t, x))
            a("v_mul_f32 v%d, 0x%x, v%d" % (t, f32bits(1.0 / 576), t))
            a("v_cvt_u32_f32 v%d, v%d" % (t, t))
            a("v_mul_u32_u24 v%d, 576, v%d" % (t, t))
            a("v_sub_u32 v%d, v%d, v%d" % (x, x, t))
        mod576(T + 3, T + 4)
        a("v_mul_u32_u24 v%d, 9, v%d" % (T + 5, T + 1))
        mod576(T + 5, T + 4)
        rN, rJ, rJ9 = T + 3, T + 1, T + 5
        for i in range(9):
            for j in range(8):
                tv = T + 8 + j
                a("v_cvt_f32_u32 v%d, v%d" % (tv, rN))
                a("v_add_u32 v%d, v%d, v%d" % (rN, rN, rJ if j < 7 else rJ9))
                a("v_mul_f32 v%d, 0x%x, v%d" % (tv, f32bits(1.0 / 576), tv))
                a("v_subrev_u32 v%d, 576, v%d" % (T + 4, rN))
                a("v_cos_f32 v%d, v%d" % (tv, tv))
                a("v_min_u32 v%d, v%d, v%d" % (rN, rN, T + 4))
            a("s_nop 0")
            for k in range(4):
                a("v_cvt_pk_bf16_f32 v%d, v%d, v%d" % (FG + 4 * i + k, T + 8 + 2 * k, T + 8 + 2 * k + 1))
        if side:
            a("s_lshl_b32 s36, s18, 8")
            a("s_add_u32 s36, s36, s2")
            k0.job_finv(a, OWN, 36, 4, 37)
            a("s_sub_u32 s36, s36, 1024")
            k0.job_tab(a, OWN, 36, 4, 37)
        a.stamp()
        a.vm_wait("bias")
        a("v_lshlrev_b32 v10, 16, v10")
        a("v_lshlrev_b32 v13, 2, v0")
        a("v_add_u32 v13, %d, v13" % BIAS_LDS)
        a("v_cmp_gt_u32 vcc, 288, v0")
        a("s_and_saveexec_b64 s[36:37], vcc")
        a("ds_write_b32 v13, v10")
        a("s_mov_b64 exec, s[36:37]")
        a("s_lshl_b32 s36, s19, 5")
        a("v_add_u32 v13, s36, v11")
        a("v_bfe_u32 v12, v13, 1, 3")
        a("v_mul_u32_u24 v15, 1152, v13")
        for q in range(4):
            a("v_add_u32 v%d, %d, v14" % (4 + q, 2 * q))
            a("v_xor_b32 v%d, v%d, v12" % (4 + q, 4 + q))
            a("v_lshl_add_u32 v%d, v%d, 4, v15" % (4 + q, 4 + q))
        a("v_lshlrev_b32 v9, 5, v13")
        a("v_add_u32 v9, %d, v9" % STAT_LDS)
        a("s_lshl_b32 s36, s26, 4")
        a("v_lshl_add_u32 v8, v14, 3, v9")
        a("v_add_u32 v8, s36, v8")
        a.stamp()
        a("s_waitcnt lgkmcnt(0)")
        a("s_barrier")
        a.stamp()
        return fin

    def xaddr(s_):
        return 4 + (s_ & 3), (s_ >> 2) * 128

    def group(g):
        a.nstamp = ns0
        a.vm_reset()
        fin = prologue(g)
        own = range(18 * g, 18 * g + 18)
        oth = range(18 * (1 - g), 18 * (1 - g) + 18)
        for s_ in own:
            r_, off = xaddr(s_)
            a("ds_read_b128 %s, v%d offset:%d" % (v(XN + 4 * s_, 4), r_, off))
        A1, A2 = T, T + 4
        for i in range(8): a("v_mov_b32 v%d, 0" % (T + i))
        a("v_mov_b32 v%d, 0x3f803f80" % (T + 8))
        for n, s_ in enumerate(own):
            a("s_waitcnt lgkmcnt(%d)" % min(15, 17 - n))
            for k in range(4):
                x = XN + 4 * s_ + k
                a("v_dot2c_f32_bf16 v%d, v%d, v%d" % (A1 + k, x, T + 8))
                a("v_dot2c_f32_bf16 v%d, v%d, v%d" % (A2 + k, x, x))
        a("s_nop 2")
        for A in (A1, A2):
            a("v_add_f32 v%d, v%d, v%d" % (A, A, A + 1))
            a("v_add_f32 v%d, v%d, v%d" % (A + 2, A + 2, A + 3))
        a("v_add_f32 v%d, v%d, v%d" % (T + 8, A1, A1 + 2))
        a("v_add_f32 v%d, v%d, v%d" % (T + 9, A2, A2 + 2))
        a.stamp()
        a("ds_write_b64 v8, %s" % v(T + 8, 2))
        a("s_waitcnt lgkmcnt(0)")
        a("s_barrier")
        a("ds_read_b128 %s, v9" % v(T, 4))
        a("ds_read_b128 %s, v9 offset:16" % v(T + 4, 4))
        a("s_waitcnt lgkmcnt(0)")
        a("v_add_f32 v%d, v%d, v%d" % (T, T, T + 2))
        a("v_add_f32 v%d, v%d, v%d" % (T + 4, T + 4, T + 6))
        a("v_add_f32 v%d, v%d, v%d" % (T + 1, T + 1, T + 3))
        a("v_add_f32 v%d, v%d, v%d" % (T + 5, T + 5, T + 7))
        a("v_add_f32 v%d, v%d, v%d" % (T, T, T + 4))
        a("v_add_f32 v%d, v%d, v%d" % (T + 1, T + 1, T + 5))
        a("v_mul_f32 v%d, 0x%x, v%d" % (T, f32bits(1.0 / 576), T))
        a("v_mul_f32 v%d, 0x%x, v%d" % (T + 1, f32bits(1.0 / 576), T + 1))
        a("v_fma_f32 v%d, -v%d, v%d, v%d" % (T + 1, T, T, T + 1))
        a("v_max_f32 v%d, 0, v%d" % (T + 1, T + 1))
        a("v_cvt_pk_bf16_f32 v%d, v%d, v%d" % (T + 2, T, T + 1))
        a("v_lshlrev_b32 v%d, 16, v%d" % (T, T + 2))
        a("v_and_b32 v%d, 0xffff0000, v%d" % (T + 1, T + 2))
        a("v_add_f32 v%d, 0x%x, v%d" % (T + 1, f32bits(1e-5), T + 1))
        a("v_cvt_pk_bf16_f32 v%d, v%d, v%d" % (T + 1, T + 1, T + 1))
        a("v_lshlrev_b32 v%d, 16, v%d" % (T + 1, T + 1))
        a("v_sqrt_f32 v%d, v%d" % (T + 1, T + 1))
        a("s_nop 0")
        a("v_cvt_pk_bf16_f32 v%d, v%d, v%d" % (T + 1, T + 1, T + 1))
        a("v_lshlrev_b32 v%d, 16, v%d" % (T + 1, T + 1))
        a("v_rcp_f32 v%d, v%d" % (T + 1, T + 1))
        a("s_nop 0")
        a("v_mul_f32 v%d, -v%d, v%d" % (T, T, T + 1))
        for s_ in own:
            for k in range(4):
                x = XN + 4 * s_ + k
                t0, t1 = T + 2 + 2 * k, T + 3 + 2 * k
                a("v_lshlrev_b32 v%d, 16, v%d" % (t0, x))
                a("v_and_b32 v%d, 0xffff0000, v%d" % (t1, x))
                a("v_fma_f32 v%d, v%d, v%d, v%d" % (t0, t0, T + 1, T))
                a("v_fma_f32 v%d, v%d, v%d, v%d" % (t1, t1, T + 1, T))
                a("v_cvt_pk_bf16_f32 v%d, v%d, v%d" % (x, t0, t1))
            r_, off = xaddr(s_)
            a("ds_write_b128 v%d, %s offset:%d" % (r_, v(XN + 4 * s_, 4), off))
        a.stamp()
        for f in fin: f()
        a.vm_wait("pf")
        a.stamp()
        a("s_waitcnt lgkmcnt(0)")
        a("s_barrier")
        for s_ in oth:
            r_, off = xaddr(s_)
            a("ds_read_b128 %s, v%d offset:%d" % (v(XN + 4 * s_, 4), r_, off))
        a("v_bfe_u32 v15, v1, 2, 2")
        a("v_lshlrev_b32 v12, 6, v15")
        a("v_bfe_u32 v15, v1, 4, 1")
        a("v_lshl_add_u32 v12, v15, 5, v12")
        a("v_and_b32 v15, 3, v1")
        a("v_lshl_add_u32 v12, v15, 3, v12")
        a("v_lshl_add_u32 v12, v14, 10, v12")
        a("v_add_u32 v12, %d, v12" % (512 * g))
        a("v_lshlrev_b32 v3, 4, v1")
        a("s_waitcnt lgkmcnt(0)")
        a("s_barrier")
        a.stamp()
        a("v_mov_b32 v4, v12")
        a("v_add_u32 v5, 49152, v12")
        a("v_add_u32 v6, 98304, v12")
        a("s_lshr_b32 s36, s19, 1")
        a("s_mul_i32 s36, s36, %d" % UNIT)
        a("s_and_b32 s37, s19, 1")
        a("s_mul_i32 s37, s37, %d" % (9 * 2048))
        a("s_add_u32 s36, s36, s37")
        a("v_add_u32 v13, s36, v3")
        for i in range(9):
            a("ds_write_b128 v13, %s offset:%d" % (v(FG + 4 * i, 4), i * 2048 + g * 1024))
        a("s_lshl_b32 s29, s27, 6")
        a("s_add_u32 s35, s35, s29")
        a("s_mul_i32 s34, s18, %d" % (8 * 9216))
        a("s_add_u32 s35, s35, s34")
        a("s_lshl_b32 s34, s18, 10")
        ndma = 5 if g == 0 else 4
        def dma_list(u):
            pi, kh = (u - 2) >> 1, u & 1
            out = []
            for n in range(ndma):
                off = 128 * pi + (kh * 288 + n * 64) * 9216
                ins = ["s_add_u32 m0, s34, %d" % ((u % 4) * UNIT + n * 8192),
                       "s_add_u32 s30, s%d, %d" % (35 if pi < 4 else 31, off)]
                out.append((ins, "buffer_load_dwordx4 v2, s[8:11], s30 offen lds", "u%d" % u))
            return out
        a("s_mul_i32 s29, s27, 640")
        a("s_sub_u32 s31, s35, s29")
        for u in (2, 3):
            for ins, ld, tag in dma_list(u):
                for x in ins: a(x)
                a.vm(ld, tag)
        a("s_lshr_b32 s29, s33, 4")
        a("v_bfe_u32 v15, v1, 4, 1")
        a("v_add_u32 v15, s29, v15")
        a("s_mov_b32 s29, %d" % (144 * 1024))
        a("v_mul_lo_u32 v7, v15, s29")
        a("v_lshl_add_u32 v7, v14, 8, v7")
        a("v_and_b32 v15, 15, v1")
        a("v_lshl_add_u32 v7, v15, 4, v7")
        a("v_add_u32 v7, 0x%x, v7" % H_OFF)
        a("v_lshlrev_b32 v8, 4, v14")
        a("v_add_u32 v8, %d, v8" % BIAS_LDS)
        c0 = -2.0 * 1.4426950408889634 * 0.7978845608028654
        a("v_mov_b32 v9, 0x%x" % f32bits(c0))
        a("v_mov_b32 v10, 0x%x" % f32bits(c0 * 0.044715))
        a("v_add_u32 v15, %d, v11" % (32 * g))
        a("s_mul_i32 s29, s17, 36")
        a("v_add_u32 v12, s29, v15")
        a("v_lshlrev_b32 v12, 12, v12")
        a("v_lshl_add_u32 v12, v14, 3, v12")
        a("s_lshl_b32 s29, s33, 1")
        a("s_add_u32 s29, s29, 0x%x" % X1_OFF)
        a("v_add_u32 v12, s29, v12")
        a("v_cmp_gt_u32 vcc, 36, v15")
        a("v_mov_b32 v15, 0x7ff00000")
        a("s_nop 1")
        a("v_cndmask_b32 v12, v15, v12, vcc")
        a("v_add_u32 v13, %d, v3" % (1024 * g))
        a("s_mul_i32 s39, s17, 9")
        a("s_waitcnt lgkmcnt(0)")
        a("s_barrier")
        a.stamp()

        def m18(phi):
            p, kh = phi >> 1, phi & 1
            acc = ACCS[p & 1]
            base = (phi % 4) * UNIT
            dft = p == 0
            if not dft and kh == 0:
                sk = 36 + (p & 1)
                pi = p - 1
                a("s_add_u32 s%d, s27, %d" % (sk, 2 * pi + g))
                if pi == 4:
                    a("s_cmp_eq_u32 s27, 1")
                    a("s_cselect_b32 s%d, 0, 8" % sk)
                    a("s_lshl_b32 s29, s27, 9")
                    for r_ in (4, 5, 6): a("v_add_u32 v%d, s29, v%d" % (r_, r_))
                a("s_lshl_b32 s28, s%d, 7" % sk)
                a("v_add_u32 v15, s28, v8")
                for i in range(4):
                    a("ds_read_b128 %s, v15 offset:%d" % (v(acc + 4 * i, 4), 32 * i))
            if dft and kh == 1:
                a("v_add_u32 v13, %d, v13" % UNIT)
            per = 1 if dft else 2
            def rd(st):
                b = FR + 4 * (st % NFR)
                if dft:
                    a("ds_read_b128 %s, v13 offset:%d" % (v(b, 4), st * 2048))
                else:
                    for h in range(2):
                        addr = base + st * 2048 + 256 * h
                        k = addr // 49152
                        a("ds_read_b64_tr_b16 %s, v%d offset:%d" % (v(b + 2 * h, 2), 4 + k, addr - k * 49152))
            for st in range(NFR - 1): rd(st)
            for st in range(18):
                if st + NFR - 1 < 18:
                    rd(st + NFR - 1); out = per * (NFR - 1)
                else:
                    out = per * (17 - st)
                a("s_waitcnt lgkmcnt(%d)" % out)
                b = FR + 4 * (st % NFR)
                x = XN + 4 * (18 * kh + st)
                if dft:
                    c = "0" if (st == 0 and kh == 0) else v(acc, 16)
                    a("v_mfma_f32_32x32x16_bf16 %s, %s, %s, %s" % (v(acc, 16), v(x, 4), v(b, 4), c))
                else:
                    a("v_mfma_f32_32x32x16_bf16 %s, %s, %s, %s" % (v(acc, 16), v(b, 4), v(x, 4), v(acc, 16)))

        def ehalf(p, h2, dmas, pad):
            acc = ACCS[p & 1] + 8 * h2
            ops = []
            TT = T + 8 * (h2 & 1) if False else T
            if p is None or p < 0:
                pass
            elif p == 0:
                for i in range(8): ops.append("v_mul_f32 v%d, 0x%x, v%d" % (acc + i, f32bits(1.0 / 24), acc + i))
                for i in range(4): ops.append("v_cvt_pk_f16_f32 v%d, v%d, v%d" % (T + 8 + 4 * h2 + i, acc + 2 * i, acc + 2 * i + 1))
                for i in range(2): ops.append(("st", "buffer_store_dwordx2 %s, v12, s[4:7], 0 offen offset:%d" % (v(T + 8 + 4 * h2 + 2 * i, 2), 32 * h2 + 16 * i)))
            else:
                for i in range(8): ops.append("v_mul_f32 v%d, v%d, v%d" % (T + i, acc + i, acc + i))
                for i in range(8): ops.append("v_fma_f32 v%d, v%d, v10, v9" % (T + i, T + i))
                for i in range(8): ops.append("v_mul_f32 v%d, v%d, v%d" % (T + i, acc + i, T + i))
                for i in range(8): ops.append("v_exp_f32 v%d, v%d" % (T + i, T + i))
                for i in range(8): ops.append("v_add_f32 v%d, 1.0, v%d" % (T + i, T + i))
                for i in range(8): ops.append("v_rcp_f32 v%d, v%d" % (T + i, T + i))
                for i in range(8): ops.append("v_mul_f32 v%d, v%d, v%d" % (T + i, acc + i, T + i))
                for i in range(4): ops.append("v_cvt_pk_bf16_f32 v%d, v%d, v%d" % (T + 8 + 4 * h2 + i, T + 2 * i, T + 2 * i + 1))
                ops.append("s_add_u32 s28, s39, s%d" % (36 + (p & 1)))
                ops.append("s_lshl_b32 s28, s28, 10")
                ops.append(("st", "buffer_store_dwordx4 %s, v7, s[4:7], s28 offen offset:%d" % (v(T + 8 + 4 * h2, 4), 512 * h2)))
            dm = list(dmas)
            if pad:
                if dm:
                    ins, ld, tag = dm.pop(0)
                    for x in ins: a(x)
                    a.vm(ld, tag)
                    a("s_nop 7"); a("s_nop 1")
                else:
                    a("s_nop 7"); a("s_nop 4")
            step = max(1, len(ops) // (len(dm) + 1)) if dm else 0
            for i, o in enumerate(ops):
                if dm and i % step == 0:
                    ins, ld, tag = dm.pop(0)
                    for x in ins: a(x)
                    a.vm(ld, tag)
                if isinstance(o, tuple): a.vm(o[1], "st")
                else: a(o)
            for ins, ld, tag in dm:
                for x in ins: a(x)
                a.vm(ld, tag)

        for phi in range(12):
            p, kh = phi >> 1, phi & 1
            dmas = dma_list(phi + 3) if 1 <= phi <= 8 else []
            if g == 0:
                m18(phi)
                if kh == 1:
                    ehalf(p, 0, dmas, True)
                    if phi == 11: ehalf(p, 1, [], False)
                else:
                    ehalf(p - 1, 1, dmas, False)
            else:
                ehalf(p - 1, kh, dmas, False)
                if p < 5: m18(phi)
            if phi < 11:
                if phi + 1 >= 2:
                    a.vm_wait("u%d" % (phi + 1))
                a("s_barrier")
            if phi % 4 == 3 or phi == 0: a.stamp()
        a.stamp(True)
        a.stamp_flush(4, STAMP_OFF, 18, NV)
        a("s_endpgm")

    group(0)
    a.label("L_k1_g1")
    group(1)
    a.label("L_k1_end")
    a("s_endpgm")
    return ("k1_kernel", 256, 512, K1_LDS, NV + 2 if a.stamps_on else NV)
```

```python
from asmlib import *
from layout import *
from k1 import ids
import k0

UNIT = 36864
SP = 4 * UNIT
STAT_LDS = SP
SUMX_LDS = SP + 2048
ROWP_LDS = SP + 2560
CSF_LDS = SP + 3072
AUG_LDS = SP + 5120
ZERO_LDS = AUG_LDS + 3456
FLG_LDS = ZERO_LDS + 64
K1_LDS = FLG_LDS + 64

XN = 88
ACCS = [16, 32]
FR = 48
NFR = 6
T = 72
XA = 232
AUGR = 236
EX = 240
NV = 256
OOB = 0x7ff00000
import os
SC = os.environ.get("K1_SC", " sc1")
SCH = os.environ.get("K1_SCH", SC)

def running(a, ops, dmas):
    dm = list(dmas)
    step = max(1, len(ops) // (len(dm) + 1)) if dm else 0
    for i, o in enumerate(ops):
        if dm and i % step == 0:
            ins, ld, tag = dm.pop(0)
            for x in ins: a(x)
            a.vm(ld, tag)
        if isinstance(o, tuple):
            if o[0] == "vm": a.vm(o[1], o[2])
            elif o[0] == "wait": a.vm_wait(o[1])
            elif o[0] == "call": o[1]()
        else: a(o)
    for ins, ld, tag in dm:
        for x in ins: a(x)
        a.vm(ld, tag)

def split3(c, t, w0, w1, last):
    return ["v_cvt_pk_bf16_f32 v%d, v%d, v%d" % (t, c, c),
            "v_lshlrev_b32 v%d, 16, v%d" % (t, t),
            "v_sub_f32 v%d, v%d, v%d" % (t, c, t),
            "v_cvt_pk_bf16_f32 v%d, v%d, v%d" % (w0, c, t),
            "v_and_b32 v%d, 0xffff0000, v%d" % (c, w0),
            "v_sub_f32 v%d, v%d, v%d" % (t, t, c),
            "v_cvt_pk_bf16_f32 v%d, v%d, %s" % (w1, t, last)]

def gen_k1(a, tail=None, name="k1_kernel"):
    a.kernel_begin(name)
    a("s_cmp_ge_u32 s2, 256")
    a("s_cbranch_scc1 L_k1_end")
    a.stamp()
    a.stamp(True)
    a("s_load_dwordx4 s[20:23], s[0:1], %d" % KA_X)
    a("s_load_dwordx2 s[24:25], s[0:1], %d" % KA_WI)
    a("s_load_dwordx4 s[36:39], s[0:1], %d" % KA_W1)
    a("s_load_dwordx2 s[56:57], s[0:1], %d" % KA_W2)
    a("s_load_dwordx4 s[52:55], s[0:1], %d" % KA_DBG)
    ids(a)
    a("s_lshl_b32 s28, s16, 7")
    a("s_lshl_b32 s29, s19, 5")
    a("s_add_u32 s33, s28, s29")
    a("v_and_b32 v11, 31, v1")
    a("v_lshrrev_b32 v14, 5, v1")
    a("v_lshlrev_b32 v3, 4, v1")
    a("v_mov_b32 v15, 0x%x" % OOB)
    a("s_waitcnt lgkmcnt(0)")
    a.srd(40, 20, S * D * 2)
    a("s_cmp_eq_u32 s26, 1")
    a("s_cbranch_scc1 L_k1_g1")
    ns0 = a.nstamp
    FG = 16

    def group(g):
        a.nstamp = ns0
        a.vm_reset()
        a("s_mul_i32 s34, s16, %d" % (128 * 1152))
        a("s_lshl_b32 s29, s18, 6")
        a("v_add_u32 v12, s29, v1")
        a("s_lshl_b32 s29, s18, 10")
        for i in range(18):
            t = 4 + (i & 1)
            a("v_lshrrev_b32 v%d, 4, v12" % t)
            a("v_mul_u32_u24 v%d, 7282, v%d" % (t, t))
            a("v_bfe_u32 v%d, v%d, 16, 3" % (t, t))
            a("v_xor_b32 v%d, v%d, v12" % (t, t))
            a("v_lshlrev_b32 v%d, 4, v%d" % (t, t))
            a("s_add_u32 m0, s29, %d" % (i * 8192))
            a("v_add_u32 v12, 512, v12")
            a.vm("buffer_load_dwordx4 v%d, s[40:43], s34 offen lds" % t, "x")
        a.srd(4, 54, WS_USED)
        a.srd(8, 36, D * F * 2)
        a.srd(12, 38, F * 2)
        a.srd(44, 22, S * 289 * 2)
        a.srd(48, 24, S * 289 * 2)
        a("s_mov_b32 s58, s52"); a("s_mov_b32 s59, s53")
        a.srd(52, 56, F * D * 2)
        a.srd(20, 58, 256)
        CJ = XN
        a("v_mul_u32_u24 v12, 456, v0")
        a("v_lshrrev_b32 v12, 16, v12")
        a("v_mul_u32_u24 v13, 144, v12")
        a("v_sub_u32 v13, v0, v13")
        a("v_mul_u32_u24 v%d, 1152, v12" % (CJ + 13))
        a("v_lshl_add_u32 v%d, v13, 3, v%d" % (CJ + 13, CJ + 13))
        a("s_mov_b32 s29, %d" % (12 * 9216))
        a("v_mul_lo_u32 v12, v12, s29")
        a("v_lshl_add_u32 v12, v13, 2, v12")
        a("v_cmp_gt_u32 vcc, 432, v0")
        a("s_mul_i32 s35, s17, 576")
        a("s_mul_i32 s28, s16, %d" % (36 * 9216))
        a("v_cndmask_b32 v12, v15, v12, vcc")
        a("s_add_u32 s28, s28, s35")
        for i in range(12):
            a.vm("buffer_load_dword v%d, v12, s[8:11], s28 offen" % (CJ + i), "cs")
            if i < 11: a("s_add_u32 s28, s28, 9216")
        a("s_mul_i32 s29, s17, 288")
        a("v_add_u32 v13, s29, v0")
        a("v_lshlrev_b32 v13, 1, v13")
        a("v_cmp_gt_u32 vcc, 288, v0")
        a("s_nop 1")
        a("v_cndmask_b32 v13, v15, v13, vcc")
        a.vm("buffer_load_ushort v255, v13, s[12:15], 0 offen", "bias")
        a("v_bfe_u32 v13, v1, 2, 3")
        a("v_and_b32 v12, 3, v1")
        a("v_lshlrev_b32 v12, 4, v12")
        a("v_lshl_add_u32 v12, v14, 6, v12")
        a("v_mul_u32_u24 v2, 9216, v13")
        a("v_add_u32 v2, v2, v12")
        a.stamp()
        a("s_mul_i32 s36, s17, 36")
        a("v_add_u32 v%d, %d, v11" % (T + 6, 32 * g))
        a("v_add_u32 v%d, s36, v%d" % (T, T + 6))
        a("v_lshrrev_b32 v%d, 1, v%d" % (T + 1, T))
        a("v_and_b32 v%d, 1, v%d" % (T + 2, T))
        a("v_mul_u32_u24 v%d, 144, v%d" % (T + 2, T + 2))
        a("v_cmp_eq_u32 vcc, 1, v%d" % T)
        a("v_mov_b32 v%d, 288" % (T + 3))
        a("s_nop 0")
        a("v_cndmask_b32 v%d, v%d, v%d, vcc" % (T + 1, T + 1, T + 3))
        a("v_cndmask_b32 v%d, v%d, 0, vcc" % (T + 2, T + 2))
        if g == 1:
            a("v_cmp_eq_u32 vcc, 63, v%d" % (T + 6))
            a("s_nop 1")
            a("v_cndmask_b32 v%d, v%d, 0, vcc" % (T + 1, T + 1))
            a("v_cndmask_b32 v%d, v%d, 0, vcc" % (T + 2, T + 2))
        a("s_mul_i32 s37, s19, 144")
        a("v_lshlrev_b32 v%d, 3, v14" % (T + 3))
        a("v_add_u32 v%d, s37, v%d" % (T + 3, T + 3))
        a("v_mad_u32_u24 v%d, v%d, v%d, v%d" % (T + 3, T + 3, T + 1, T + 2))
        def mod576(x, t):
            a("v_cvt_f32_u32 v%d, v%d" % (t, x))
            a("v_mul_f32 v%d, 0x%x, v%d" % (t, f32bits(1.0 / 576), t))
            a("v_cvt_u32_f32 v%d, v%d" % (t, t))
            a("v_mul_u32_u24 v%d, 576, v%d" % (t, t))
            a("v_sub_u32 v%d, v%d, v%d" % (x, x, t))
        mod576(T + 3, T + 4)
        a("v_mul_u32_u24 v%d, 15, v%d" % (T + 5, T + 1))
        mod576(T + 5, T + 4)
        a("v_cvt_f32_u32 v%d, v%d" % (T + 6, T + 1))
        a("v_mul_f32 v%d, 0x%x, v%d" % (T + 6, f32bits(1.0 / 576), T + 6))
        a("v_cos_f32 v%d, v%d" % (T + 6, T + 6))
        a("v_mov_b32 v%d, 0" % (T + 7))
        a("v_add_f32 v%d, v%d, v%d" % (T + 6, T + 6, T + 6))
        a("v_mov_b32 v%d, 0x3f803f80" % (T + 2))
        rN, rJ, rJ15, rC = T + 3, T + 1, T + 5, T + 6
        for i in range(9):
            for j in range(2):
                tv = T + 8 + j
                a("v_cvt_f32_u32 v%d, v%d" % (tv, rN))
                a("v_add_u32 v%d, v%d, v%d" % (rN, rN, rJ if j == 0 else rJ15))
                a("v_mul_f32 v%d, 0x%x, v%d" % (tv, f32bits(1.0 / 576), tv))
                a("v_subrev_u32 v%d, 576, v%d" % (T + 4, rN))
                a("v_cos_f32 v%d, v%d" % (tv, tv))
                a("v_min_u32 v%d, v%d, v%d" % (rN, rN, T + 4))
            for j in range(2, 8):
                a("v_fma_f32 v%d, v%d, v%d, -v%d" % (T + 8 + j, rC, T + 7 + j, T + 6 + j))
                if j % 2 == 1:
                    k = (j - 3) // 2
                    a("v_cvt_pk_bf16_f32 v%d, v%d, v%d" % (FG + 4 * i + k, T + 8 + 2 * k, T + 8 + 2 * k + 1))
            a("v_cvt_pk_bf16_f32 v%d, v%d, v%d" % (FG + 4 * i + 3, T + 14, T + 15))
            for k in range(4):
                a("v_dot2c_f32_bf16 v%d, v%d, v%d" % (T + 7, FG + 4 * i + k, T + 2))
        a("s_lshl_b32 s36, s19, 8")
        a("s_add_u32 s36, s36, %d" % (CSF_LDS + 1024 * g))
        a("v_lshlrev_b32 v12, 2, v1")
        a("v_add_u32 v12, s36, v12")
        a("ds_write_b32 v12, v%d" % (T + 7))
        a("s_lshl_b32 s36, s18, 8")
        a("s_add_u32 s36, s36, s2")
        k0.job_finv(a, XN + 16, 36, 4, 37)
        a("s_sub_u32 s36, s36, 1024")
        k0.job_tab(a, XN + 16, 36, 4, 37)
        a.stamp()
        a.vm_wait("cs")
        a("v_lshlrev_b32 v%d, 16, v%d" % (T, CJ))
        a("v_and_b32 v%d, 0xffff0000, v%d" % (T + 1, CJ))
        for i in range(1, 12):
            a("v_lshlrev_b32 v%d, 16, v%d" % (T + 2 + (i & 1) * 2, CJ + i))
            a("v_and_b32 v%d, 0xffff0000, v%d" % (T + 3 + (i & 1) * 2, CJ + i))
            a("v_add_f32 v%d, v%d, v%d" % (T, T, T + 2 + (i & 1) * 2))
            a("v_add_f32 v%d, v%d, v%d" % (T + 1, T + 1, T + 3 + (i & 1) * 2))
        a("v_cmp_gt_u32 vcc, 432, v0")
        a("s_and_saveexec_b64 s[36:37], vcc")
        a("v_add_u32 v%d, %d, v%d" % (CJ + 13, AUG_LDS, CJ + 13))
        a("ds_write_b64 v%d, %s" % (CJ + 13, v(T, 2)))
        a("s_mov_b64 exec, s[36:37]")
        if g == 0:
            a("v_lshlrev_b32 v12, 2, v0")
            a("v_add_u32 v12, %d, v12" % ZERO_LDS)
            a("v_mov_b32 v13, 0")
            a("v_cmp_gt_u32 vcc, 32, v0")
            a("s_and_saveexec_b64 s[36:37], vcc")
            a("ds_write_b32 v12, v13")
            a("s_mov_b64 exec, s[36:37]")
        a("s_lshl_b32 s36, s19, 5")
        a("v_add_u32 v13, s36, v11")
        a("v_bfe_u32 v12, v13, 1, 3")
        a("v_mul_u32_u24 v10, 1152, v13")
        for q in range(4):
            a("v_add_u32 v%d, %d, v14" % (4 + q, 2 * q))
            a("v_xor_b32 v%d, v%d, v12" % (4 + q, 4 + q))
            a("v_lshl_add_u32 v%d, v%d, 4, v10" % (4 + q, 4 + q))
        a("v_lshlrev_b32 v9, 4, v13")
        a("v_add_u32 v9, %d, v9" % STAT_LDS)
        a("v_lshl_add_u32 v8, v14, 2, v9")
        a("s_waitcnt lgkmcnt(0)")
        a.stamp()
        a("s_barrier")
        a.stamp()
        own = list(range(18 * g, 18 * g + 18)); oth = list(range(18 * (1 - g), 18 * (1 - g) + 18))
        def xrd(s_): a("ds_read_b128 %s, v%d offset:%d" % (v(XN + 4 * s_, 4), 4 + (s_ & 3), (s_ >> 2) * 128))
        if g == 1:
            pub = a.newlabel("nopub")
            a("s_cmp_eq_u32 s18, 7")
            a("s_cbranch_scc0 %s" % pub)
            a("v_lshlrev_b32 v12, 5, v1")
            a("v_add_u32 v13, %d, v12" % AUG_LDS)
            for kk in range(3):
                for hh in range(2):
                    a("ds_read_b128 %s, v13 offset:%d" % (v(XA + 8 * kk + 4 * hh if kk < 2 else T + 4 * hh, 4), kk * 1152 + hh * 16))
            a("s_lshl_b32 s36, s17, 4")
            a("s_add_u32 s36, s36, s16")
            a("s_mul_i32 s36, s36, 1152")
            a("s_add_u32 s36, s36, 0x%x" % CS_OFF)
            a("v_cmp_gt_u32 vcc, 36, v1")
            a("s_nop 1")
            a("v_cndmask_b32 v12, v15, v12, vcc")
            a("s_waitcnt lgkmcnt(0)")
            for i in range(8):
                a("v_add_f32 v%d, v%d, v%d" % (XA + i, XA + i, XA + 8 + i))
                a("v_add_f32 v%d, v%d, v%d" % (XA + i, XA + i, T + i))
            a("buffer_store_dwordx4 %s, v12, s[4:7], s36 offen sc1" % v(XA, 4))
            a("buffer_store_dwordx4 %s, v12, s[4:7], s36 offen offset:16 sc1" % v(XA + 4, 4))
            a.label(pub)
        for s_ in own: xrd(s_)
        for i in range(4): a("v_mov_b32 v%d, 0" % (T + 8 + i))
        for n in range(18):
            xrd(oth[n])
            a("s_waitcnt lgkmcnt(15)")
            for kk in range(4):
                x = XN + 4 * own[n] + kk
                a("v_dot2c_f32_bf16 v%d, v%d, v%d" % (T + 8 + kk, x, x))
        a("s_nop 2")
        a("v_add_f32 v%d, v%d, v%d" % (T + 8, T + 8, T + 9))
        a("v_add_f32 v%d, v%d, v%d" % (T + 10, T + 10, T + 11))
        a("v_add_f32 v%d, v%d, v%d" % (T + 8, T + 8, T + 10))
        a("ds_write_b32 v8, v%d offset:%d" % (T + 8, 8 * g))
        a("v_bfe_u32 v13, v1, 2, 2")
        a("v_lshlrev_b32 v12, 6, v13")
        a("v_bfe_u32 v13, v1, 4, 1")
        a("v_lshl_add_u32 v12, v13, 5, v12")
        a("v_and_b32 v13, 3, v1")
        a("v_lshl_add_u32 v12, v13, 3, v12")
        a("v_lshl_add_u32 v12, v14, 10, v12")
        a("v_add_u32 v12, %d, v12" % (512 * g))
        a("s_waitcnt lgkmcnt(0)")
        a("s_barrier")
        a.stamp()
        a("v_mov_b32 v4, v12")
        a("v_add_u32 v5, 49152, v12")
        a("v_add_u32 v6, 98304, v12")
        a("s_lshr_b32 s36, s19, 1")
        a("s_mul_i32 s36, s36, %d" % UNIT)
        a("s_and_b32 s37, s19, 1")
        a("s_mul_i32 s37, s37, %d" % (9 * 2048))
        a("s_add_u32 s36, s36, s37")
        a("v_add_u32 v13, s36, v3")
        for i in range(9):
            a("ds_write_b128 v13, %s offset:%d" % (v(FG + 4 * i, 4), i * 2048 + g * 1024))
        a("s_lshl_b32 s29, s27, 6")
        a("s_add_u32 s35, s35, s29")
        a("s_mul_i32 s34, s18, %d" % (8 * 9216))
        a("s_add_u32 s35, s35, s34")
        a("s_lshl_b32 s34, s18, 10")
        a("s_mul_i32 s29, s27, 640")
        a("s_sub_u32 s31, s35, s29")
        a("v_add_u32 v13, %d, v3" % (1024 * g))
        a("s_waitcnt lgkmcnt(0)")
        a("s_barrier")
        a.stamp()
        ndma = 5 if g == 0 else 4
        def dma_list(u):
            pi, kh = (u - 2) >> 1, u & 1
            out = []
            for n in range(ndma):
                off = 128 * pi + (kh * 288 + n * 64) * 9216
                ins = ["s_add_u32 m0, s34, %d" % ((u % 4) * UNIT + n * 8192),
                       "s_add_u32 s30, s%d, %d" % (35 if pi < 4 else 31, off)]
                out.append((ins, "buffer_load_dwordx4 v2, s[8:11], s30 offen lds", "u%d" % u))
            return out

        def aug_read(p):
            sk = 36 + (p & 1); pi = p - 1
            ops = ["s_add_u32 s%d, s27, %d" % (sk, 2 * pi + g)]
            if pi == 4:
                ops += ["s_cmp_eq_u32 s27, 1", "s_cselect_b32 s%d, 0, 8" % sk]
            ops += ["s_lshl_b32 s28, s%d, 8" % sk, "v_mov_b32 v15, s28",
                    "v_cndmask_b32 v15, v15, 0, s[24:25]", "v_add_u32 v15, v15, v8",
                    "ds_read_b64 %s, v15" % v(AUGR, 2)]
            return ops

        def m18(phi, aug=False):
            p, kh = phi >> 1, phi & 1
            acc = ACCS[p & 1]
            base = (phi % 4) * UNIT
            dft = p == 0
            if p == 5 and kh == 0:
                a("s_lshl_b32 s29, s27, 9")
                for r_ in (4, 5, 6): a("v_add_u32 v%d, s29, v%d" % (r_, r_))
            if dft and kh == 1:
                a("v_add_u32 v13, %d, v13" % UNIT)
            if aug:
                for o in aug_read(p): a(o)
            per = 1 if dft else 2
            def rd(st):
                b = FR + 4 * (st % NFR)
                if dft:
                    a("ds_read_b128 %s, v13 offset:%d" % (v(b, 4), st * 2048))
                else:
                    for h in range(2):
                        addr = base + st * 2048 + 256 * h
                        k = addr // 49152
                        a("ds_read_b64_tr_b16 %s, v%d offset:%d" % (v(b + 2 * h, 2), 4 + k, addr - k * 49152))
            for st in range(NFR - 1): rd(st)
            for st in range(18):
                if st + NFR - 1 < 18:
                    rd(st + NFR - 1); out = per * (NFR - 1)
                else:
                    out = per * (17 - st)
                a("s_waitcnt lgkmcnt(%d)" % out)
                b = FR + 4 * (st % NFR)
                x = XN + 4 * (18 * kh + st)
                c = "0" if (st == 0 and kh == 0) else v(acc, 16)
                if dft:
                    a("v_mfma_f32_32x32x16_bf16 %s, %s, %s, %s" % (v(acc, 16), v(x, 4), v(b, 4), c))
                else:
                    a("v_mfma_f32_32x32x16_bf16 %s, %s, %s, %s" % (v(acc, 16), v(b, 4), v(x, 4), c))
            if aug:
                a("v_mfma_f32_32x32x16_bf16 %s, %s, %s, %s" % (v(acc, 16), v(AUGR, 4), v(XA, 4), v(acc, 16)))

        def gelu_ops(p, h2):
            acc = ACCS[p & 1] + 8 * h2
            ops = []
            for i in range(8): ops.append("v_mul_f32 v%d, v%d, v%d" % (T + i, acc + i, acc + i))
            for i in range(8): ops.append("v_fma_f32 v%d, v%d, v10, v9" % (T + i, T + i))
            for i in range(8): ops.append("v_mul_f32 v%d, v%d, v%d" % (T + i, acc + i, T + i))
            for i in range(8): ops.append("v_exp_f32 v%d, v%d" % (T + i, T + i))
            for i in range(8): ops.append("v_fma_f32 v%d, v%d, v11, v11" % (T + i, T + i))
            for i in range(8): ops.append("v_rcp_f32 v%d, v%d" % (T + i, T + i))
            for i in range(8): ops.append("v_mul_f32 v%d, v%d, v%d" % (T + i, acc + i, T + i))
            for i in range(4): ops.append("v_cvt_pk_bf16_f32 v%d, v%d, v%d" % (T + 8 + 4 * h2 + i, T + 2 * i, T + 2 * i + 1))
            ops.append("s_add_u32 s28, s39, s%d" % (36 + (p & 1)))
            ops.append("s_lshl_b32 s28, s28, 10")
            ops.append(("vm", "buffer_store_dwordx4 %s, v7, s[4:7], s28 offen offset:%d%s" % (v(T + 8 + 4 * h2, 4), 512 * h2, SCH), "h%d" % p))
            return ops
        def aug_first(p):
            acc = ACCS[p & 1]
            return aug_read(p) + ["s_waitcnt lgkmcnt(0)",
                                  "v_mfma_f32_32x32x16_bf16 %s, %s, %s, %s" % (v(acc, 16), v(AUGR, 4), v(XA, 4), v(acc, 16)),
                                  "s_nop 7", "s_nop 4"]
        PAD = ["s_nop 7", "s_nop 4"]

        w2st = {}
        def slot_side0():
            ops = []
            ops += ["s_and_b32 s56, s2, 31", "s_lshr_b32 s57, s2, 5", "s_lshl_b32 s28, s57, 8", "s_add_u32 s28, s28, s56", "s_mul_i32 s28, s28, 578",
                    "v_lshlrev_b32 v%d, 1, v0" % T, "v_cmp_gt_u32 vcc, 289, v0", "v_lshlrev_b32 v%d, 13, v0" % (T + 1), "s_nop 0",
                    "v_cndmask_b32 v%d, v15, v%d, vcc" % (T, T), "v_cndmask_b32 v%d, v15, v%d, vcc" % (T + 1, T + 1)]
            for e in range(8):
                ops.append(("vm", "buffer_load_ushort v%d, v%d, s[44:47], s28 offen" % (32 + e, T), "wt"))
                ops.append(("vm", "buffer_load_ushort v%d, v%d, s[48:51], s28 offen" % (40 + e, T), "wt"))
                if e < 7: ops.append("s_add_u32 s28, s28, %d" % (32 * 578))
            ops += ["s_lshl_b32 s38, s18, 8", "s_add_u32 s38, s38, s2", "s_mul_hi_u32 s32, s38, 0x%x" % ((2**32 + 8) // 9),
                    "s_mul_i32 s28, s32, 9", "s_sub_u32 s28, s38, s28",
                    "s_mul_i32 s29, s32, %d" % (32 * 1152), "s_lshl_b32 s24, s28, 7", "s_add_u32 s29, s29, s24",
                    "v_lshrrev_b32 v%d, 5, v1" % (T + 2), "v_lshlrev_b32 v%d, 4, v%d" % (T + 2, T + 2), "v_bfe_u32 v%d, v1, 4, 1" % (T + 3),
                    "v_lshl_add_u32 v%d, v%d, 2, v%d" % (T + 2, T + 3, T + 2), "v_mul_u32_u24 v%d, 1152, v%d" % (T + 2, T + 2),
                    "v_and_b32 v%d, 15, v1" % (T + 3), "v_lshl_add_u32 v%d, v%d, 1, v%d" % (T + 2, T + 3, T + 2),
                    "v_add_u32 v%d, s29, v%d" % (T + 2, T + 2), "v_add_u32 v%d, %d, v%d" % (T + 3, 8 * 1152, T + 2),
                    "s_mul_i32 s32, s32, 36", "s_lshl_b32 s28, s28, 2", "s_add_u32 s32, s32, s28", "s_lshl_b32 s32, s32, 10",
                    "s_add_u32 s32, s32, 0x%x" % W2P_OFF, "s_cmp_lt_u32 s38, 1296", "s_cselect_b32 s28, 0, 0x%x" % OOB,
                    "v_add_u32 v%d, s28, v3" % (T + 4)]
            ops += w2p_loads(0)
            return ops
        W2R = [XA, EX + 6]
        def w2p_loads(b):
            ops = []
            for j in range(8):
                for n2 in range(2):
                    nt = 2 * b + n2
                    ops.append(("vm", "buffer_load_ushort v%d, v%d, s[52:55], 0 offen offset:%d" % (W2R[n2] + j, T + 2 if j < 4 else T + 3, (j & 3) * 1152 + nt * 32), "w2p%d" % b))
            return ops
        def w2p_fin(b):
            ops = [("wait", "w2p%d" % b)]
            for n2 in range(2):
                R = W2R[n2]; Dq = T + 8 + 4 * n2
                for i in range(4):
                    ops.append("v_lshl_or_b32 v%d, v%d, 16, v%d" % (Dq + i, R + 2 * i + 1, R + 2 * i))
                ops.append(("vm", "buffer_store_dwordx4 %s, v%d, s[4:7], s32 offen offset:%d%s" % (v(Dq, 4), T + 4, (2 * b + n2) * 1024, SC), "side"))
            return ops
        def slot_side1():
            ops = [("wait", "wt")]
            for e in range(8): ops.append("v_lshl_or_b32 v%d, v%d, 16, v%d" % (32 + e, 40 + e, 32 + e))
            ops += ["s_lshr_b32 s28, s56, 4", "s_lshl_b32 s28, s28, 12", "s_lshr_b32 s29, s57, 1", "s_lshl_b32 s29, s29, 10", "s_add_u32 s28, s28, s29",
                    "s_and_b32 s29, s57, 1", "s_lshl_b32 s29, s29, 9", "s_add_u32 s28, s28, s29", "s_and_b32 s29, s56, 15", "s_lshl_b32 s29, s29, 4",
                    "s_add_u32 s28, s28, s29", "s_add_u32 s28, s28, 0x%x" % WT_OFF]
            ops.append(("vm", "buffer_store_dwordx4 v[32:35], v%d, s[4:7], s28 offen%s" % (T + 1, SC), "side"))
            ops.append(("vm", "buffer_store_dwordx4 v[36:39], v%d, s[4:7], s28 offen offset:256%s" % (T + 1, SC), "side"))
            ops += w2p_fin(0) + ["s_nop 0"] + w2p_loads(1)
            return ops
        def sumx_write():
            a("s_nop 7"); a("s_nop 4")
            a("s_lshl_b32 s28, s19, 7")
            a("v_lshlrev_b32 v15, 4, v14")
            a("v_add_u32 v15, s28, v15")
            a("v_and_b32 v%d, 31, v1" % (T + 5))
            a("v_cmp_eq_u32 vcc, 31, v%d" % (T + 5))
            a("s_and_saveexec_b64 s[28:29], vcc")
            a("v_add_u32 v15, %d, v15" % SUMX_LDS)
            for i in range(4):
                a("ds_write_b128 v15, %s offset:%d" % (v(16 + 4 * i, 4), 32 * i))
            a("s_mov_b64 exec, s[28:29]")
            a("v_mov_b32 v15, 0x%x" % OOB)
            a("s_waitcnt lgkmcnt(0)")
        def slot_params():
            ops = w2p_fin(1)
            P = EX
            ops += ["ds_read_b128 %s, v9" % v(T, 4),
                    "v_lshrrev_b32 v%d, 2, v9" % P, "v_add_u32 v%d, %d, v%d" % (P, SUMX_LDS - STAT_LDS // 4, P),
                    "ds_read_b32 v%d, v%d" % (T + 4, P),
                    "v_lshlrev_b32 v%d, 2, v11" % (P + 1), "v_add_u32 v%d, %d, v%d" % (P + 1, CSF_LDS + 1024 * g, P + 1)]
            for k in range(8): ops.append("ds_read_b32 v%d, v%d offset:%d" % (T + 8 + k, P + 1, 128 * k))
            ops += ["s_waitcnt lgkmcnt(8)",
                    "v_add_f32 v%d, v%d, v%d" % (T, T, T + 1), "v_add_f32 v%d, v%d, v%d" % (T + 2, T + 2, T + 3), "v_add_f32 v%d, v%d, v%d" % (T + 1, T, T + 2),
                    "v_mul_f32 v%d, 0x%x, v%d" % (T, f32bits(1.0 / 576), T + 4),
                    "v_mul_f32 v%d, 0x%x, v%d" % (T + 1, f32bits(1.0 / 576), T + 1),
                    "v_fma_f32 v%d, -v%d, v%d, v%d" % (T + 1, T, T, T + 1),
                    "v_max_f32 v%d, 0, v%d" % (T + 1, T + 1),
                    "v_cvt_pk_bf16_f32 v%d, -v%d, v%d" % (T + 2, T, T + 1),
                    "v_and_b32 v%d, 0xffff0000, v%d" % (T + 1, T + 2),
                    "v_add_f32 v%d, 0x%x, v%d" % (T + 1, f32bits(1e-5), T + 1),
                    "v_cvt_pk_bf16_f32 v%d, v%d, v%d" % (T + 1, T + 1, T + 1),
                    "v_lshlrev_b32 v%d, 16, v%d" % (T + 1, T + 1),
                    "v_sqrt_f32 v%d, v%d" % (T + 1, T + 1), "s_nop 0",
                    "v_cvt_pk_bf16_f32 v%d, v%d, v%d" % (T + 1, T + 1, T + 1),
                    "v_and_b32 v%d, 0xffff, v%d" % (T + 2, T + 2),
                    "v_lshl_or_b32 v%d, v%d, 16, v%d" % (XA, T + 2, T + 2),
                    "v_and_b32 v11, 0xffff0000, v%d" % (T + 1),
                    "v_or_b32 v%d, v11, v%d" % (XA + 1, T + 2),
                    "v_cmp_eq_u32 s[24:25], 1, v14",
                    "v_rcp_f32 v%d, v11" % T,
                    "v_mov_b32 v%d, 0" % (XA + 2), "v_mov_b32 v%d, 0" % (XA + 3), "v_mov_b32 v%d, 0" % (AUGR + 2), "v_mov_b32 v%d, 0" % (AUGR + 3),
                    "v_cndmask_b32 v%d, v%d, 0, s[24:25]" % (XA, XA), "v_cndmask_b32 v%d, v%d, 0, s[24:25]" % (XA + 1, XA + 1),
                    "v_mul_f32 v%d, 0x%x, v%d" % (T + 1, f32bits(1.0 / 24), T),
                    "ds_write_b32 v%d, v%d offset:512" % (P, T + 1),
                    "v_mul_f32 v9, 0x%x, v%d" % (f32bits(C0), T),
                    "v_mul_f32 v10, v%d, v%d" % (T, T), "v_mul_f32 v10, v10, v%d" % T, "v_mul_f32 v10, 0x%x, v10" % f32bits(C0 * 0.044715),
                    "s_waitcnt lgkmcnt(1)"]
            for k in range(1, 8): ops.append("v_add_f32 v%d, v%d, v%d" % (T + 8, T + 8, T + 8 + k))
            ops += split3(T + 8, T + 9, AUGR, AUGR + 1, "0")
            ops += ["v_cndmask_b32 v%d, v%d, 0, s[24:25]" % (AUGR, AUGR), "v_cndmask_b32 v%d, v%d, 0, s[24:25]" % (AUGR + 1, AUGR + 1)]
            ops += ["v_and_b32 v8, 31, v1", "v_lshlrev_b32 v8, 3, v8", "v_add_u32 v8, %d, v8" % AUG_LDS, "v_mov_b32 v%d, %d" % (T, ZERO_LDS),
                    "v_cndmask_b32 v8, v8, v%d, s[24:25]" % T]
            ops += ["v_lshlrev_b32 v%d, 2, v0" % T, "v_cmp_gt_u32 vcc, 288, v0", "s_mul_i32 s28, s17, %d" % (16 * 1152), "s_add_u32 s28, s28, 0x%x" % CS_OFF,
                    "v_cndmask_b32 v%d, v15, v%d, vcc" % (T, T)]
            for k in range(16):
                dst = (EX + k) if k < 15 else T + 1
                ops.append(("vm", "buffer_load_dword v%d, v%d, s[4:7], s28 offen offset:%d sc1" % (dst, T, (k % 3) * 1152), "csl"))
                if k % 3 == 2: ops.append("s_add_u32 s28, s28, 3456")
            return ops
        def cs_poll():
            lp = a.newlabel("cspoll")
            a("s_lshl_b32 s28, s17, 2")
            a("v_mov_b32 v%d, s28" % T)
            a.label(lp)
            a("buffer_load_dword v%d, v%d, s[20:23], 0 offen sc1" % (T + 1, T))
            a("s_waitcnt vmcnt(0)")
            a("v_readfirstlane_b32 s28, v%d" % (T + 1))
            a("s_cmp_ge_u32 s28, 16")
            a("s_cbranch_scc0 %s" % lp)
        def cs_flag():
            pub = a.newlabel("noflag")
            a("s_cmp_eq_u32 s18, 7")
            a("s_cbranch_scc0 %s" % pub)
            a("v_mov_b32 v%d, 1" % (T + 1))
            a("s_lshl_b32 s28, s17, 2")
            a("v_mov_b32 v%d, s28" % T)
            a("s_waitcnt vmcnt(0)")
            a("s_mov_b64 s[28:29], exec")
            a("s_mov_b64 exec, 1")
            a("buffer_atomic_add v%d, v%d, s[20:23], 0 offen" % (T + 1, T))
            a("s_mov_b64 exec, s[28:29]")
            a("s_nop 1")
            a.label(pub)
        def slot_dft():
            acc = ACCS[0]
            ops = ["v_mfma_f32_32x32x16_bf16 %s, %s, %s, %s" % (v(acc, 16), v(XA, 4), v(AUGR, 4), v(acc, 16)),
                   "s_lshl_b32 s28, s19, 7", "v_lshlrev_b32 v%d, 4, v14" % T, "v_add_u32 v%d, s28, v%d" % (T, T), "v_add_u32 v%d, %d, v%d" % (T, ROWP_LDS, T),
                   ("wait", "csl")]
            for k in range(1, 15): ops.append("v_add_f32 v%d, v%d, v%d" % (EX, EX, EX + k))
            ops.append("v_add_f32 v%d, v%d, v%d" % (EX, EX, T + 1))
            ops.append("v_lshlrev_b32 v255, 16, v255")
            ops += split3(EX, EX + 1, EX + 2, EX + 3, "v255")
            ops += ["v_lshlrev_b32 v%d, 3, v0" % (EX + 4), "v_add_u32 v%d, %d, v%d" % (EX + 4, AUG_LDS, EX + 4), "v_cmp_gt_u32 vcc, 288, v0",
                    "s_and_saveexec_b64 s[28:29], vcc", "ds_write_b64 v%d, %s" % (EX + 4, v(EX + 2, 2)), "s_mov_b64 exec, s[28:29]"]
            for i in range(4): ops.append("ds_read_b128 %s, v%d offset:%d" % (v(EX + 4 * i if i < 3 else T + 4, 4), T, 32 * i))
            ops.append("s_waitcnt lgkmcnt(0)")
            for i in range(16):
                sc = (EX + i) if i < 12 else T + 4 + (i - 12)
                ops.append("v_mul_f32 v%d, v%d, v%d" % (acc + i, acc + i, sc))
            for i in range(8): ops.append("v_cvt_pk_f16_f32 v%d, v%d, v%d" % (T + 8 + i, acc + 2 * i, acc + 2 * i + 1))
            for i in range(4): ops.append(("vm", "buffer_store_dwordx2 %s, v12, s[4:7], 0 offen offset:%d%s" % (v(T + 8 + 2 * i, 2), 16 * i, SC), "side"))
            return ops
        C0 = -2.0 * 1.4426950408889634 * 0.7978845608028654
        addr_ops = ["s_lshr_b32 s29, s33, 4", "v_bfe_u32 v%d, v1, 4, 1" % T, "v_add_u32 v%d, s29, v%d" % (T, T), "s_mov_b32 s29, %d" % (144 * 1024),
                    "v_mul_lo_u32 v7, v%d, s29" % T, "v_lshl_add_u32 v7, v14, 8, v7", "v_and_b32 v%d, 15, v1" % T, "v_lshl_add_u32 v7, v%d, 4, v7" % T,
                    "v_add_u32 v7, 0x%x, v7" % H_OFF,
                    "v_add_u32 v%d, %d, v11" % (T, 32 * g), "s_mul_i32 s29, s17, 36", "v_add_u32 v12, s29, v%d" % T, "v_lshlrev_b32 v12, 12, v12",
                    "v_lshl_add_u32 v12, v14, 3, v12", "s_lshl_b32 s29, s33, 1", "s_add_u32 s29, s29, 0x%x" % X1_OFF, "v_add_u32 v12, s29, v12",
                    "v_cmp_gt_u32 vcc, 36, v%d" % T, "s_mul_i32 s39, s17, 9", "s_nop 0", "v_cndmask_b32 v12, v15, v12, vcc"]

        def slot(phi):
            if phi == 0: return addr_ops + slot_side0()
            if phi == 1: return slot_side1()
            if phi == 2: return slot_params()
            if phi == 3: return slot_dft()
            if g == 0:
                if phi == 4: return aug_first(1) + gelu_ops(1, 0) + gelu_ops(1, 1)
                p = phi >> 1
                if phi & 1: return PAD + gelu_ops(p, 0) + (gelu_ops(p, 1) if phi == 11 else [])
                return gelu_ops(p - 1, 1)
            p = (phi >> 1) - 1
            if phi & 1: return gelu_ops(p, 1)
            return aug_first(p) + gelu_ops(p, 0)

        for phi in range(12):
            p, kh = phi >> 1, phi & 1
            dmas = dma_list(phi + 3) if 1 <= phi <= 8 else (dma_list(2) + dma_list(3) if phi == 0 else [])
            if g == 0:
                if phi == 0:
                    running(a, [], dmas); dmas = []
                m18(phi, aug=(kh == 1 and p >= 2))
                if phi == 2: cs_poll()
                running(a, slot(phi), dmas)
            else:
                if phi == 0: cs_flag()
                if phi == 2: cs_poll()
                running(a, slot(phi), dmas)
                if p < 5: m18(phi)
                if phi == 1: sumx_write()
            if phi < 10:
                if phi + 1 >= 2:
                    a.vm_wait("u%d" % (phi + 1 if phi < 9 else 11), " lgkmcnt(0)")
                else:
                    a("s_waitcnt lgkmcnt(0)")
                a("s_barrier")
            if phi % 2 == 1 or phi in (0, 2): a.stamp()
        if tail: tail(a, g)
        a.stamp(True)
        a.stamp_flush(4, STAMP_OFF, 18, T)
        a("s_endpgm")

    group(0)
    a.label("L_k1_g1")
    group(1)
    a.label("L_k1_end")
    a("s_endpgm")
    return (name, 256, 512, K1_LDS, NV)
```

```python
import os
from asmlib import *
from layout import *
from k1 import ids
import k0

UNIT = 36864
SP = 4 * UNIT
ROWP_LDS = SP
AUG_LDS = SP + 512
ZERO_LDS = AUG_LDS + 3456
FLG_LDS = ZERO_LDS + 64
STAT_LDS = SP + 4096
CSF_LDS = SP + 8192
XT_LDS = STAT_LDS
K1_LDS = XT_LDS + 36 * 272
SCR = 3 * UNIT
WTS = SCR + 24576

XN = 88
ACCS = [16, 32]
FR = 48
NFR = 6
T = 72
XA = 232
AUGR = 236
EX = 240
NV = 256
OOB = 0x7ff00000
SC = os.environ.get("K1_SC", " sc1")
C0 = -2.0 * 1.4426950408889634 * 0.7978845608028654

def emit_op(a, o):
    if isinstance(o, str): a(o)
    elif o[0] == "vm": a.vm(o[1], o[2])
    elif o[0] == "ds": a.ds(o[1], o[2])
    elif o[0] == "vwait": a.vm_wait(o[1])
    elif o[0] == "lwait": a.lg_wait(o[1])
    elif o[0] == "call": o[1]()
    elif o[0] == "cond":
        lab = a.newlabel("skip")
        a(o[1]); a("s_cbranch_scc0 %s" % lab)
        for x in o[2]: a(x)
        a.label(lab)
        if o[3]: a.vm_mark(o[3])
    elif o[0] == "mwait": a.vm_wait_mark(o[1])
    elif o[0] == "grp":
        for x in o[1]: emit_op(a, x)
    else: raise ValueError(o)

def split3(c, t, w0, w1, last):
    return ["v_cvt_pk_bf16_f32 v%d, v%d, v%d" % (t, c, c),
            "v_lshlrev_b32 v%d, 16, v%d" % (t, t),
            "v_sub_f32 v%d, v%d, v%d" % (t, c, t),
            "v_cvt_pk_bf16_f32 v%d, v%d, v%d" % (w0, c, t),
            "v_and_b32 v%d, 0xffff0000, v%d" % (c, w0),
            "v_sub_f32 v%d, v%d, v%d" % (t, t, c),
            "v_cvt_pk_bf16_f32 v%d, v%d, %s" % (w1, t, last)]

def gen_k1(a, hooks=None, name="k1_kernel"):
    a.kernel_begin(name)
    a("s_cmp_ge_u32 s2, 256")
    a("s_cbranch_scc1 L_k1_end")
    a.lg_reset()
    a.stamp()
    a.stamp(True)
    a("s_load_dwordx4 s[20:23], s[0:1], %d" % KA_X)
    a("s_load_dwordx2 s[24:25], s[0:1], %d" % KA_WI)
    a("s_load_dwordx4 s[36:39], s[0:1], %d" % KA_W1)
    a("s_load_dwordx2 s[56:57], s[0:1], %d" % KA_W2)
    a("s_load_dwordx4 s[52:55], s[0:1], %d" % KA_DBG)
    ids(a)
    a("s_lshl_b32 s28, s16, 7")
    a("s_lshl_b32 s29, s19, 5")
    a("s_add_u32 s33, s28, s29")
    a("v_and_b32 v11, 31, v1")
    a("v_lshrrev_b32 v14, 5, v1")
    a("v_lshlrev_b32 v3, 4, v1")
    a("v_mov_b32 v15, 0x%x" % OOB)
    a("s_lshl_b32 s34, s16, 3")
    a("s_add_u32 s34, s34, s18")
    a("s_mul_i32 s34, s34, %d" % (16 * 1152))
    a("s_mul_i32 s3, s18, %d" % (18 * 1024))
    a("v_lshrrev_b32 v4, 3, v1")
    a("v_lshrrev_b32 v5, 1, v4")
    a("v_and_b32 v6, 7, v1")
    a("v_xor_b32 v5, v5, v6")
    a("v_mul_u32_u24 v4, 1152, v4")
    a("v_lshl_add_u32 v8, v5, 4, v4")
    a("v_xor_b32 v9, 64, v8")
    a("s_waitcnt lgkmcnt(0)")
    a.srd(40, 20, S * D * 2)
    a.vm_reset()
    def xdma(i):
        return ["s_add_u32 m0, s3, %d" % (i * 1024), "s_add_u32 s30, s34, %d" % ((i // 9) * 9216 + (i % 9) * 128),
                ("vm", "buffer_load_dwordx4 v%d, s[40:43], s30 offen lds" % (8 + i // 9), "x")]
    a.srd(8, 36, D * F * 2)
    a("s_mul_i32 s35, s17, 576")
    CJ = XN + 40
    nocs = a.newlabel("nocs")
    a("s_cmp_lt_u32 s18, 6")
    a("s_cbranch_scc1 %s" % nocs)
    a("v_subrev_u32 v4, 384, v0")
    a("v_mul_u32_u24 v12, 1821, v4")
    a("v_lshrrev_b32 v12, 16, v12")
    a("v_mul_u32_u24 v13, 36, v12")
    a("v_sub_u32 v13, v4, v13")
    a("v_mul_u32_u24 v%d, 1152, v12" % (CJ + 48))
    a("v_lshl_add_u32 v%d, v13, 5, v%d" % (CJ + 48, CJ + 48))
    a("v_add_u32 v%d, %d, v%d" % (CJ + 48, AUG_LDS, CJ + 48))
    a("s_mov_b32 s29, %d" % (12 * 9216))
    a("v_mul_lo_u32 v12, v12, s29")
    a("v_lshl_add_u32 v12, v13, 4, v12")
    a("v_cmp_gt_u32 vcc, 108, v4")
    a("s_mul_i32 s28, s16, %d" % (36 * 9216))
    a("s_add_u32 s28, s28, s35")
    a("v_cndmask_b32 v12, v15, v12, vcc")
    for i in range(12):
        a("buffer_load_dwordx4 %s, v12, s[8:11], s28 offen" % v(CJ + 4 * i, 4))
        if i < 11: a("s_add_u32 s28, s28, 9216")
    a.label(nocs)
    NX0 = 6
    for i in range(NX0):
        for o in xdma(i): emit_op(a, o)
    a.srd(4, 54, WS_USED)
    a.srd(12, 38, F * 2)
    a.srd(44, 22, S * 289 * 2)
    a.srd(48, 24, S * 289 * 2)
    a("s_mov_b32 s58, s52"); a("s_mov_b32 s59, s53")
    a.srd(52, 56, F * D * 2)
    a.srd(20, 58, 256)
    if hooks: hooks.start(a)
    a("v_bfe_u32 v13, v1, 2, 3")
    a("v_and_b32 v12, 3, v1")
    a("v_lshlrev_b32 v12, 4, v12")
    a("v_lshl_add_u32 v12, v14, 6, v12")
    a("v_mul_u32_u24 v2, 9216, v13")
    a("v_add_u32 v2, v2, v12")
    a("v_cmp_eq_u32 s[24:25], 1, v14")
    a("s_cmp_eq_u32 s26, 1")
    a("s_cbranch_scc1 L_k1_g1")
    ns0 = a.nstamp
    vm0 = list(a.vmq)
    FG = 16

    def group(g):
        a.nstamp = ns0
        a.vmq = list(vm0)
        a.lg_reset()
        a("s_mul_i32 s36, s17, 36")
        a("s_add_u32 s36, s36, %d" % (32 * g))
        a("v_add_u32 v%d, s36, v11" % T)
        a("v_lshrrev_b32 v%d, 1, v%d" % (T + 1, T))
        a("v_and_b32 v%d, 1, v%d" % (T + 2, T))
        a("v_mul_u32_u24 v%d, 144, v%d" % (T + 2, T + 2))
        a("v_cmp_eq_u32 vcc, 1, v%d" % T)
        a("v_mov_b32 v%d, 288" % (T + 3))
        a("s_nop 0")
        a("v_cndmask_b32 v%d, v%d, v%d, vcc" % (T + 1, T + 1, T + 3))
        a("v_cndmask_b32 v%d, v%d, 0, vcc" % (T + 2, T + 2))
        a("s_mul_i32 s37, s19, 144")
        a("v_lshlrev_b32 v%d, 3, v14" % (T + 3))
        a("v_add_u32 v%d, s37, v%d" % (T + 3, T + 3))
        a("v_mad_u32_u24 v%d, v%d, v%d, v%d" % (T + 3, T + 3, T + 1, T + 2))
        def mod576(x, t):
            a("v_cvt_f32_u32 v%d, v%d" % (t, x))
            a("v_mul_f32 v%d, 0x%x, v%d" % (t, f32bits(1.0 / 576), t))
            a("v_cvt_u32_f32 v%d, v%d" % (t, t))
            a("v_mul_u32_u24 v%d, 576, v%d" % (t, t))
            a("v_sub_u32 v%d, v%d, v%d" % (x, x, t))
        mod576(T + 3, T + 4)
        a("v_mul_u32_u24 v%d, 15, v%d" % (T + 5, T + 1))
        mod576(T + 5, T + 4)
        a("v_cvt_f32_u32 v%d, v%d" % (T + 6, T + 1))
        a("v_mul_f32 v%d, 0x%x, v%d" % (T + 6, f32bits(1.0 / 576), T + 6))
        a("v_cos_f32 v%d, v%d" % (T + 6, T + 6))
        a("v_mov_b32 v%d, 0" % (T + 7))
        a("v_add_f32 v%d, v%d, v%d" % (T + 6, T + 6, T + 6))
        a("v_mov_b32 v%d, 0x3f803f80" % (T + 2))
        rN, rJ, rJ15, rC = T + 3, T + 1, T + 5, T + 6
        for i in range(9):
            for j in range(2):
                tv = T + 8 + j
                a("v_cvt_f32_u32 v%d, v%d" % (tv, rN))
                a("v_add_u32 v%d, v%d, v%d" % (rN, rN, rJ if j == 0 else rJ15))
                a("v_mul_f32 v%d, 0x%x, v%d" % (tv, f32bits(1.0 / 576), tv))
                a("v_subrev_u32 v%d, 576, v%d" % (T + 4, rN))
                a("v_cos_f32 v%d, v%d" % (tv, tv))
                a("v_min_u32 v%d, v%d, v%d" % (rN, rN, T + 4))
            for j in range(2, 8):
                a("v_fma_f32 v%d, v%d, v%d, -v%d" % (T + 8 + j, rC, T + 7 + j, T + 6 + j))
                if j % 2 == 1:
                    k = (j - 3) // 2
                    a("v_cvt_pk_bf16_f32 v%d, v%d, v%d" % (FG + 4 * i + k, T + 8 + 2 * k, T + 8 + 2 * k + 1))
            a("v_cvt_pk_bf16_f32 v%d, v%d, v%d" % (FG + 4 * i + 3, T + 14, T + 15))
            for k in range(4):
                a("v_dot2c_f32_bf16 v%d, v%d, v%d" % (T + 7, FG + 4 * i + k, T + 2))
            for xi in range(NX0 + (12 * i) // 9, NX0 + (12 * (i + 1)) // 9):
                for o in xdma(xi): emit_op(a, o)
        a("s_lshl_b32 s36, s19, 8")
        a("s_add_u32 s36, s36, %d" % (CSF_LDS + 1024 * g))
        a("v_lshlrev_b32 v12, 2, v1")
        a("v_add_u32 v12, s36, v12")
        a("ds_write_b32 v12, v%d" % (T + 7))
        a("s_lshl_b32 s36, s18, 8")
        a("s_add_u32 s36, s36, s2")
        if g == 0:
            a("v_lshlrev_b32 v12, 2, v0")
            a("v_add_u32 v12, %d, v12" % ZERO_LDS)
            a("v_mov_b32 v13, 0")
            a("v_cmp_gt_u32 vcc, 32, v0")
            a("s_and_saveexec_b64 s[36:37], vcc")
            a("ds_write_b32 v12, v13")
            a("s_mov_b64 exec, s[36:37]")
        else:
            a("s_sub_u32 s36, s36, 1024")
            k0.job_tab(a, XN + 16, 36, 4, 37)
            nocs = a.newlabel("nocs2")
            a("s_cmp_lt_u32 s18, 6")
            a("s_cbranch_scc1 %s" % nocs)
            a("s_waitcnt vmcnt(%d)" % len(a.vmq))
            for k in range(4):
                a("v_lshlrev_b32 v%d, 16, v%d" % (T + 2 * k, CJ + k))
                a("v_and_b32 v%d, 0xffff0000, v%d" % (T + 2 * k + 1, CJ + k))
            for i in range(1, 12):
                for k in range(4):
                    a("v_lshlrev_b32 v%d, 16, v%d" % (T + 8 + 2 * k, CJ + 4 * i + k))
                    a("v_and_b32 v%d, 0xffff0000, v%d" % (T + 9 + 2 * k, CJ + 4 * i + k))
                for k in range(8):
                    a("v_add_f32 v%d, v%d, v%d" % (T + k, T + k, T + 8 + k))
            a("v_cmp_gt_u32 vcc, 492, v0")
            a("s_and_saveexec_b64 s[36:37], vcc")
            a("ds_write_b128 v%d, %s" % (CJ + 48, v(T, 4)))
            a("ds_write_b128 v%d, %s offset:16" % (CJ + 48, v(T + 4, 4)))
            a("s_mov_b64 exec, s[36:37]")
            a.label(nocs)
        for o in ["s_lshl_b32 s38, s18, 12", "s_add_u32 s38, s38, %d" % SCR,
                  "s_lshl_b32 s56, s18, 8", "s_add_u32 s56, s56, s2",
                  "s_mul_hi_u32 s32, s56, 0x%x" % ((2**32 + 8) // 9), "s_mul_i32 s28, s32, 9", "s_sub_u32 s28, s56, s28",
                  "s_mul_i32 s3, s32, %d" % (32 * 1152), "s_lshl_b32 s57, s28, 7", "s_add_u32 s3, s3, s57",
                  "v_lshrrev_b32 v4, 3, v1", "v_mul_u32_u24 v4, 1152, v4", "v_and_b32 v5, 7, v1",
                  "v_lshl_add_u32 v%d, v5, 4, v4" % (EX + 8),
                  "s_mul_i32 s32, s32, 36", "s_lshl_b32 s28, s28, 2", "s_add_u32 s32, s32, s28", "s_lshl_b32 s32, s32, 10",
                  "s_add_u32 s32, s32, 0x%x" % W2P_OFF,
                  "s_mov_b32 s100, s56",
                  "s_and_b32 s56, s2, 31", "s_lshr_b32 s57, s2, 5",
                  "s_lshr_b32 s28, s56, 4", "s_lshl_b32 s28, s28, 4", "s_and_b32 s36, s56, 15", "s_lshl_b32 s36, s36, 7", "s_add_u32 s28, s28, s36",
                  "s_mul_i32 s28, s28, 578", "s_mul_i32 s36, s57, 72", "s_add_u32 s28, s28, s36",
                  "v_mul_u32_u24 v4, 13108, v0", "v_lshrrev_b32 v4, 16, v4",
                  "v_mul_u32_u24 v5, 5, v4", "v_sub_u32 v5, v0, v5",
                  "v_lshrrev_b32 v6, 4, v4", "v_lshlrev_b32 v6, 5, v6", "v_and_b32 v7, 15, v4",
                  "v_add_u32 v6, v6, v7", "v_mul_u32_u24 v6, 578, v6",
                  "v_lshl_add_u32 v6, v5, 4, v6", "v_and_b32 v4, 1, v4", "v_lshlrev_b32 v4, 1, v4",
                  "v_sub_u32 v6, v6, v4", "v_add_u32 v%d, s28, v6" % (EX + 9),
                  "s_mul_i32 s57, s57, %d" % (36 * 8192), "s_lshl_b32 s56, s56, 8",
                  "s_add_u32 s56, s56, s57", "s_add_u32 s56, s56, 0x%x" % WT_OFF]:
            a(o)
        a("s_lshl_b32 s36, s19, 5")
        a("v_add_u32 v13, s36, v11")
        a("v_bfe_u32 v12, v13, 1, 3")
        a("v_lshrrev_b32 v10, 3, v13")
        a("v_mul_u32_u24 v10, 9216, v10")
        a("v_and_b32 v9, 7, v13")
        a("v_lshl_add_u32 v10, v9, 7, v10")
        for q in range(4):
            a("v_add_u32 v%d, %d, v14" % (4 + q, 2 * q))
            a("v_xor_b32 v%d, v%d, v12" % (4 + q, 4 + q))
            a("v_lshl_add_u32 v%d, v%d, 4, v10" % (4 + q, 4 + q))
        a("v_lshlrev_b32 v9, 5, v13")
        a("v_add_u32 v9, %d, v9" % STAT_LDS)
        a("v_lshl_add_u32 v8, v14, 3, v9")
        a.vm_wait("x", " lgkmcnt(0)")
        a("s_barrier")
        a.stamp()
        own = list(range(18 * g, 18 * g + 18)); oth = list(range(18 * (1 - g), 18 * (1 - g) + 18))
        def xrd(s_): a("ds_read_b128 %s, v%d offset:%d" % (v(XN + 4 * s_, 4), 4 + (s_ & 3), (s_ >> 2) * 1024))
        if g == 1:
            pub = a.newlabel("nopub")
            a("s_cmp_eq_u32 s18, 7")
            a("s_cbranch_scc0 %s" % pub)
            a("v_lshlrev_b32 v12, 5, v1")
            a("v_add_u32 v13, %d, v12" % AUG_LDS)
            for kk in range(3):
                for hh in range(2):
                    a("ds_read_b128 %s, v13 offset:%d" % (v(XA + 8 * kk + 4 * hh if kk < 2 else T + 4 * hh, 4), kk * 1152 + hh * 16))
            a("s_lshl_b32 s36, s17, 4")
            a("s_add_u32 s36, s36, s16")
            a("s_mul_i32 s36, s36, 1152")
            a("s_add_u32 s36, s36, 0x%x" % CS_OFF)
            a("v_cmp_gt_u32 vcc, 36, v1")
            a("s_nop 1")
            a("v_cndmask_b32 v12, v15, v12, vcc")
            a("s_waitcnt lgkmcnt(0)")
            for i in range(8):
                a("v_add_f32 v%d, v%d, v%d" % (XA + i, XA + i, XA + 8 + i))
                a("v_add_f32 v%d, v%d, v%d" % (XA + i, XA + i, T + i))
            a("buffer_store_dwordx4 %s, v12, s[4:7], s36 offen sc1" % v(XA, 4))
            a("buffer_store_dwordx4 %s, v12, s[4:7], s36 offen offset:16 sc1" % v(XA + 4, 4))
            a.label(pub)
        csmark = len(a.vmq)
        for s_ in own: xrd(s_)
        for i in range(8): a("v_mov_b32 v%d, 0" % (T + 8 + i))
        a("v_mov_b32 v%d, 0x3f803f80" % (T + 7))
        for n in range(18):
            xrd(oth[n])
            a("s_waitcnt lgkmcnt(15)")
            for kk in range(4):
                x = XN + 4 * own[n] + kk
                a("v_dot2c_f32_bf16 v%d, v%d, v%d" % (T + 8 + kk, x, T + 7))
                a("v_dot2c_f32_bf16 v%d, v%d, v%d" % (T + 12 + kk, x, x))
        a("s_nop 2")
        for A in (T + 8, T + 12):
            a("v_add_f32 v%d, v%d, v%d" % (A, A, A + 1))
            a("v_add_f32 v%d, v%d, v%d" % (A + 2, A + 2, A + 3))
        a("v_add_f32 v%d, v%d, v%d" % (T + 8, T + 8, T + 10))
        a("v_add_f32 v%d, v%d, v%d" % (T + 9, T + 12, T + 14))
        a("ds_write_b64 v8, %s offset:%d" % (v(T + 8, 2), 16 * g))
        a("v_bfe_u32 v13, v1, 2, 2")
        a("v_lshlrev_b32 v12, 6, v13")
        a("v_bfe_u32 v13, v1, 4, 1")
        a("v_lshl_add_u32 v12, v13, 5, v12")
        a("v_and_b32 v13, 3, v1")
        a("v_lshl_add_u32 v12, v13, 3, v12")
        a("v_lshl_add_u32 v12, v14, 10, v12")
        a("v_add_u32 v12, %d, v12" % (512 * g))
        a("s_lshr_b32 s36, s19, 1")
        a("s_mul_i32 s36, s36, %d" % UNIT)
        a("s_and_b32 s37, s19, 1")
        a("s_mul_i32 s37, s37, %d" % (9 * 2048))
        a("s_add_u32 s36, s36, s37")
        a("v_add_u32 v13, s36, v3")
        a("s_lshl_b32 s29, s27, 6")
        a("s_add_u32 s35, s35, s29")
        a("s_mul_i32 s34, s18, %d" % (8 * 9216))
        a("s_add_u32 s35, s35, s34")
        a("s_lshl_b32 s34, s18, 10")
        a("s_mul_i32 s29, s27, 640")
        a("s_sub_u32 s31, s35, s29")
        a("s_waitcnt lgkmcnt(0)")
        a("s_barrier")
        a("ds_read_b128 %s, v9" % v(T, 4))
        a("ds_read_b128 %s, v9 offset:16" % v(T + 4, 4))
        for i in range(9):
            a("ds_write_b128 v13, %s offset:%d" % (v(FG + 4 * i, 4), i * 2048 + g * 1024))
        a("v_mov_b32 v4, v12")
        a("v_add_u32 v5, 49152, v12")
        a("v_add_u32 v6, 98304, v12")
        ndma = 5 if g == 0 else 4
        def dma_list(u):
            pi, kh = (u - 2) >> 1, u & 1
            out = []
            for n in range(ndma):
                off = 128 * pi + (kh * 288 + n * 64) * 9216
                out.append(("grp", ["s_add_u32 m0, s34, %d" % ((u % 4) * UNIT + n * 8192),
                                    "s_add_u32 s30, s%d, %d" % (35 if pi < 4 else 31, off),
                                    ("vm", "buffer_load_dwordx4 v2, s[8:11], s30 offen lds", "u%d" % u)]))
            return out
        a("s_waitcnt lgkmcnt(9)")
        for o in ["v_add_f32 v%d, v%d, v%d" % (T, T, T + 2), "v_add_f32 v%d, v%d, v%d" % (T + 4, T + 4, T + 6),
                  "v_add_f32 v%d, v%d, v%d" % (T + 1, T + 1, T + 3), "v_add_f32 v%d, v%d, v%d" % (T + 5, T + 5, T + 7),
                  "v_add_f32 v%d, v%d, v%d" % (T, T, T + 4), "v_add_f32 v%d, v%d, v%d" % (T + 1, T + 1, T + 5),
                  "v_mul_f32 v%d, 0x%x, v%d" % (T, f32bits(1.0 / 576), T),
                  "v_mul_f32 v%d, 0x%x, v%d" % (T + 1, f32bits(1.0 / 576), T + 1),
                  "v_fma_f32 v%d, -v%d, v%d, v%d" % (T + 1, T, T, T + 1),
                  "v_max_f32 v%d, 0, v%d" % (T + 1, T + 1),
                  "v_cvt_pk_bf16_f32 v%d, -v%d, v%d" % (T + 2, T, T + 1),
                  "v_and_b32 v%d, 0xffff0000, v%d" % (T + 1, T + 2),
                  "v_add_f32 v%d, 0x%x, v%d" % (T + 1, f32bits(1e-5), T + 1),
                  "v_cvt_pk_bf16_f32 v%d, v%d, v%d" % (T + 1, T + 1, T + 1),
                  "v_lshlrev_b32 v%d, 16, v%d" % (T + 1, T + 1),
                  "v_sqrt_f32 v%d, v%d" % (T + 1, T + 1),
                  "v_and_b32 v%d, 0xffff, v%d" % (T + 2, T + 2),
                  "v_cvt_pk_bf16_f32 v%d, v%d, v%d" % (T + 1, T + 1, T + 1),
                  "v_lshl_or_b32 v%d, v%d, 16, v%d" % (XA, T + 2, T + 2),
                  "v_and_b32 v%d, 0xffff0000, v%d" % (T + 3, T + 1),
                  "v_or_b32 v%d, v%d, v%d" % (XA + 1, T + 3, T + 2),
                  "v_rcp_f32 v%d, v%d" % (T, T + 3),
                  "v_lshrrev_b32 v%d, 3, v9" % (T + 4),
                  "v_add_u32 v%d, %d, v%d" % (T + 4, ROWP_LDS - STAT_LDS // 8, T + 4),
                  "v_mul_f32 v%d, 0x%x, v%d" % (T + 1, f32bits(1.0 / 24), T),
                  "ds_write_b32 v%d, v%d" % (T + 4, T + 1),
                  "v_add_u32 v13, %d, v3" % (1024 * g)]:
            a(o)
        a("s_waitcnt lgkmcnt(0)")
        a("s_barrier")
        a.lg_reset()
        a.stamp()

        def prog_side():
            wl = []
            for arr in range(2):
                wl += ["s_add_u32 m0, s34, %d" % (WTS + arr * 5120), "s_nop 0",
                       "buffer_load_dwordx4 v%d, s[%d:%d], 0 offen lds" % (EX + 9, 44 + 4 * arr, 47 + 4 * arr)]
            ops = [("cond", "s_cmp_lt_u32 s18, 5", wl, "wt")]
            ops += dma_list(2)
            for n2 in range(2):
                wl = []
                for n in (2 * n2, 2 * n2 + 1):
                    wl += ["s_add_u32 m0, s38, %d" % (n * 1024), "s_add_u32 s28, s3, %d" % (n * 8 * 1152),
                           "buffer_load_dwordx4 v%d, s[52:55], s28 offen lds" % (EX + 8)]
                ops.append(("cond", "s_cmp_lt_u32 s100, 1296", wl, "w2p"))
            ops += ["v_mov_b32 v%d, 0" % (XA + 2), "v_mov_b32 v%d, 0" % (XA + 3), "v_mov_b32 v%d, 0" % (AUGR + 2), "v_mov_b32 v%d, 0" % (AUGR + 3),
                   "v_cndmask_b32 v%d, v%d, 0, s[24:25]" % (XA, XA), "v_cndmask_b32 v%d, v%d, 0, s[24:25]" % (XA + 1, XA + 1),
                   "v_mul_f32 v9, 0x%x, v%d" % (f32bits(C0), T),
                   "v_mul_f32 v10, v%d, v%d" % (T, T), "v_mul_f32 v10, v10, v%d" % T, "v_mul_f32 v10, 0x%x, v10" % f32bits(C0 * 0.044715)]
            ops += ["s_lshr_b32 s29, s33, 4", "v_bfe_u32 v%d, v1, 4, 1" % (T + 1), "v_add_u32 v%d, s29, v%d" % (T + 1, T + 1), "s_mov_b32 s29, %d" % (144 * 1024),
                    "v_mul_lo_u32 v7, v%d, s29" % (T + 1), "v_lshl_add_u32 v7, v14, 8, v7", "v_and_b32 v%d, 15, v1" % (T + 1), "v_lshl_add_u32 v7, v%d, 4, v7" % (T + 1),
                    "v_add_u32 v7, 0x%x, v7" % H_OFF,
                    "v_add_u32 v%d, %d, v11" % (T + 1, 32 * g), "v_mul_u32_u24 v12, 272, v%d" % (T + 1), "v_lshl_add_u32 v12, v14, 3, v12",
                    "s_lshl_b32 s29, s19, 6", "s_add_u32 s29, s29, %d" % XT_LDS, "v_add_u32 v12, s29, v12",
                    "v_cmp_gt_u32 s[58:59], 36, v%d" % (T + 1), "s_mul_i32 s39, s17, 9"]
            ops += ["v_lshlrev_b32 v%d, 2, v11" % (T + 1), "v_add_u32 v%d, %d, v%d" % (T + 1, CSF_LDS + 1024 * g, T + 1)]
            for k in range(8): ops.append(("ds", "ds_read_b32 v%d, v%d offset:%d" % (T + 8 + k, T + 1, 128 * k), "csf"))
            ops += ["v_mov_b32 v11, v%d" % (T + 3),
                    "v_and_b32 v8, 31, v1", "v_lshlrev_b32 v8, 3, v8", "v_add_u32 v8, %d, v8" % AUG_LDS, "v_mov_b32 v%d, %d" % (T + 1, ZERO_LDS),
                    "v_cndmask_b32 v8, v8, v%d, s[24:25]" % (T + 1), ("lwait", "csf")]
            for k in range(1, 8): ops.append("v_add_f32 v%d, v%d, v%d" % (T + 8, T + 8, T + 8 + k))
            ops += split3(T + 8, T + 9, AUGR, AUGR + 1, "0")
            ops += ["v_cndmask_b32 v%d, v%d, 0, s[24:25]" % (AUGR, AUGR), "v_cndmask_b32 v%d, v%d, 0, s[24:25]" % (AUGR + 1, AUGR + 1)]
            if g == 1: ops.append(("call", cs_flag))
            return ops
        def prog_w2f():
            ops = ["v_lshrrev_b32 v%d, 5, v1" % (T + 1), "v_lshlrev_b32 v%d, 4, v%d" % (T + 1, T + 1), "v_bfe_u32 v%d, v1, 4, 1" % (T + 2),
                    "v_lshl_add_u32 v%d, v%d, 2, v%d" % (T + 1, T + 2, T + 1), "v_bfe_u32 v%d, v1, 2, 2" % (T + 2), "v_add_u32 v%d, v%d, v%d" % (T + 1, T + 1, T + 2),
                    "v_lshlrev_b32 v%d, 7, v%d" % (T + 1, T + 1), "v_and_b32 v%d, 3, v1" % (T + 2), "v_lshl_add_u32 v%d, v%d, 3, v%d" % (T + 1, T + 2, T + 1),
                    "v_add_u32 v%d, s38, v%d" % (T + 1, T + 1),
                    ("mwait", "w2p")]
            for nt in range(4):
                for h in range(2):
                    ops.append(("ds", "ds_read_b64_tr_b16 %s, v%d offset:%d" % (v(32 + 4 * nt + 2 * h, 2), T + 1, nt * 32 + h * 1024), "w2r"))
            ops.append(("lwait", "w2r"))
            return ops
        def prog_wt():
            ops = ["v_and_b32 v%d, 15, v0" % (T + 4), "v_mul_u32_u24 v%d, 80, v%d" % (T + 5, T + 4), "v_and_b32 v%d, 1, v0" % (T + 6),
                   "v_lshl_add_u32 v%d, v%d, 1, v%d" % (T + 5, T + 6, T + 5), "v_lshrrev_b32 v%d, 4, v0" % (T + 6),
                   "v_lshl_add_u32 v%d, v%d, 1, v%d" % (T + 5, T + 6, T + 5), "v_add_u32 v%d, %d, v%d" % (T + 5, WTS, T + 5),
                   "v_lshlrev_b32 v%d, 4, v%d" % (T + 4, T + 4), "v_lshl_add_u32 v%d, v%d, 13, v%d" % (T + 4, T + 6, T + 4),
                   ("grp", ["v_cmp_gt_u32 vcc, 80, v0", "v_add_u32 v%d, %d, v%d" % (T + 6, 32 * 8192, T + 4), "s_nop 0", "v_cndmask_b32 v%d, v15, v%d, vcc" % (T + 6, T + 6)])]
            for rd_ in range(2):
                for r in range(4):
                    ops.append(("ds", "ds_read_u16 v%d, v%d offset:%d" % (EX + 4 * rd_ + r, T + 5, r * 1280 + 64 * rd_), "wtr"))
                    ops.append(("ds", "ds_read_u16 v%d, v%d offset:%d" % (40 + 4 * rd_ + r, T + 5, 5120 + r * 1280 + 64 * rd_), "wtr"))
            ops.append(("lwait", "wtr"))
            for e in range(8): ops.append("v_lshl_or_b32 v%d, v%d, 16, v%d" % (EX + e, 40 + e, EX + e))
            return ops
        def prog_st():
            ops = []
            for n2 in range(2):
                ops.append(("cond", "s_cmp_lt_u32 s100, 1296",
                            ["buffer_store_dwordx4 %s, v3, s[4:7], s32 offen offset:%d%s" % (v(32 + 4 * nt, 4), nt * 1024, SC) for nt in (2 * n2, 2 * n2 + 1)], None))
            return ops
        def prog_st2():
            ops = [("vm", "buffer_store_dwordx4 %s, v%d, s[4:7], s56 offen%s" % (v(EX, 4), T + 4, SC), "side"),
                   ("cond", "s_cmp_lt_u32 s18, 2", ["buffer_store_dwordx4 %s, v%d, s[4:7], s56 offen%s" % (v(EX + 4, 4), T + 6, SC)], None)]
            return ops
        def cs_flag():
            pub = a.newlabel("noflag")
            a("s_cmp_eq_u32 s18, 7")
            a("s_cbranch_scc0 %s" % pub)
            a("v_mov_b32 v%d, 1" % (T + 2))
            a("s_lshl_b32 s28, s17, 2")
            a("v_mov_b32 v%d, s28" % (T + 1))
            a("s_waitcnt vmcnt(%d)" % min(63, len(a.vmq) - csmark))
            a("s_mov_b64 exec, 1")
            a("buffer_atomic_add v%d, v%d, s[20:23], 0 offen" % (T + 2, T + 1))
            a("s_mov_b64 exec, -1")
            a.label(pub)
        CSR = [16, 20, 24, 28, EX, EX + 4, T, T + 4]
        def cs_fetch():
            skip = a.newlabel("csskip"); lp = a.newlabel("cspoll"); ok = a.newlabel("csok")
            a("s_cmp_lt_u32 s18, 3")
            a("s_cbranch_scc0 %s" % skip)
            a.vm_wait_mark("cspl")
            a("v_readfirstlane_b32 s28, v254")
            a("s_cmp_ge_u32 s28, 16")
            a("s_cbranch_scc1 %s" % ok)
            a("s_mov_b32 s33, 0")
            a.label(lp)
            a("buffer_load_dword v254, v253, s[20:23], 0 offen sc1")
            a("s_waitcnt vmcnt(0)")
            a("v_readfirstlane_b32 s28, v254")
            a("s_cmp_ge_u32 s28, 16")
            a("s_cbranch_scc1 %s" % ok)
            a("s_add_u32 s33, s33, 1")
            a("s_cmp_lt_u32 s33, 0x40000")
            a("s_cbranch_scc1 %s" % lp)
            a.label(ok)
            a("s_mul_i32 s28, s17, %d" % (16 * 1152))
            a("s_add_u32 s28, s28, 0x%x" % CS_OFF)
            a("s_mul_i32 s29, s17, 576")
            a("v_lshlrev_b32 v250, 3, v251")
            a("buffer_load_dwordx2 v[248:249], v250, s[12:15], s29 offen")
            for kk in range(8):
                a("buffer_load_dwordx4 %s, v252, s[4:7], s28 offen offset:%d sc1" % (v(CSR[kk], 4), (kk % 3) * 1152))
                if kk % 3 == 2: a("s_add_u32 s28, s28, 3456")
            a.label(skip)
            a.vm_mark("csl")
        def prog_dft():
            acc = ACCS[0]
            ops = ["s_lshl_b32 s28, s19, 7", "v_lshlrev_b32 v%d, 4, v14" % T, "v_add_u32 v%d, s28, v%d" % (T, T), "v_add_u32 v%d, %d, v%d" % (T, ROWP_LDS, T)]
            for i in range(4): ops.append(("ds", "ds_read_b128 %s, v%d offset:%d" % (v(EX + 4 * i if i < 3 else T + 4, 4), T, 32 * i), "rowp"))
            ops.append(("lwait", "rowp"))
            for i in range(16):
                sc = (EX + i) if i < 12 else T + 4 + (i - 12)
                ops.append("v_mul_f32 v%d, v%d, v%d" % (acc + i, acc + i, sc))
            for i in range(8): ops.append("v_cvt_pk_f16_f32 v%d, v%d, v%d" % (T + 8 + i, acc + 2 * i, acc + 2 * i + 1))
            ops += ["s_lshl_b32 s28, s17, 2", "v_mov_b32 v253, s28", ("cond", "s_cmp_lt_u32 s18, 3", ["buffer_load_dword v254, v253, s[20:23], 0 offen sc1"], "cspl")]
            ops.append(("grp", ["s_mov_b64 exec, s[58:59]"] + [("ds", "ds_write_b64 v12, %s offset:%d" % (v(T + 8 + 2 * i, 2), 16 * i), "xtw") for i in range(4)] + ["s_mov_b64 exec, -1"]))
            return ops
        def prog_x1st():
            ops = ["v_lshrrev_b32 v%d, 4, v0" % (12), "v_mul_u32_u24 v%d, 272, v%d" % (13, 12), "v_and_b32 v%d, 15, v0" % (255),
                   "v_lshl_add_u32 v%d, v%d, 4, v%d" % (13, 255, 13), "v_add_u32 v%d, %d, v%d" % (13, XT_LDS, 13),
                   ("ds", "ds_read_b128 %s, v%d" % (v(T + 8, 4), 13), "xtr"), ("ds", "ds_read_b128 %s, v%d offset:%d" % (v(T + 12, 4), 13, 32 * 272), "xtr"),
                   "v_lshlrev_b32 v%d, 4, v%d" % (255, 255), "v_lshl_add_u32 v%d, v%d, 12, v%d" % (255, 12, 255),
                   "s_mul_i32 s29, s17, %d" % (36 * 4096), "s_lshl_b32 s57, s16, 8", "s_add_u32 s57, s57, s29", "s_add_u32 s57, s57, 0x%x" % X1_OFF,
                   ("grp", ["v_cmp_gt_u32 vcc, 64, v0", "v_add_u32 v%d, %d, v%d" % (250, 32 * 4096, 255), "s_nop 0", "v_cndmask_b32 v%d, v15, v%d, vcc" % (250, 250)]),
                   ("lwait", "xtr"),
                   ("vm", "buffer_store_dwordx4 %s, v%d, s[4:7], s57 offen%s" % (v(T + 8, 4), 255, SC), "side"),
                   ("cond", "s_cmp_eq_u32 s18, 0", ["buffer_store_dwordx4 %s, v%d, s[4:7], s57 offen%s" % (v(T + 12, 4), 250, SC)], None)]
            return ops
        def prog_cs1():
            return ["s_lshl_b32 s28, s18, 5", "v_and_b32 v251, 31, v1", "v_add_u32 v251, s28, v251", "v_mul_u32_u24 v252, %d, v14" % (8 * 1152),
                    "v_lshl_add_u32 v252, v251, 4, v252",
                    ("grp", ["v_cmp_gt_u32 vcc, 72, v251", "s_nop 1", "v_cndmask_b32 v252, v15, v252, vcc"]), ("call", cs_fetch)]
        def prog_cs2():
            ops = [("mwait", "csl")]
            for kk in range(1, 8):
                for i in range(4): ops.append("v_add_f32 v%d, v%d, v%d" % (16 + i, 16 + i, CSR[kk] + i))
            for i in range(4): ops.append("v_mov_b32 v%d, v%d" % (20 + i, 16 + i))
            ops += ["v_lshlrev_b32 v24, 16, v248", "v_and_b32 v25, 0xffff0000, v248", "v_lshlrev_b32 v26, 16, v249", "v_and_b32 v27, 0xffff0000, v249"]
            for i in range(4): ops.append("v_permlane32_swap_b32 v%d, v%d" % (16 + i, 20 + i))
            for i in range(4): ops.append("v_add_f32 v%d, v%d, v%d" % (16 + i, 16 + i, 20 + i))
            for i in range(4): ops += split3(16 + i, 28, T + 2 * i, T + 2 * i + 1, "v%d" % (24 + i))
            ops += ["v_lshlrev_b32 v29, 5, v251", "v_add_u32 v29, %d, v29" % AUG_LDS, "v_lshl_add_u32 v30, v14, 7, v251",
                    ("grp", ["v_cmp_gt_u32 vcc, 72, v30", "s_and_saveexec_b64 s[28:29], vcc", ("ds", "ds_write_b128 v29, %s" % v(T, 4), "augw"),
                             ("ds", "ds_write_b128 v29, %s offset:16" % v(T + 4, 4), "augw"), "s_mov_b64 exec, -1"])]
            return ops
        def aug_read(p):
            sk = 36 + (p & 1); pi = p - 1
            ops = ["s_add_u32 s%d, s27, %d" % (sk, 2 * pi + g)]
            if pi == 4:
                ops += ["s_cmp_eq_u32 s27, 1", "s_cselect_b32 s%d, 0, 8" % sk]
            ops += ["s_lshl_b32 s28, s%d, 8" % sk, "v_mov_b32 v15, s28",
                    "v_cndmask_b32 v15, v15, 0, s[24:25]", "v_add_u32 v15, v15, v8",
                    ("ds", "ds_read_b64 %s, v15" % v(AUGR, 2), "aug")]
            return ops
        def gelu_ops(p):
            ops = []
            for h2 in range(2):
                acc = ACCS[p & 1] + 8 * h2
                for i in range(8): ops.append("v_mul_f32 v%d, v%d, v%d" % (T + i, acc + i, acc + i))
                for i in range(8): ops.append("v_fma_f32 v%d, v%d, v10, v9" % (T + i, T + i))
                for i in range(8): ops.append("v_mul_f32 v%d, v%d, v%d" % (T + i, acc + i, T + i))
                for i in range(8): ops.append("v_exp_f32 v%d, v%d" % (T + i, T + i))
                for i in range(8): ops.append("v_fma_f32 v%d, v%d, v11, v11" % (T + i, T + i))
                for i in range(8): ops.append("v_rcp_f32 v%d, v%d" % (T + i, T + i))
                for i in range(8): ops.append("v_mul_f32 v%d, v%d, v%d" % (T + i, acc + i, T + i))
                for i in range(4): ops.append("v_cvt_pk_bf16_f32 v%d, v%d, v%d" % (T + 8 + 4 * h2 + i, T + 2 * i, T + 2 * i + 1))
                ops.append(("grp", ["s_add_u32 s28, s39, s%d" % (36 + (p & 1)), "s_lshl_b32 s28, s28, 10",
                                    ("vm", "buffer_store_dwordx4 %s, v7, s[4:7], s28 offen offset:%d%s" % (v(T + 8 + 4 * h2, 4), 512 * h2, SC), "h%d" % p)]))
            return ops

        ntile = 6 if g == 0 else 5
        nsteps = 36 * ntile
        LA = NFR - 1
        def rd(i):
            phi, st = divmod(i, 18)
            b = FR + 4 * (i % NFR)
            if phi < 2:
                if i == 18: a("v_add_u32 v13, %d, v13" % UNIT)
                a.ds("ds_read_b128 %s, v13 offset:%d" % (v(b, 4), st * 2048), "f%d" % i)
            else:
                if i == 180:
                    a("s_lshl_b32 s29, s27, 9")
                    for r_ in (4, 5, 6): a("v_add_u32 v%d, s29, v%d" % (r_, r_))
                for h in range(2):
                    addr = (phi % 4) * UNIT + st * 2048 + 256 * h
                    k = addr // 49152
                    a.ds("ds_read_b64_tr_b16 %s, v%d offset:%d" % (v(b + 2 * h, 2), 4 + k, addr - k * 49152), "f%d" % i)
        pri = []
        def barrier(phi):
            if phi <= 2 and not hooks: a.stamp()
            if phi + 1 >= 2: a.vm_wait("u%d" % (phi + 1))
            if 1 <= phi <= 2 and not hooks: a.stamp()
            if phi == 0: a.vm_wait_mark("wt")
            if phi == 10 and hooks: a.vm_wait("h3")
            a.lg_wait("augw"); a.lg_wait("xtw")
            a("s_barrier")
            if hooks: hooks.after_barrier(a, g, phi)
            if phi <= 2 and not hooks: a.stamp()
            u = phi + 3 if phi >= 1 else None
            if phi == 1: pri.extend(dma_list(3))
            if u is not None and u <= 11: pri.extend(dma_list(u))
        for i in range(LA): rd(i)
        for tau in range(ntile):
            if tau == 0: progs = [(0, 13, prog_side()), (14, 21, prog_wt()), (23, 29, prog_w2f()), (33, 35, prog_st())]
            elif tau == 1: progs = [(0, 1, prog_st2()), (3, 11, prog_dft()), (12, 13, prog_cs1()), (14, 19, prog_x1st()), (23, 30, prog_cs2()), (32, 33, aug_read(1))]
            else: progs = [(3, 31, gelu_ops(tau - 1)), (32, 33, aug_read(tau))]
            sched = [[] for _ in range(36)]
            for s0, s1, ops in progs:
                n = s1 - s0 + 1
                for k, o in enumerate(ops):
                    sched[s0 + (k * n) // len(ops)].append(o)
            acc = ACCS[tau & 1]
            for st in range(36):
                i = 36 * tau + st
                j = i + LA
                if j < nsteps:
                    if j % 18 == 0:
                        barrier(j // 18 - 1)
                    rd(j)
                if pri and (st % 2 == 0 or len(pri) > ndma): emit_op(a, pri.pop(0))
                a.lg_wait("f%d" % i)
                b = FR + 4 * (i % NFR)
                x = XN + 4 * st
                c = "0" if st == 0 else v(acc, 16)
                if tau == 0:
                    a("v_mfma_f32_32x32x16_bf16 %s, %s, %s, %s" % (v(acc, 16), v(x, 4), v(b, 4), c))
                else:
                    a("v_mfma_f32_32x32x16_bf16 %s, %s, %s, %s" % (v(acc, 16), v(b, 4), v(x, 4), c))
                for o in sched[st]: emit_op(a, o)
            if tau == 0:
                a("v_mfma_f32_32x32x16_bf16 %s, %s, %s, %s" % (v(acc, 16), v(XA, 4), v(AUGR, 4), v(acc, 16)))
            else:
                a.lg_wait("aug")
                a("v_mfma_f32_32x32x16_bf16 %s, %s, %s, %s" % (v(acc, 16), v(AUGR, 4), v(XA, 4), v(acc, 16)))
            if tau == 1: a.stamp()
        a("s_nop 7"); a("s_nop 4")
        last = gelu_ops(ntile - 1)
        if g == 1:
            barrier(9)
            assert not pri
            for k, o in enumerate(last):
                if k == len(last) // 2: barrier(10)
                emit_op(a, o)
        else:
            for o in last: emit_op(a, o)
        if hooks: hooks.tail(a, g)
        elif g == 1:
            a("s_lshl_b32 s36, s19, 8")
            a("s_add_u32 s36, s36, s2")
            k0.job_finv(a, XN, 36, 4, 37)
        a.stamp()
        a.stamp(True)
        a.stamp_flush(4, STAMP_OFF, 18, T)
        a("s_endpgm")

    group(0)
    a.label("L_k1_g1")
    group(1)
    a.label("L_k1_end")
    a("s_endpgm")
    return (name, 256, 512, 163840 if hooks else K1_LDS, NV)
```

```python
from asmlib import *
from layout import *
import k0, k1d
from k1d import SP, FLG_LDS, UNIT
from k2 import T_M32F, T_TW1, T_M64, T_TW2, T_M32I

KS = 17408
NSLOT = 8
OWN_LDS = 139264
DBG_ALL, DBG_LATE = 64, 80
OOB = 0x7ff00000
ZR = [SP + 4096, SP + 12288]
ZI = [SP + 8192, 69632]
LCNT_LDS = FLG_LDS + 60

def spin_begin(a, name):
    lp = a.newlabel(name)
    a("s_mov_b32 s33, 0")
    a.label(lp)
    return lp
def spin_end(a, lp):
    out = a.newlabel("spinout")
    a("s_cbranch_scc1 %s" % out)
    a("s_add_u32 s33, s33, 1")
    a("s_cmp_lt_u32 s33, 0x40000")
    a("s_cbranch_scc1 %s" % lp)
    a.label(out)

def one_lane(a, lines):
    a("s_mov_b64 exec, 1")
    for l in lines: a(l)
    a("s_mov_b64 exec, -1")

def flag_store(a, val, s_off, woff=0):
    a("v_mov_b32 v253, %d" % woff)
    a("v_mov_b32 v254, %d" % val)
    one_lane(a, ["buffer_store_dword v254, v253, s[4:7], s%d offen sc1" % s_off])

def dbg_add(a, base):
    a("s_and_b32 s28, s2, 3")
    a("s_lshl_b32 s28, s28, 2")
    a("v_mov_b32 v253, s28")
    a("v_mov_b32 v254, 1")
    one_lane(a, ["buffer_atomic_add v254, v253, s[20:23], 0 offen offset:%d" % base])

def chk_sum4(a, R, target):
    a("v_add_u32 v%d, v%d, v%d" % (R, R, R + 1))
    a("v_add3_u32 v%d, v%d, v%d, v%d" % (R, R, R + 2, R + 3))
    a("s_nop 0")
    a("v_readfirstlane_b32 s28, v%d" % R)
    a("s_cmp_ge_u32 s28, %d" % target)

def chk_min4(a, R, target):
    a("v_cmp_le_u32 vcc, %d, v%d" % (target, R))
    a("s_nop 1")
    a("s_and_b32 s28, vcc_lo, 15")
    a("s_cmp_eq_u32 s28, 15")

class Hooks:
    def start(self, a):
        lab = a.newlabel("noreset")
        a("s_lshl_b32 s101, s2, 7")
        a("s_add_u32 s101, s101, 0x%x" % FLAG_OFF)
        a("s_cmp_eq_u32 s18, 0")
        a("s_cbranch_scc0 %s" % lab)
        for i in range(4): a("v_mov_b32 v%d, 0" % (16 + i))
        a("s_mov_b64 exec, 3")
        a("buffer_store_dwordx4 v[16:19], v3, s[4:7], s101 offen sc1")
        a("s_mov_b64 exec, -1")
        a.label(lab)
    def after_barrier(self, a, g, phi):
        if g == 0 and phi == 5:
            lab = a.newlabel("noall")
            a("s_cmp_eq_u32 s18, 0"); a("s_cbranch_scc0 %s" % lab)
            dbg_add(a, DBG_ALL)
            a.label(lab)
        if g == 1 and phi in (9, 10):
            lab = a.newlabel("noprog")
            a("s_cmp_eq_u32 s18, 4"); a("s_cbranch_scc0 %s" % lab)
            flag_store(a, phi - 8, 101)
            a.label(lab)
    def tail(self, a, g):
        a.stamp()
        a("s_lshr_b32 s26, s17, 2")
        a("s_and_b32 s27, s17, 3")
        a("s_mul_i32 s24, s26, 9")
        a("s_add_u32 s24, s24, 1")
        a("s_lshr_b32 s24, s24, 1")
        a("s_and_b32 s25, s26, 1")
        if g == 0: consumer(a)
        else: loader_side(a)
        final(a)

def kmap(kk):
    n, cc = divmod(kk, 4)
    return 9 * cc + (n + (cc & 1)) % 9

def fft(a, s_col, s_hw, s_cs):
    V0 = 16
    ZA, MF, AC, TW, PK, M64, WV, T0 = V0, V0 + 32, V0 + 44, V0 + 76, V0 + 108, V0 + 132, V0 + 196, V0 + 212
    vTR, vTI, vF, vFP, vSC, vX, vY, vONE = T0 + 8, T0 + 9, T0 + 10, T0 + 11, T0 + 12, T0 + 13, T0 + 14, T0 + 15
    vL16 = 3
    sRE, sIM, sT, sU, sZR, sZI, sROW, sZO = 44, 45, 46, 47, 48, 49, 50, 51
    R = "s[4:7]"
    a("s_lshl_b32 s%d, s%d, 13" % (sRE, s_col))
    a("s_add_u32 s%d, s%d, 4096" % (sIM, sRE))
    a("s_cmp_eq_u32 s%d, 0" % s_col)
    a("s_cselect_b32 s%d, 0x%x, s%d" % (sIM, OOB, sIM))
    a("s_cmp_eq_u32 s%d, 288" % s_col)
    a("s_cselect_b32 s%d, 0x%x, s%d" % (sIM, OOB, sIM))
    a("s_cselect_b32 s%d, 4096, s%d" % (sRE, sRE))
    a("s_cmp_gt_u32 s%d, 288" % s_col)
    a("s_cselect_b32 s%d, 0x%x, s%d" % (sRE, OOB, sRE))
    a("s_cselect_b32 s%d, 0x%x, s%d" % (sIM, OOB, sIM))
    a("s_cmp_eq_u32 s%d, 0" % s_cs)
    a("s_mov_b32 s%d, %d" % (sZR, ZR[1]))
    a("s_mov_b32 s%d, %d" % (sZI, ZI[1]))
    a("s_cselect_b32 s%d, %d, s%d" % (sZR, ZR[0], sZR))
    a("s_cselect_b32 s%d, %d, s%d" % (sZI, ZI[0], sZI))
    a("s_cmp_eq_u32 s%d, 0" % s_hw)
    a("s_cselect_b32 s%d, s%d, s%d" % (sROW, sRE, sIM))
    a("s_cselect_b32 s%d, s%d, s%d" % (sZO, sZR, sZI))
    a("v_add_u32 v%d, s%d, v%d" % (vX, sROW, vL16))
    a("s_mov_b32 s%d, 0x%x" % (sT, X1_OFF))
    a("s_mov_b32 m0, s%d" % sZO)
    a("s_nop 0")
    for n in range(4):
        a.vm("buffer_load_dwordx4 v%d, %s, s%d offen offset:%d sc1 lds" % (vX, R, sT, n * 1024), "z")
    def tgroup(dst, kb0, n, hwmul, tag):
        for i in range(n):
            if i % 4 == 0:
                a("s_mul_i32 s%d, s%d, %d" % (sT, s_hw, hwmul * 1024))
                a("s_add_u32 s%d, s%d, 0x%x" % (sT, sT, TAB_OFF + (kb0 + i) * 1024))
            a.vm("buffer_load_dwordx4 %s, v%d, %s, s%d offen offset:%d sc1" % (v(dst + 4 * i, 4), vL16, R, sT, (i % 4) * 1024), tag)
    tgroup(MF, T_M32F, 3, 3, "mf")
    tgroup(TW, T_TW1, 8, 8, "tw1")
    a("s_min_u32 s%d, s%d, 288" % (sT, s_col))
    a("s_lshl_b32 s%d, s%d, 13" % (sT, sT))
    a("s_lshl_b32 s%d, s%d, 12" % (sU, s_hw))
    a("s_add_u32 s%d, s%d, s%d" % (sT, sT, sU))
    a("s_add_u32 s%d, s%d, 0x%x" % (sT, sT, WT_OFF))
    for t in range(4):
        a.vm("buffer_load_dwordx4 %s, v%d, %s, s%d offen offset:%d sc1" % (v(WV + 4 * t, 4), vL16, R, sT, t * 1024), "w")
    tgroup(M64, T_M64, 16, 0, "m64")
    a("v_lshrrev_b32 v%d, 4, v1" % vX)
    a("v_bfe_u32 v%d, v1, 2, 2" % vY)
    a("v_lshl_add_u32 v%d, v%d, 3, v%d" % (vY, vX, vY))
    a("v_lshlrev_b32 v%d, 7, v%d" % (vTR, vY))
    a("v_and_b32 v%d, 3, v1" % vY)
    a("v_lshl_add_u32 v%d, v%d, 3, v%d" % (vTR, vY, vTR))
    a("v_add_u32 v%d, s%d, v%d" % (vTI, sZI, vTR))
    a("v_add_u32 v%d, s%d, v%d" % (vTR, sZR, vTR))
    a("s_lshl_b32 s%d, s%d, 3" % (sT, s_cs))
    a("s_lshl_b32 s%d, s%d, 2" % (sU, s_hw))
    a("s_add_u32 s%d, s%d, %d" % (sT, sT, FLG_LDS))
    a("s_add_u32 s%d, s%d, s%d" % (sU, sU, sT))
    a("v_mov_b32 v%d, s%d" % (vF, sU))
    a("s_xor_b32 s%d, s%d, 4" % (sU, sU))
    a("v_mov_b32 v%d, s%d" % (vFP, sU))
    a("s_lshl_b32 s%d, s%d, 2" % (sT, s_cs))
    a("s_add_u32 s%d, s%d, %d" % (sT, sT, FLG_LDS + 16))
    a("v_mov_b32 v%d, s%d" % (vSC, sT))
    def signal(k):
        a("v_mov_b32 v%d, %d" % (vONE, k))
        a("ds_write_b32 v%d, v%d" % (vF, vONE))
    def wait(k):
        lp = spin_begin(a, "pw")
        a("ds_read_b32 v%d, v%d" % (vONE, vFP))
        a("s_waitcnt lgkmcnt(0)")
        a("v_readfirstlane_b32 s28, v%d" % vONE)
        a("s_cmp_ge_u32 s28, %d" % k)
        spin_end(a, lp)
    a.stamp()
    a.vm_wait("z")
    a.stamp()
    signal(1); wait(1)
    for t in range(4):
        for p in range(2):
            for h in range(2):
                a("ds_read_b64_tr_b16 %s, v%d offset:%d" % (v(ZA + (2 * t + p) * 4 + 2 * h, 2), vTI if p else vTR, t * 32 + h * 512))
    a.vm_wait("mf", " lgkmcnt(0)")
    CR, CI, NCI = MF, MF + 4, MF + 8
    mf = "v_mfma_f32_16x16x32_f16"
    for t in range(4):
        zr = ZA + 8 * t
        a("%s %s, %s, %s, 0" % (mf, v(AC + 8 * t, 4), v(zr, 4), v(CR, 4)))
        a("%s %s, %s, %s, 0" % (mf, v(AC + 8 * t + 4, 4), v(zr, 4), v(CI, 4)))
    for t in range(4):
        zi = ZA + 8 * t + 4
        a("%s %s, %s, %s, %s" % (mf, v(AC + 8 * t, 4), v(zi, 4), v(NCI, 4), v(AC + 8 * t, 4)))
        a("%s %s, %s, %s, %s" % (mf, v(AC + 8 * t + 4, 4), v(zi, 4), v(CR, 4), v(AC + 8 * t + 4, 4)))
    a.vm_wait("w")
    a.stamp()
    a("v_mov_b32 v%d, 0x7fff7fff" % vY)
    a("v_and_b32 v%d, v%d, v%d" % (vX, WV, vY))
    for i in range(1, 16):
        a("v_and_b32 v%d, v%d, v%d" % (T0, WV + i, vY))
        a("v_pk_max_u16 v%d, v%d, v%d" % (vX, vX, T0))
    a("v_lshrrev_b32 v%d, 16, v%d" % (T0, vX))
    a("v_and_b32 v%d, 0xffff, v%d" % (vX, vX))
    a("v_max_u32 v%d, v%d, v%d" % (vX, vX, T0))
    a("ds_max_u32 v%d, v%d" % (vSC, vX))
    signal(2)
    tgroup(ZA, T_TW2, 8, 8, "tw2")
    def cmul(xr, xi, wr, wi, t0, t1):
        a("v_mul_f32 v%d, v%d, v%d" % (t0, xi, wi))
        a("v_mul_f32 v%d, v%d, v%d" % (t1, xr, wi))
        a("v_fma_f32 v%d, v%d, v%d, -v%d" % (xr, xr, wr, t0))
        a("v_fma_f32 v%d, v%d, v%d, v%d" % (xi, xi, wr, t1))
    for t in range(4):
        for r in range(4):
            cmul(AC + 8 * t + r, AC + 8 * t + 4 + r, TW + 8 * t + r, TW + 8 * t + 4 + r, T0 + (2 * r) % 8, T0 + (2 * r + 1) % 8)
    def packs(neg_first):
        for u in range(2):
            for tt in range(2):
                t = 2 * u + tt
                for hh in range(2):
                    re0, im0 = AC + 8 * t + 2 * hh, AC + 8 * t + 4 + 2 * hh
                    d = 4 * u + 2 * tt + hh
                    a("v_cvt_pk_f16_f32 v%d, v%d, v%d" % (PK + d, re0, re0 + 1))
                    a("v_cvt_pk_f16_f32 v%d, v%d, v%d" % (PK + 8 + d, im0, im0 + 1))
                    n0 = re0 if neg_first else im0
                    a("v_cvt_pk_f16_f32 v%d, -v%d, -v%d" % (PK + 16 + d, n0, n0 + 1))
    packs(False)
    for nt in range(2):
        for oo in range(2):
            a("s_xor_b32 s%d, s%d, %d" % (sT, s_hw, oo))
            a("s_lshl_b32 s%d, s%d, 11" % (sT, sT))
            a("s_add_u32 s%d, s%d, 0x%x" % (sT, sT, TAB_OFF + (T_M32I + 4 * nt) * 1024))
            for p in range(2):
                a.vm("buffer_load_dwordx4 %s, v%d, %s, s%d offen offset:%d sc1" % (v(TW + ((2 * nt + oo) * 2 + p) * 4, 4), vL16, R, sT, p * 1024), "m32i")
    a.vm_wait("m64")
    a.stamp()
    def m64(t, u, ci): return M64 + ((2 * t + u) * 2 + ci) * 4
    for u in range(2):
        for t in range(4):
            c0 = "0" if u == 0 else v(AC + 8 * t, 4)
            c1 = "0" if u == 0 else v(AC + 8 * t + 4, 4)
            a("%s %s, %s, %s, %s" % (mf, v(AC + 8 * t, 4), v(m64(t, u, 0), 4), v(PK + 4 * u, 4), c0))
            a("%s %s, %s, %s, %s" % (mf, v(AC + 8 * t + 4, 4), v(m64(t, u, 1), 4), v(PK + 4 * u, 4), c1))
        for t in range(4):
            a("%s %s, %s, %s, %s" % (mf, v(AC + 8 * t, 4), v(m64(t, u, 1), 4), v(PK + 16 + 4 * u, 4), v(AC + 8 * t, 4)))
            a("%s %s, %s, %s, %s" % (mf, v(AC + 8 * t + 4, 4), v(m64(t, u, 0), 4), v(PK + 8 + 4 * u, 4), v(AC + 8 * t + 4, 4)))
    wait(2)
    a("ds_read_b32 v%d, v%d" % (vX, vSC))
    a("s_waitcnt lgkmcnt(0)")
    a("v_lshrrev_b32 v%d, 7, v%d" % (vX, vX))
    a("v_sub_u32 v%d, 250, v%d" % (vY, vX))
    a("v_max_i32 v%d, 1, v%d" % (vY, vY))
    a("v_lshlrev_b32 v%d, 23, v%d" % (vY, vY))
    a("v_subrev_u32 v%d, 126, v%d" % (vX, vX))
    a("v_mov_b32 v%d, 0x%x" % (vSC, f32bits(1.0 / 96)))
    a("v_ldexp_f32 v%d, v%d, v%d" % (vSC, vSC, vX))
    for t in range(4):
        for r in range(4):
            w = WV + 4 * t + r
            t0, t1, t2, t3 = T0 + 4 * (r & 1), T0 + 4 * (r & 1) + 1, T0 + 4 * (r & 1) + 2, T0 + 4 * (r & 1) + 3
            a("v_lshlrev_b32 v%d, 16, v%d" % (t2, w))
            a("v_and_b32 v%d, 0xffff0000, v%d" % (t3, w))
            a("v_mul_f32 v%d, v%d, v%d" % (t2, t2, vY))
            a("v_mul_f32 v%d, v%d, v%d" % (t3, t3, vY))
            cmul(AC + 8 * t + r, AC + 8 * t + 4 + r, t2, t3, t0, t1)
    packs(True)
    a("s_nop 1")
    for u in range(2):
        for t in range(4):
            c0 = "0" if u == 0 else v(AC + 8 * t, 4)
            c1 = "0" if u == 0 else v(AC + 8 * t + 4, 4)
            a("%s %s, %s, %s, %s" % (mf, v(AC + 8 * t, 4), v(PK + 4 * u, 4), v(m64(t, u, 0), 4), c0))
            a("%s %s, %s, %s, %s" % (mf, v(AC + 8 * t + 4, 4), v(PK + 8 + 4 * u, 4), v(m64(t, u, 0), 4), c1))
        for t in range(4):
            a("%s %s, %s, %s, %s" % (mf, v(AC + 8 * t, 4), v(PK + 8 + 4 * u, 4), v(m64(t, u, 1), 4), v(AC + 8 * t, 4)))
            a("%s %s, %s, %s, %s" % (mf, v(AC + 8 * t + 4, 4), v(PK + 16 + 4 * u, 4), v(m64(t, u, 1), 4), v(AC + 8 * t + 4, 4)))
    a.stamp()
    a.vm_wait("tw2")
    a("s_nop 7")
    for t in range(4):
        for r in range(4):
            cmul(AC + 8 * t + r, AC + 8 * t + 4 + r, ZA + 8 * t + r, ZA + 8 * t + 4 + r, T0 + (2 * r) % 8, T0 + (2 * r + 1) % 8)
    for t in range(4):
        for k in range(4):
            a("v_cvt_pk_f16_f32 v%d, v%d, v%d" % (PK + 4 * t + k, AC + 8 * t + 2 * k, AC + 8 * t + 2 * k + 1))
    a("s_xor_b32 s%d, s%d, 1" % (sT, s_hw))
    a("s_lshl_b32 s%d, s%d, 11" % (sT, sT))
    a("s_add_u32 s%d, s%d, s%d" % (sT, sT, sZR))
    a("v_add_u32 v%d, s%d, v%d" % (vX, sT, vL16))
    a("s_lshl_b32 s%d, s%d, 11" % (sT, s_hw))
    a("s_add_u32 s%d, s%d, s%d" % (sT, sT, sZR))
    a("v_add_u32 v%d, s%d, v%d" % (vTR, sT, vL16))
    lab = a.newlabel("fft_hw1"); lab2 = a.newlabel("fft_j")
    a("s_cmp_eq_u32 s%d, 1" % s_hw)
    a("s_cbranch_scc1 %s" % lab)
    a("ds_write_b128 v%d, %s" % (vX, v(PK + 8, 4)))
    a("ds_write_b128 v%d, %s offset:1024" % (vX, v(PK + 12, 4)))
    a("s_branch %s" % lab2)
    a.label(lab)
    a("ds_write_b128 v%d, %s" % (vX, v(PK, 4)))
    a("ds_write_b128 v%d, %s offset:1024" % (vX, v(PK + 4, 4)))
    a("s_waitcnt lgkmcnt(0)")
    for i in range(8):
        a("v_mov_b32 v%d, v%d" % (PK + i, PK + 8 + i))
    a.label(lab2)
    signal(3); wait(3)
    a("ds_read_b128 %s, v%d" % (v(PK + 8, 4), vTR))
    a("ds_read_b128 %s, v%d offset:1024" % (v(PK + 12, 4), vTR))
    a.vm_wait("m32i", " lgkmcnt(0)")
    signal(4)
    a.stamp()
    def m32i(nt, oo, p): return TW + ((2 * nt + oo) * 2 + p) * 4
    def accy(bt, nt, p): return AC + ((2 * bt + nt) * 2 + p) * 4
    for oo in range(2):
        for bt in range(2):
            for nt in range(2):
                for p in range(2):
                    c = "0" if oo == 0 else v(accy(bt, nt, p), 4)
                    a("%s %s, %s, %s, %s" % (mf, v(accy(bt, nt, p), 4), v(PK + 8 * oo + 4 * bt, 4), v(m32i(nt, oo, p), 4), c))
    a("v_and_b32 v%d, 15, v1" % vY)
    a("v_lshlrev_b32 v%d, 7, v%d" % (vY, vY))
    a("v_lshrrev_b32 v%d, 4, v1" % vX)
    a("v_lshl_add_u32 v%d, v%d, 3, v%d" % (vY, vX, vY))
    a("s_lshl_b32 s%d, s%d, 6" % (sT, s_hw))
    a("v_add_u32 v%d, s%d, v%d" % (vY, sT, vY))
    a("v_add_u32 v%d, s%d, v%d" % (vTR, sZR, vY))
    a("v_add_u32 v%d, s%d, v%d" % (vTI, sZI, vY))
    a("v_add_u32 v%d, s%d, v%d" % (vX, sZO, vL16))
    a("v_add_u32 v%d, s%d, v%d" % (vY, sROW, vL16))
    for i in range(32):
        a("v_mul_f32 v%d, v%d, v%d" % (AC + i, AC + i, vSC))
    for i in range(16):
        a("v_cvt_pk_bf16_f32 v%d, v%d, v%d" % (ZA + i, AC + 2 * i, AC + 2 * i + 1))
    wait(4)
    for bt in range(2):
        for nt in range(2):
            for p in range(2):
                k = (2 * bt + nt) * 2 + p
                a("ds_write_b64 v%d, %s offset:%d" % (vTI if p else vTR, v(ZA + 2 * k, 2), nt * 2048 + bt * 32))
    signal(5); wait(5)
    for n in range(4):
        a("ds_read_b128 %s, v%d offset:%d" % (v(AC + 4 * n, 4), vX, n * 1024))
    a.stamp()
    a("s_mov_b32 s%d, 0x%x" % (sT, Y1_OFF))
    for n in range(4):
        a("s_waitcnt lgkmcnt(%d)" % (3 - n))
        a.vm("buffer_store_dwordx4 %s, v%d, %s, s%d offen offset:%d sc1" % (v(AC + 4 * n, 4), vY, R, sT, n * 1024), "y")

def loader_side(a):
    a("v_lshrrev_b32 v6, 4, v1")
    a("s_and_b32 s28, s19, 1")
    a("s_lshl_b32 s28, s28, 2")
    a("v_add_u32 v5, s28, v6")
    a("v_lshlrev_b32 v5, 1, v5")
    a("v_and_b32 v7, 15, v1")
    a("v_xor_b32 v5, v5, v7")
    a("v_lshlrev_b32 v5, 4, v5")
    a("v_lshl_add_u32 v4, v6, 12, v5")
    a("s_and_b32 s28, s2, 63")
    a("v_and_b32 v5, 3, v1")
    a("v_lshlrev_b32 v5, 6, v5")
    a("v_add_u32 v5, s28, v5")
    a("v_lshlrev_b32 v5, 7, v5")
    a("v_add_u32 v5, 0x%x, v5" % FLAG_OFF)
    a("v_mov_b32 v6, 0")
    a("s_mul_i32 s34, s26, %d" % (36 * 36 * 1024))
    a("s_mul_i32 s28, s27, 9216")
    a("s_add_u32 s34, s34, s28")
    a("s_add_u32 s34, s34, 0x%x" % W2P_OFF)
    a("s_add_u32 s35, s24, 144")
    a("s_mul_i32 s35, s35, %d" % (36 * 1024))
    a("s_add_u32 s35, s35, s28")
    a("s_add_u32 s35, s35, 0x%x" % W2P_OFF)
    a("s_lshl_b32 s36, s16, 3")
    a("s_add_u32 s36, s36, s19")
    a("s_mul_i32 s36, s36, 144")
    a("s_mul_i32 s28, s26, 36")
    a("s_add_u32 s36, s36, s28")
    a("s_lshl_b32 s36, s36, 10")
    a("s_add_u32 s36, s36, 0x%x" % H_OFF)
    a("s_lshl_b32 s37, s24, 5")
    a("s_lshl_b32 s28, s19, 2")
    a("s_add_u32 s37, s37, s28")
    a("s_lshl_b32 s37, s37, 12")
    a("s_lshl_b32 s28, s16, 8")
    a("s_add_u32 s37, s37, s28")
    a("s_add_u32 s37, s37, 0x%x" % Y1_OFF)
    a("s_lshl_b32 s38, s19, 10")
    a("s_add_u32 s34, s34, s38")
    a("s_add_u32 s35, s35, s38")
    def spin(kind, target):
        lp = spin_begin(a, "spin")
        if kind == "prog":
            a("buffer_load_dword v8, v5, s[4:7], 0 offen sc1")
            a("s_waitcnt vmcnt(0)")
            chk_min4(a, 8, target)
        else:
            a("buffer_load_dwordx4 v[8:11], v6, s[20:23], 0 offen offset:%d sc1" % kind)
            a("s_waitcnt vmcnt(0)")
            chk_sum4(a, 8, target)
        spin_end(a, lp)
    spin(DBG_ALL, 256)
    spin("prog", 1)
    a.stamp()
    def issue(n, first):
        slot = (n % NSLOT) * KS
        ks = kmap(n) if n < 36 else None
        for t in [0, 4] + ([8] if first else []):
            a("s_add_u32 m0, s38, %d" % (slot + t * 1024))
            if n < 36: a("s_add_u32 s30, s34, %d" % (ks * 36 * 1024 + t * 1024))
            else: a("s_add_u32 s30, s35, %d" % ((n - 36) * 36 * 1024 + t * 1024))
            a.vm("buffer_load_dwordx4 v3, s[4:7], s30 offen sc1 lds", "k%d" % n)
        for u in range(2):
            a("s_add_u32 m0, s38, %d" % (slot + 9216 + u * 4096))
            if n < 36:
                a("s_add_u32 s30, s36, %d" % (ks * 1024 + u * 4 * 144 * 1024))
                a.vm("buffer_load_dwordx4 v3, s[4:7], s30 offen sc1 lds", "k%d" % n)
            else:
                a("s_add_u32 s30, s37, %d" % (((n - 36) * 32 + u * 16) * 4096))
                a.vm("buffer_load_dwordx4 v4, s[4:7], s30 offen sc1 lds", "k%d" % n)
    for n in range(4):
        issue(n, False)
        lab = a.newlabel("x8")
        a("s_cmp_eq_u32 s19, 0"); a("s_cbranch_scc0 %s" % lab)
        a("s_add_u32 m0, s38, %d" % (n * KS + 8192))
        a("s_add_u32 s30, s34, %d" % (kmap(n) * 36 * 1024 + 8192))
        a("buffer_load_dwordx4 v3, s[4:7], s30 offen sc1 lds")
        a.label(lab)
    nofft = a.newlabel("nofft"); done = a.newlabel("latedone")
    a("s_cmp_lt_u32 s2, 145")
    a("s_cbranch_scc0 %s" % nofft)
    a("s_and_b32 s52, s19, 1")
    a("s_lshr_b32 s53, s19, 1")
    a("s_lshl_b32 s54, s2, 1")
    a("s_add_u32 s54, s54, s53")
    fft(a, 54, 52, 53)
    a("s_branch %s" % done)
    a.label(nofft)
    a("s_sub_u32 s52, s2, 145")
    a("s_lshl_b32 s52, s52, 2")
    a("s_add_u32 s52, s52, s19")
    k0.job_finv(a, 16, 52, 4, 44)
    a("s_add_u32 s52, s52, 444")
    k0.job_finv(a, 40, 52, 4, 44)
    a.label(done)
    a("s_waitcnt vmcnt(0)")
    a.vm_reset()
    a.stamp()
    a("v_mov_b32 v8, %d" % LCNT_LDS)
    a("v_mov_b32 v9, 1")
    one_lane(a, ["ds_add_rtn_u32 v9, v8, v9", "s_waitcnt lgkmcnt(0)"])
    a("v_readfirstlane_b32 s28, v9")
    lab = a.newlabel("notlast")
    a("s_cmp_eq_u32 s28, 3"); a("s_cbranch_scc0 %s" % lab)
    dbg_add(a, DBG_LATE)
    a.label(lab)
    first0 = a.newlabel("loader0"); endl = a.newlabel("loadend")
    a("s_cmp_eq_u32 s19, 0")
    a("s_cbranch_scc1 %s" % first0)
    ns = a.nstamp
    for first in (False, True):
        if first: a.label(first0)
        a.nstamp = ns
        a.vm_reset()
        gates = {16: ("prog", 2), 24: ("prog", 3), 36: (DBG_LATE, 256)}
        def gate_load(n):
            kind, target = gates[n]
            if kind == "prog": a.vm("buffer_load_dword v8, v5, s[4:7], 0 offen sc1", "g%d" % n)
            else: a.vm("buffer_load_dwordx4 v[8:11], v6, s[20:23], 0 offen offset:%d sc1" % kind, "g%d" % n)
        def gate_check(n):
            kind, target = gates[n]
            ok = a.newlabel("gok")
            a.vm_wait("g%d" % n)
            if kind == "prog": chk_min4(a, 8, target)
            else: chk_sum4(a, 8, target)
            a("s_cbranch_scc1 %s" % ok)
            spin(kind, target)
            a.label(ok)
        issued = 4
        for u in range(21):
            need = min(2 * u + 2, 40)
            if need >= 4: a.vm_wait("k%d" % need)
            a("s_barrier")
            if u == 0 and first: flag_store(a, 3, 101)
            for n in range(issued, min(2 * u + 8, 40) + 1):
                if n + 2 in gates: gate_load(n + 2)
                if n in gates: gate_check(n)
                issue(n, first); issued = n + 1
        if not first: a("s_branch %s" % endl)
    a.label(endl)

def consumer(a):
    ACC = 96
    BUF = [8, 52]
    def lds_ref(addr, b0):
        k = addr // 49152
        return b0 + k, addr - k * 49152
    a("v_mov_b32 v2, v3")
    a("v_add_u32 v3, 49152, v2")
    a("v_add_u32 v4, 98304, v2")
    a("s_lshl_b32 s28, s19, 11")
    a("s_add_u32 s28, s28, 9216")
    a("v_add_u32 v5, s28, v2")
    a("v_add_u32 v6, 49152, v5")
    a("v_add_u32 v7, 98304, v5")
    for o in ["v_lshrrev_b32 v174, 5, v1", "v_lshlrev_b32 v174, 4, v174", "v_bfe_u32 v175, v1, 4, 1", "v_lshl_add_u32 v174, v175, 2, v174",
              "v_bfe_u32 v175, v1, 2, 2", "v_add_u32 v174, v174, v175", "v_bfe_u32 v175, v1, 1, 1", "s_lshl_b32 s28, s19, 2", "v_add_u32 v175, s28, v175",
              "v_and_b32 v176, 7, v174", "v_lshlrev_b32 v176, 1, v176", "v_xor_b32 v175, v175, v176", "v_xor_b32 v176, 2, v175", "v_lshlrev_b32 v174, 8, v174",
              "v_and_b32 v177, 1, v1", "v_lshl_add_u32 v174, v177, 3, v174", "v_add_u32 v174, 9216, v174", "v_lshl_add_u32 v168, v175, 4, v174",
              "v_lshl_add_u32 v171, v176, 4, v174"]:
        a(o)
    for b in (168, 171):
        a("v_add_u32 v%d, 49152, v%d" % (b + 1, b))
        a("v_add_u32 v%d, 98304, v%d" % (b + 2, b))
    def reads(n):
        B = BUF[n & 1]; slot = (n % NSLOT) * KS; out = []
        if n < 36:
            for mt in range(2):
                br, off = lds_ref(slot + mt * 1024, 5)
                out.append("ds_read_b128 %s, v%d offset:%d" % (v(B + 4 * mt, 4), br, off))
        else:
            for mt in range(2):
                for hh in range(2):
                    br, off = lds_ref(slot + hh * 2048, 168 + 3 * mt)
                    out.append("ds_read_b64_tr_b16 %s, v%d offset:%d" % (v(B + 4 * mt + 2 * hh, 2), br, off))
        for t in range(9):
            br, off = lds_ref(slot + t * 1024, 2)
            out.append("ds_read_b128 %s, v%d offset:%d" % (v(B + 8 + 4 * t, 4), br, off))
        return out
    def kstep(n, last):
        B = BUF[n & 1]
        rd = [] if last else reads(n + 1)
        a("s_waitcnt lgkmcnt(0)")
        if n % 2 == 0 and n > 0: a("s_barrier")
        k = 0
        for t in range(9):
            for mt in range(2):
                acc = ACC + (2 * t + mt) * 4
                a("v_mfma_f32_16x16x32_bf16 %s, %s, %s, %s" % (v(acc, 4), v(B + 8 + 4 * t, 4), v(B + 4 * mt, 4), "0" if n == 0 else v(acc, 4)))
                if k < len(rd): a(rd[k]); k += 1
    a("s_waitcnt vmcnt(0)")
    a.stamp()
    a("s_barrier")
    a.stamp()
    for r_ in reads(0): a(r_)
    for n in range(39):
        kstep(n, False)
        if n % 13 == 12: a.stamp()
    l39 = a.newlabel("c39"); epi = a.newlabel("cepi")
    a("s_cmp_eq_u32 s25, 1")
    a("s_cbranch_scc1 %s" % l39)
    kstep(39, False)
    kstep(40, True)
    a("s_branch %s" % epi)
    a.label(l39)
    kstep(39, True)
    a("s_barrier")
    a.label(epi)
    a.stamp()
    own = a.newlabel("own"); j2 = a.newlabel("sent")
    a("s_cmp_eq_u32 s19, s26")
    a("s_cbranch_scc1 %s" % own)
    a("s_andn2_b32 s28, s2, 0x21")
    a("s_lshr_b32 s29, s19, 1")
    a("s_or_b32 s28, s28, s29")
    a("s_and_b32 s29, s19, 1")
    a("s_lshl_b32 s29, s29, 5")
    a("s_or_b32 s28, s28, s29")
    a("s_lshl_b32 s30, s28, 7")
    a("s_add_u32 s30, s30, 0x%x" % FLAG_OFF)
    a("s_lshl_b32 s28, s28, 2")
    a("s_add_u32 s28, s28, s26")
    a("s_mul_i32 s28, s28, %d" % (18 * 1024))
    a("s_add_u32 s28, s28, 0x%x" % P_OFF)
    for tl in range(18):
        if tl % 4 == 0 and tl > 0: a("s_add_u32 s28, s28, 4096")
        a("buffer_store_dwordx4 %s, v2, s[4:7], s28 offen offset:%d sc1" % (v(ACC + 4 * tl, 4), (tl % 4) * 1024))
    a("s_lshl_b32 s29, s26, 2")
    a("s_add_u32 s30, s30, s29")
    a("s_waitcnt vmcnt(0)")
    flag_store(a, 1, 30, 16)
    a("s_branch %s" % j2)
    a.label(own)
    a("v_add_u32 v3, %d, v2" % OWN_LDS)
    a("s_nop 4")
    for tl in range(18):
        a("ds_write_b128 v3, %s offset:%d" % (v(ACC + 4 * tl, 4), tl * 1024))
    a("s_waitcnt lgkmcnt(0)")
    a.label(j2)
    a("v_mov_b32 v3, v2")

def final(a):
    a.stamp()
    a("s_load_dwordx4 s[52:55], s[0:1], %d" % KA_B2)
    a("v_and_b32 v4, 15, v1")
    a("s_lshl_b32 s28, s16, 7")
    a("s_lshl_b32 s29, s26, 5")
    a("s_add_u32 s28, s28, s29")
    a("v_add_u32 v4, s28, v4")
    a("v_mul_u32_u24 v4, 1152, v4")
    a("v_lshrrev_b32 v5, 4, v1")
    a("v_lshlrev_b32 v5, 3, v5")
    a("s_mul_i32 s28, s27, 288")
    a("v_add_u32 v5, s28, v5")
    a("v_add_u32 v4, v4, v5")
    a("s_and_b32 s28, s18, 1")
    a("s_mul_i32 s28, s28, %d" % (16 * 1152))
    a("s_lshr_b32 s29, s18, 1")
    a("s_lshl_b32 s29, s29, 5")
    a("s_add_u32 s28, s28, s29")
    a("v_add_u32 v4, s28, v4")
    a("v_add_u32 v5, s29, v5")
    a("s_lshl_b32 s30, s18, 10")
    a("v_add_u32 v6, s30, v3")
    a("v_add_u32 v7, %d, v6" % OWN_LDS)
    a("s_cmp_lt_u32 s18, 2")
    a("s_cselect_b32 s31, 0, 0x%x" % OOB)
    a("v_add_u32 v8, s31, v4")
    a("v_add_u32 v9, s31, v5")
    a("v_add_u32 v10, s31, v6")
    a("v_mov_b32 v11, 16")
    a("s_waitcnt lgkmcnt(0)")
    a.srd(44, 52, D * 2)
    a.srd(48, 54, S * D * 2)
    X, Bv, P, O = 16, 24, 32, 80
    for k in range(3):
        a("buffer_load_dwordx2 %s, v%d, s[40:43], 0 offen offset:%d" % (v(X + 2 * k, 2), 8 if k == 2 else 4, 128 * k))
        a("buffer_load_dwordx2 %s, v%d, s[44:47], 0 offen offset:%d" % (v(Bv + 2 * k, 2), 9 if k == 2 else 5, 128 * k))
    a("s_barrier")
    for k in range(3):
        a("ds_read_b128 %s, v7 offset:%d" % (v(O + 4 * k, 4), 8192 * k))
    lp = spin_begin(a, "xpoll")
    a("buffer_load_dwordx4 v[12:15], v11, s[4:7], s101 offen sc1")
    a("s_waitcnt vmcnt(0)")
    chk_sum4(a, 12, 3)
    spin_end(a, lp)
    a.stamp()
    a("s_mul_i32 s28, s2, %d" % (4 * 18 * 1024))
    a("s_add_u32 s28, s28, 0x%x" % P_OFF)
    for i in range(3):
        a("s_add_u32 s29, s26, %d" % (i + 1))
        a("s_and_b32 s29, s29, 3")
        a("s_mul_i32 s29, s29, %d" % (18 * 1024))
        a("s_add_u32 s29, s29, s28")
        for k in range(3):
            a("s_add_u32 s30, s29, %d" % (8192 * k))
            a("buffer_load_dwordx4 %s, v%d, s[4:7], s30 offen sc1" % (v(P + 12 * i + 4 * k, 4), 10 if k == 2 else 6))
    a("s_waitcnt lgkmcnt(0)")
    for k in range(3):
        for src in (Bv, X):
            a("v_lshlrev_b32 v70, 16, v%d" % (src + 2 * k))
            a("v_and_b32 v71, 0xffff0000, v%d" % (src + 2 * k))
            a("v_lshlrev_b32 v72, 16, v%d" % (src + 2 * k + 1))
            a("v_and_b32 v73, 0xffff0000, v%d" % (src + 2 * k + 1))
            for e in range(4):
                a("v_add_f32 v%d, v%d, v%d" % (O + 4 * k + e, O + 4 * k + e, 70 + e))
    for i in range(3):
        a("s_waitcnt vmcnt(%d)" % (6 - 3 * i))
        for e in range(12):
            a("v_add_f32 v%d, v%d, v%d" % (O + e, O + e, P + 12 * i + e))
    for k in range(3):
        a("v_cvt_pk_bf16_f32 v%d, v%d, v%d" % (70 + 2 * k, O + 4 * k, O + 4 * k + 1))
        a("v_cvt_pk_bf16_f32 v%d, v%d, v%d" % (71 + 2 * k, O + 4 * k + 2, O + 4 * k + 3))
        a("buffer_store_dwordx2 %s, v%d, s[48:51], 0 offen offset:%d" % (v(70 + 2 * k, 2), 8 if k == 2 else 4, 128 * k))

def gen_mega(a):
    return k1d.gen_k1(a, Hooks(), "mega_kernel")

if __name__ == "__main__":
    import gen
    gen.build([gen_mega], "m1.s")
    gen.build([gen_mega], "m1t.s", True)
```

```python
import struct

def f32bits(x):
    return struct.unpack("<I", struct.pack("<f", x))[0]

def v(i, n=1):
    return "v%d" % i if n == 1 else "v[%d:%d]" % (i, i + n - 1)

def s(i, n=1):
    return "s%d" % i if n == 1 else "s[%d:%d]" % (i, i + n - 1)

class Asm:
    def __init__(self):
        self.L = []
        self.uid = 0
    def __call__(self, line):
        self.L.append("  " + line)
    def label(self, name):
        self.L.append(name + ":")
    def raw(self, line):
        self.L.append(line)
    def c(self, text):
        self.L.append("  ; " + text)
    def newlabel(self, base):
        self.uid += 1
        return "L_%s_%d" % (base, self.uid)
    def text(self):
        return "\n".join(self.L) + "\n"
    def srd(self, d, base, nbytes):
        self("s_mov_b32 s%d, s%d" % (d, base))
        self("s_and_b32 s%d, s%d, 0xffff" % (d + 1, base + 1))
        self("s_mov_b32 s%d, 0x%x" % (d + 2, nbytes))
        self("s_mov_b32 s%d, 0x00020000" % (d + 3))
    def vm_reset(self):
        self.vmq = []
    def vm(self, line, tag=None):
        self(line); self.vmq.append(tag)
    def vm_count_after(self, tag):
        idx = max(i for i, t in enumerate(self.vmq) if t == tag)
        return len(self.vmq) - 1 - idx
    def vm_wait(self, tag, extra=""):
        n = self.vm_count_after(tag)
        n = min(n, 63)
        self("s_waitcnt vmcnt(%d)%s" % (n, extra))
    def vm_mark(self, name):
        if not hasattr(self, "marks"): self.marks = {}
        self.marks[name] = len(self.vmq)
    def vm_wait_mark(self, name):
        self("s_waitcnt vmcnt(%d)" % min(63, len(self.vmq) - self.marks[name]))
    def lg_reset(self):
        self.lgq = []
    def ds(self, line, tag=None):
        self(line); self.lgq.append(tag)
    def lg_wait(self, tag):
        idx = [i for i, t in enumerate(self.lgq) if t == tag]
        if not idx: return
        n = min(len(self.lgq) - 1 - max(idx), 15)
        self("s_waitcnt lgkmcnt(%d)" % n)
        self.lgq = self.lgq[len(self.lgq) - n:] if n else []
    def lg_all(self):
        self("s_waitcnt lgkmcnt(0)"); self.lgq = []
    stamps_on = False
    def stamp(self, real=False):
        if not self.stamps_on: return
        i = self.nstamp; self.nstamp += 1
        assert i < 32
        self("%s s[98:99]" % ("s_memrealtime" if real else "s_memtime"))
        self("s_waitcnt lgkmcnt(0)")
        self("s_mov_b32 s%d, s98" % (60 + i))
        self.lgq = []
    def stamp_flush(self, srd, base_off, s_wave, vt=250):
        if not self.stamps_on: return
        self("s_lshl_b32 s58, s2, 4")
        self("s_add_u32 s58, s58, s%d" % s_wave)
        self("s_lshl_b32 s58, s58, 7")
        self("s_add_u32 s58, s58, 0x%x" % base_off)
        self("v_mov_b32 v%d, 0" % vt)
        for i in range(self.nstamp):
            self("v_mov_b32 v%d, s%d" % (vt + 1, 60 + i))
            self("buffer_store_dword v%d, v%d, s[%d:%d], s58 offen offset:%d" % (vt + 1, vt, srd, srd + 3, 4 * i))
            self("s_nop 1")
    def kernel_begin(self, name):
        self.nstamp = 0
        self.raw(".globl %s" % name)
        self.raw(".p2align 8")
        self.raw(".type %s,@function" % name)
        self.label(name)

def kd(name, vgpr, sgpr=102, accum=None):
    if accum is None:
        accum = (vgpr + 3) // 4 * 4
    return "\n".join([
        ".p2align 6",
        ".amdhsa_kernel %s" % name,
        "  .amdhsa_next_free_vgpr %d" % vgpr,
        "  .amdhsa_next_free_sgpr %d" % sgpr,
        "  .amdhsa_accum_offset %d" % accum,
        "  .amdhsa_group_segment_fixed_size 0",
        "  .amdhsa_kernarg_size 88",
        "  .amdhsa_user_sgpr_count 2",
        "  .amdhsa_user_sgpr_kernarg_segment_ptr 1",
        "  .amdhsa_system_sgpr_workgroup_id_x 1",
        ".end_amdhsa_kernel",
    ]) + "\n"
```

```python
import os
from asmlib import *
from layout import *
from k1 import ids
import k0

UNIT = 36864
SP = 4 * UNIT
ROWP_LDS = SP
AUG_LDS = SP + 512
ZERO_LDS = AUG_LDS + 3456
FLG_LDS = ZERO_LDS + 64
STAT_LDS = SP + 4096
CSF_LDS = SP + 14336
K1_LDS = SP + 16384
WTS = STAT_LDS
SCR = STAT_LDS

XN = 88
ACCS = [16, 32]
FR = 48
NFR = 6
T = 72
XA = 232
AUGR = 236
EX = 240
NV = 256
OOB = 0x7ff00000
SC = os.environ.get("K1_SC", " sc1")
C0 = -2.0 * 1.4426950408889634 * 0.7978845608028654

def emit_op(a, o):
    if isinstance(o, str): a(o)
    elif o[0] == "vm": a.vm(o[1], o[2])
    elif o[0] == "ds": a.ds(o[1], o[2])
    elif o[0] == "vwait": a.vm_wait(o[1])
    elif o[0] == "lwait": a.lg_wait(o[1])
    elif o[0] == "call": o[1]()
    elif o[0] == "cond":
        lab = a.newlabel("skip")
        a(o[1]); a("s_cbranch_scc0 %s" % lab)
        for x in o[2]: a(x)
        a.label(lab)
        if o[3]: a.vm_mark(o[3])
    elif o[0] == "mwait": a.vm_wait_mark(o[1])
    elif o[0] == "grp":
        for x in o[1]: emit_op(a, x)
    else: raise ValueError(o)

def split3(c, t, w0, w1, last):
    return ["v_cvt_pk_bf16_f32 v%d, v%d, v%d" % (t, c, c),
            "v_lshlrev_b32 v%d, 16, v%d" % (t, t),
            "v_sub_f32 v%d, v%d, v%d" % (t, c, t),
            "v_cvt_pk_bf16_f32 v%d, v%d, v%d" % (w0, c, t),
            "v_and_b32 v%d, 0xffff0000, v%d" % (c, w0),
            "v_sub_f32 v%d, v%d, v%d" % (t, t, c),
            "v_cvt_pk_bf16_f32 v%d, v%d, %s" % (w1, t, last)]

def gen_k1(a, hooks=None, name="k1_kernel"):
    a.kernel_begin(name)
    a("s_cmp_ge_u32 s2, 256")
    a("s_cbranch_scc1 L_k1_end")
    a.lg_reset()
    a.stamp()
    a.stamp(True)
    a("s_load_dwordx4 s[20:23], s[0:1], %d" % KA_X)
    a("s_load_dwordx2 s[24:25], s[0:1], %d" % KA_WI)
    a("s_load_dwordx4 s[36:39], s[0:1], %d" % KA_W1)
    a("s_load_dwordx2 s[56:57], s[0:1], %d" % KA_W2)
    a("s_load_dwordx4 s[52:55], s[0:1], %d" % KA_DBG)
    ids(a)
    a("s_lshl_b32 s28, s16, 7")
    a("s_lshl_b32 s29, s19, 5")
    a("s_add_u32 s33, s28, s29")
    a("v_and_b32 v11, 31, v1")
    a("v_lshrrev_b32 v14, 5, v1")
    a("v_lshlrev_b32 v3, 4, v1")
    a("v_mov_b32 v15, 0x%x" % OOB)
    a("s_lshl_b32 s34, s16, 3")
    a("s_add_u32 s34, s34, s18")
    a("s_mul_i32 s34, s34, %d" % (16 * 1152))
    a("s_mul_i32 s3, s18, %d" % (18 * 1024))
    a("v_lshrrev_b32 v4, 3, v1")
    a("v_lshrrev_b32 v5, 1, v4")
    a("v_and_b32 v6, 7, v1")
    a("v_xor_b32 v5, v5, v6")
    a("v_mul_u32_u24 v4, 1152, v4")
    a("v_lshl_add_u32 v8, v5, 4, v4")
    a("v_xor_b32 v9, 64, v8")
    a("s_waitcnt lgkmcnt(0)")
    a.srd(40, 20, S * D * 2)
    a.vm_reset()
    def xdma(i):
        return ["s_add_u32 m0, s3, %d" % (i * 1024), "s_add_u32 s30, s34, %d" % ((i // 9) * 9216 + (i % 9) * 128),
                ("vm", "buffer_load_dwordx4 v%d, s[40:43], s30 offen lds" % (8 + i // 9), "x")]
    a.srd(8, 36, D * F * 2)
    a("s_mul_i32 s35, s17, 576")
    CJ = XN + 40
    nocs = a.newlabel("nocs")
    a("s_cmp_lt_u32 s18, 6")
    a("s_cbranch_scc1 %s" % nocs)
    a("v_subrev_u32 v4, 384, v0")
    a("v_mul_u32_u24 v12, 1821, v4")
    a("v_lshrrev_b32 v12, 16, v12")
    a("v_mul_u32_u24 v13, 36, v12")
    a("v_sub_u32 v13, v4, v13")
    a("v_mul_u32_u24 v%d, 1152, v12" % (CJ + 48))
    a("v_lshl_add_u32 v%d, v13, 5, v%d" % (CJ + 48, CJ + 48))
    a("v_add_u32 v%d, %d, v%d" % (CJ + 48, AUG_LDS, CJ + 48))
    a("s_mov_b32 s29, %d" % (12 * 9216))
    a("v_mul_lo_u32 v12, v12, s29")
    a("v_lshl_add_u32 v12, v13, 4, v12")
    a("v_cmp_gt_u32 vcc, 108, v4")
    a("s_mul_i32 s28, s16, %d" % (36 * 9216))
    a("s_add_u32 s28, s28, s35")
    a("v_cndmask_b32 v12, v15, v12, vcc")
    for i in range(12):
        a("buffer_load_dwordx4 %s, v12, s[8:11], s28 offen" % v(CJ + 4 * i, 4))
        if i < 11: a("s_add_u32 s28, s28, 9216")
    a.label(nocs)
    NX0 = 6
    for i in range(NX0):
        for o in xdma(i): emit_op(a, o)
    a.srd(4, 54, WS_USED)
    a.srd(12, 38, F * 2)
    a.srd(44, 22, S * 289 * 2)
    a.srd(48, 24, S * 289 * 2)
    a("s_mov_b32 s58, s52"); a("s_mov_b32 s59, s53")
    a.srd(52, 56, F * D * 2)
    a.srd(20, 58, 256)
    lab = a.newlabel("nonce")
    a("s_or_b32 s28, s2, s18")
    a("s_cmp_eq_u32 s28, 0")
    a("s_cbranch_scc0 %s" % lab)
    a("s_memrealtime s[28:29]")
    a("s_waitcnt lgkmcnt(0)")
    a("s_lshl_b32 s28, s28, 3")
    a("s_or_b32 s28, s28, 8")
    a("v_mov_b32 v16, s28")
    a("v_mov_b32 v17, 0")
    a("s_mov_b64 exec, 1")
    a("buffer_store_dword v16, v17, s[20:23], 0 offen sc1")
    a("s_mov_b64 exec, -1")
    a.label(lab)
    a("s_lshl_b32 s101, s2, 4")
    a("s_add_u32 s101, s101, 0x%x" % FLAG_OFF)
    a("v_bfe_u32 v13, v1, 2, 3")
    a("v_and_b32 v12, 3, v1")
    a("v_lshlrev_b32 v12, 4, v12")
    a("v_lshl_add_u32 v12, v14, 6, v12")
    a("v_mul_u32_u24 v2, 9216, v13")
    a("v_add_u32 v2, v2, v12")
    a("v_cmp_eq_u32 s[24:25], 1, v14")
    a("s_cmp_eq_u32 s26, 1")
    a("s_cbranch_scc1 L_k1_g1")
    ns0 = a.nstamp
    vm0 = list(a.vmq)
    FG = 16

    def group(g):
        a.nstamp = ns0
        a.vmq = list(vm0)
        a.lg_reset()
        a("s_mul_i32 s36, s17, 36")
        a("s_add_u32 s36, s36, %d" % (32 * g))
        a("v_add_u32 v%d, s36, v11" % T)
        a("v_lshrrev_b32 v%d, 1, v%d" % (T + 1, T))
        a("v_and_b32 v%d, 1, v%d" % (T + 2, T))
        a("v_mul_u32_u24 v%d, 144, v%d" % (T + 2, T + 2))
        a("v_cmp_eq_u32 vcc, 1, v%d" % T)
        a("v_mov_b32 v%d, 288" % (T + 3))
        a("s_nop 0")
        a("v_cndmask_b32 v%d, v%d, v%d, vcc" % (T + 1, T + 1, T + 3))
        a("v_cndmask_b32 v%d, v%d, 0, vcc" % (T + 2, T + 2))
        a("s_mul_i32 s37, s19, 144")
        a("v_lshlrev_b32 v%d, 3, v14" % (T + 3))
        a("v_add_u32 v%d, s37, v%d" % (T + 3, T + 3))
        a("v_mad_u32_u24 v%d, v%d, v%d, v%d" % (T + 3, T + 3, T + 1, T + 2))
        def mod576(x, t):
            a("v_cvt_f32_u32 v%d, v%d" % (t, x))
            a("v_mul_f32 v%d, 0x%x, v%d" % (t, f32bits(1.0 / 576), t))
            a("v_cvt_u32_f32 v%d, v%d" % (t, t))
            a("v_mul_u32_u24 v%d, 576, v%d" % (t, t))
            a("v_sub_u32 v%d, v%d, v%d" % (x, x, t))
        mod576(T + 3, T + 4)
        a("v_mul_u32_u24 v%d, 15, v%d" % (T + 5, T + 1))
        mod576(T + 5, T + 4)
        a("v_cvt_f32_u32 v%d, v%d" % (T + 6, T + 1))
        a("v_mul_f32 v%d, 0x%x, v%d" % (T + 6, f32bits(1.0 / 576), T + 6))
        a("v_cos_f32 v%d, v%d" % (T + 6, T + 6))
        a("v_mov_b32 v%d, 0" % (T + 7))
        a("v_add_f32 v%d, v%d, v%d" % (T + 6, T + 6, T + 6))
        a("v_mov_b32 v%d, 0x3f803f80" % (T + 2))
        rN, rJ, rJ15, rC = T + 3, T + 1, T + 5, T + 6
        for i in range(9):
            for j in range(2):
                tv = T + 8 + j
                a("v_cvt_f32_u32 v%d, v%d" % (tv, rN))
                a("v_add_u32 v%d, v%d, v%d" % (rN, rN, rJ if j == 0 else rJ15))
                a("v_mul_f32 v%d, 0x%x, v%d" % (tv, f32bits(1.0 / 576), tv))
                a("v_subrev_u32 v%d, 576, v%d" % (T + 4, rN))
                a("v_cos_f32 v%d, v%d" % (tv, tv))
                a("v_min_u32 v%d, v%d, v%d" % (rN, rN, T + 4))
            for j in range(2, 8):
                a("v_fma_f32 v%d, v%d, v%d, -v%d" % (T + 8 + j, rC, T + 7 + j, T + 6 + j))
                if j % 2 == 1:
                    k = (j - 3) // 2
                    a("v_cvt_pk_bf16_f32 v%d, v%d, v%d" % (FG + 4 * i + k, T + 8 + 2 * k, T + 8 + 2 * k + 1))
            a("v_cvt_pk_bf16_f32 v%d, v%d, v%d" % (FG + 4 * i + 3, T + 14, T + 15))
            for k in range(4):
                a("v_dot2c_f32_bf16 v%d, v%d, v%d" % (T + 7, FG + 4 * i + k, T + 2))
            for xi in range(NX0 + (12 * i) // 9, NX0 + (12 * (i + 1)) // 9):
                for o in xdma(xi): emit_op(a, o)
        a("s_lshl_b32 s36, s19, 8")
        a("s_add_u32 s36, s36, %d" % (CSF_LDS + 1024 * g))
        a("v_lshlrev_b32 v12, 2, v1")
        a("v_add_u32 v12, s36, v12")
        a("ds_write_b32 v12, v%d" % (T + 7))
        a("s_lshl_b32 s36, s18, 8")
        a("s_add_u32 s36, s36, s2")
        if g == 0:
            a("v_lshlrev_b32 v12, 2, v0")
            a("v_add_u32 v12, %d, v12" % ZERO_LDS)
            a("v_mov_b32 v13, 0")
            a("v_cmp_gt_u32 vcc, 32, v0")
            a("s_and_saveexec_b64 s[36:37], vcc")
            a("ds_write_b32 v12, v13")
            a("s_mov_b64 exec, s[36:37]")
        else:
            a("s_sub_u32 s36, s36, 1024")
            k0.job_tab(a, XN + 16, 36, 4, 37)
            nocs = a.newlabel("nocs2")
            a("s_cmp_lt_u32 s18, 6")
            a("s_cbranch_scc1 %s" % nocs)
            a("s_waitcnt vmcnt(%d)" % len(a.vmq))
            for k in range(4):
                a("v_lshlrev_b32 v%d, 16, v%d" % (T + 2 * k, CJ + k))
                a("v_and_b32 v%d, 0xffff0000, v%d" % (T + 2 * k + 1, CJ + k))
            for i in range(1, 12):
                for k in range(4):
                    a("v_lshlrev_b32 v%d, 16, v%d" % (T + 8 + 2 * k, CJ + 4 * i + k))
                    a("v_and_b32 v%d, 0xffff0000, v%d" % (T + 9 + 2 * k, CJ + 4 * i + k))
                for k in range(8):
                    a("v_add_f32 v%d, v%d, v%d" % (T + k, T + k, T + 8 + k))
            a("v_cmp_gt_u32 vcc, 492, v0")
            a("s_and_saveexec_b64 s[36:37], vcc")
            a("ds_write_b128 v%d, %s" % (CJ + 48, v(T, 4)))
            a("ds_write_b128 v%d, %s offset:16" % (CJ + 48, v(T + 4, 4)))
            a("s_mov_b64 exec, s[36:37]")
            a.label(nocs)
        for o in ["s_cmp_ge_u32 s18, 3", "s_cselect_b32 s38, 3, 0", "s_sub_u32 s38, s18, s38", "s_lshl_b32 s38, s38, 12", "s_add_u32 s38, s38, %d" % SCR,
                  "s_lshl_b32 s56, s18, 8", "s_add_u32 s56, s56, s2",
                  "s_mul_hi_u32 s32, s56, 0x%x" % ((2**32 + 8) // 9), "s_mul_i32 s28, s32, 9", "s_sub_u32 s28, s56, s28",
                  "s_mul_i32 s3, s32, %d" % (32 * 1152), "s_lshl_b32 s57, s28, 7", "s_add_u32 s3, s3, s57",
                  "v_lshrrev_b32 v4, 3, v1", "v_mul_u32_u24 v4, 1152, v4", "v_and_b32 v5, 7, v1",
                  "v_lshl_add_u32 v%d, v5, 4, v4" % (EX + 8),
                  "s_mul_i32 s32, s32, 36", "s_lshl_b32 s28, s28, 2", "s_add_u32 s32, s32, s28", "s_lshl_b32 s32, s32, 10",
                  "s_add_u32 s32, s32, 0x%x" % W2P_OFF,
                  "s_mov_b32 s100, s56",
                  "s_and_b32 s56, s2, 31", "s_lshr_b32 s57, s2, 5",
                  "s_lshr_b32 s28, s56, 4", "s_lshl_b32 s28, s28, 4", "s_and_b32 s36, s56, 15", "s_lshl_b32 s36, s36, 7", "s_add_u32 s28, s28, s36",
                  "s_mul_i32 s28, s28, 578", "s_mul_i32 s36, s57, 72", "s_add_u32 s28, s28, s36",
                  "v_mul_u32_u24 v4, 13108, v0", "v_lshrrev_b32 v4, 16, v4",
                  "v_mul_u32_u24 v5, 5, v4", "v_sub_u32 v5, v0, v5",
                  "v_lshrrev_b32 v6, 4, v4", "v_lshlrev_b32 v6, 5, v6", "v_and_b32 v7, 15, v4",
                  "v_add_u32 v6, v6, v7", "v_mul_u32_u24 v6, 578, v6",
                  "v_lshl_add_u32 v6, v5, 4, v6", "v_and_b32 v4, 1, v4", "v_lshlrev_b32 v4, 1, v4",
                  "v_sub_u32 v6, v6, v4", "v_add_u32 v%d, s28, v6" % (EX + 9),
                  "s_mul_i32 s57, s57, %d" % (36 * 8192), "s_lshl_b32 s56, s56, 8",
                  "s_add_u32 s56, s56, s57", "s_add_u32 s56, s56, 0x%x" % WT_OFF]:
            a(o)
        a("s_lshl_b32 s36, s19, 5")
        a("v_add_u32 v13, s36, v11")
        a("v_bfe_u32 v12, v13, 1, 3")
        a("v_lshrrev_b32 v10, 3, v13")
        a("v_mul_u32_u24 v10, 9216, v10")
        a("v_and_b32 v9, 7, v13")
        a("v_lshl_add_u32 v10, v9, 7, v10")
        for q in range(4):
            a("v_add_u32 v%d, %d, v14" % (4 + q, 2 * q))
            a("v_xor_b32 v%d, v%d, v12" % (4 + q, 4 + q))
            a("v_lshl_add_u32 v%d, v%d, 4, v10" % (4 + q, 4 + q))
        a("v_lshlrev_b32 v9, 5, v13")
        a("v_add_u32 v9, %d, v9" % STAT_LDS)
        a("v_lshl_add_u32 v8, v14, 3, v9")
        a.vm_wait("x", " lgkmcnt(0)")
        a("s_barrier")
        a.stamp()
        own = list(range(18 * g, 18 * g + 18)); oth = list(range(18 * (1 - g), 18 * (1 - g) + 18))
        def xrd(s_): a("ds_read_b128 %s, v%d offset:%d" % (v(XN + 4 * s_, 4), 4 + (s_ & 3), (s_ >> 2) * 1024))
        if g == 1:
            pub = a.newlabel("nopub")
            a("s_cmp_eq_u32 s18, 7")
            a("s_cbranch_scc0 %s" % pub)
            a("v_lshlrev_b32 v12, 5, v1")
            a("v_add_u32 v13, %d, v12" % AUG_LDS)
            for kk in range(3):
                for hh in range(2):
                    a("ds_read_b128 %s, v13 offset:%d" % (v(XA + 8 * kk + 4 * hh if kk < 2 else T + 4 * hh, 4), kk * 1152 + hh * 16))
            a("s_lshl_b32 s36, s17, 4")
            a("s_add_u32 s36, s36, s16")
            a("s_mul_i32 s36, s36, 1152")
            a("s_add_u32 s36, s36, 0x%x" % CS_OFF)
            a("v_cmp_gt_u32 vcc, 36, v1")
            a("s_nop 1")
            a("v_cndmask_b32 v12, v15, v12, vcc")
            a("s_waitcnt lgkmcnt(0)")
            for i in range(8):
                a("v_add_f32 v%d, v%d, v%d" % (XA + i, XA + i, XA + 8 + i))
                a("v_add_f32 v%d, v%d, v%d" % (XA + i, XA + i, T + i))
            a("buffer_store_dwordx4 %s, v12, s[4:7], s36 offen sc1" % v(XA, 4))
            a("buffer_store_dwordx4 %s, v12, s[4:7], s36 offen offset:16 sc1" % v(XA + 4, 4))
            a.label(pub)
        csmark = len(a.vmq)
        a("v_mov_b32 v253, 0")
        a.vm("buffer_load_dword v255, v253, s[20:23], 0 offen sc1", "nonce")
        a("v_mul_u32_u24 v12, 1152, v11")
        emit_op(a, ("cond", "s_cmp_lt_u32 s100, 1296", ["buffer_load_dword v254, v12, s[52:55], s3 offen"], None))
        for s_ in own: xrd(s_)
        for i in range(8): a("v_mov_b32 v%d, 0" % (T + 8 + i))
        a("v_mov_b32 v%d, 0x3f803f80" % (T + 7))
        for n in range(18):
            xrd(oth[n])
            a("s_waitcnt lgkmcnt(15)")
            for kk in range(4):
                x = XN + 4 * own[n] + kk
                a("v_dot2c_f32_bf16 v%d, v%d, v%d" % (T + 8 + kk, x, T + 7))
                a("v_dot2c_f32_bf16 v%d, v%d, v%d" % (T + 12 + kk, x, x))
        a("s_nop 2")
        for A in (T + 8, T + 12):
            a("v_add_f32 v%d, v%d, v%d" % (A, A, A + 1))
            a("v_add_f32 v%d, v%d, v%d" % (A + 2, A + 2, A + 3))
        a("v_add_f32 v%d, v%d, v%d" % (T + 8, T + 8, T + 10))
        a("v_add_f32 v%d, v%d, v%d" % (T + 9, T + 12, T + 14))
        a("ds_write_b64 v8, %s offset:%d" % (v(T + 8, 2), 16 * g))
        a("v_bfe_u32 v13, v1, 2, 2")
        a("v_lshlrev_b32 v12, 6, v13")
        a("v_bfe_u32 v13, v1, 4, 1")
        a("v_lshl_add_u32 v12, v13, 5, v12")
        a("v_and_b32 v13, 3, v1")
        a("v_lshl_add_u32 v12, v13, 3, v12")
        a("v_lshl_add_u32 v12, v14, 10, v12")
        a("v_add_u32 v12, %d, v12" % (512 * g))
        a("s_lshr_b32 s36, s19, 1")
        a("s_mul_i32 s36, s36, %d" % UNIT)
        a("s_and_b32 s37, s19, 1")
        a("s_mul_i32 s37, s37, %d" % (9 * 2048))
        a("s_add_u32 s36, s36, s37")
        a("v_add_u32 v13, s36, v3")
        a("s_lshl_b32 s29, s27, 6")
        a("s_add_u32 s35, s35, s29")
        a("s_mul_i32 s34, s18, %d" % (8 * 9216))
        a("s_add_u32 s35, s35, s34")
        a("s_lshl_b32 s34, s18, 10")
        a("s_mul_i32 s29, s27, 640")
        a("s_sub_u32 s31, s35, s29")
        a("s_waitcnt lgkmcnt(0)")
        a("s_barrier")
        a("ds_read_b128 %s, v9" % v(T, 4))
        a("ds_read_b128 %s, v9 offset:16" % v(T + 4, 4))
        for i in range(9):
            a("ds_write_b128 v13, %s offset:%d" % (v(FG + 4 * i, 4), i * 2048 + g * 1024))
        a("v_mov_b32 v4, v12")
        a("v_add_u32 v5, 49152, v12")
        a("v_add_u32 v6, 98304, v12")
        ndma = 5 if g == 0 else 4
        def dma_list(u):
            pi, kh = (u - 2) >> 1, u & 1
            out = []
            for n in range(ndma):
                off = 128 * pi + (kh * 288 + n * 64) * 9216
                out.append(("grp", ["s_add_u32 m0, s34, %d" % ((u % 4) * UNIT + n * 8192),
                                    "s_add_u32 s30, s%d, %d" % (35 if pi < 4 else 31, off),
                                    ("vm", "buffer_load_dwordx4 v2, s[8:11], s30 offen lds", "u%d" % u)]))
            return out
        a("s_waitcnt lgkmcnt(9)")
        for o in ["v_add_f32 v%d, v%d, v%d" % (T, T, T + 2), "v_add_f32 v%d, v%d, v%d" % (T + 4, T + 4, T + 6),
                  "v_add_f32 v%d, v%d, v%d" % (T + 1, T + 1, T + 3), "v_add_f32 v%d, v%d, v%d" % (T + 5, T + 5, T + 7),
                  "v_add_f32 v%d, v%d, v%d" % (T, T, T + 4), "v_add_f32 v%d, v%d, v%d" % (T + 1, T + 1, T + 5),
                  "v_mul_f32 v%d, 0x%x, v%d" % (T, f32bits(1.0 / 576), T),
                  "v_mul_f32 v%d, 0x%x, v%d" % (T + 1, f32bits(1.0 / 576), T + 1),
                  "v_fma_f32 v%d, -v%d, v%d, v%d" % (T + 1, T, T, T + 1),
                  "v_max_f32 v%d, 0, v%d" % (T + 1, T + 1),
                  "v_cvt_pk_bf16_f32 v%d, -v%d, v%d" % (T + 2, T, T + 1),
                  "v_and_b32 v%d, 0xffff0000, v%d" % (T + 1, T + 2),
                  "v_add_f32 v%d, 0x%x, v%d" % (T + 1, f32bits(1e-5), T + 1),
                  "v_cvt_pk_bf16_f32 v%d, v%d, v%d" % (T + 1, T + 1, T + 1),
                  "v_lshlrev_b32 v%d, 16, v%d" % (T + 1, T + 1),
                  "v_sqrt_f32 v%d, v%d" % (T + 1, T + 1),
                  "v_and_b32 v%d, 0xffff, v%d" % (T + 2, T + 2),
                  "v_cvt_pk_bf16_f32 v%d, v%d, v%d" % (T + 1, T + 1, T + 1),
                  "v_lshl_or_b32 v%d, v%d, 16, v%d" % (XA, T + 2, T + 2),
                  "v_and_b32 v%d, 0xffff0000, v%d" % (T + 3, T + 1),
                  "v_or_b32 v%d, v%d, v%d" % (XA + 1, T + 3, T + 2),
                  "v_rcp_f32 v%d, v%d" % (T, T + 3),
                  "v_lshrrev_b32 v%d, 3, v9" % (T + 4),
                  "v_add_u32 v%d, %d, v%d" % (T + 4, ROWP_LDS - STAT_LDS // 8, T + 4),
                  "v_mul_f32 v%d, 0x%x, v%d" % (T + 1, f32bits(1.0 / 24), T),
                  "ds_write_b32 v%d, v%d" % (T + 4, T + 1),
                  "v_add_u32 v13, %d, v3" % (1024 * g)]:
            a(o)
        a("s_waitcnt lgkmcnt(0)")
        a("s_barrier")
        ok = a.newlabel("nok"); lp = a.newlabel("nlp")
        a.vm_wait("nonce")
        a("v_readfirstlane_b32 s59, v255")
        a("s_cmp_lg_u32 s59, 0")
        a("s_cbranch_scc1 %s" % ok)
        a("s_mov_b32 s28, 0")
        a.label(lp)
        a("s_sleep 8")
        a("buffer_load_dword v255, v253, s[20:23], 0 offen sc1")
        a("s_waitcnt vmcnt(0)")
        a("v_readfirstlane_b32 s59, v255")
        a("s_cmp_lg_u32 s59, 0")
        a("s_cbranch_scc1 %s" % ok)
        a("s_add_u32 s28, s28, 1")
        a("s_cmp_lt_u32 s28, 0x40000")
        a("s_cbranch_scc1 %s" % lp)
        a.label(ok)
        a.lg_reset()
        a.stamp()

        def prog_side():
            wl = []
            for arr in range(2):
                wl += ["s_add_u32 m0, s34, %d" % (WTS + arr * 5120), "s_nop 0",
                       "buffer_load_dwordx4 v%d, s[%d:%d], 0 offen lds" % (EX + 9, 44 + 4 * arr, 47 + 4 * arr)]
            ops = [("cond", "s_cmp_lt_u32 s18, 5", wl, "wt")]
            ops += dma_list(2)
            ops += ["v_mov_b32 v%d, 0" % (XA + 2), "v_mov_b32 v%d, 0" % (XA + 3), "v_mov_b32 v%d, 0" % (AUGR + 2), "v_mov_b32 v%d, 0" % (AUGR + 3),
                   "v_cndmask_b32 v%d, v%d, 0, s[24:25]" % (XA, XA), "v_cndmask_b32 v%d, v%d, 0, s[24:25]" % (XA + 1, XA + 1),
                   "v_mul_f32 v9, 0x%x, v%d" % (f32bits(C0), T),
                   "v_mul_f32 v10, v%d, v%d" % (T, T), "v_mul_f32 v10, v10, v%d" % T, "v_mul_f32 v10, 0x%x, v10" % f32bits(C0 * 0.044715)]
            ops += ["s_lshr_b32 s29, s33, 4", "v_bfe_u32 v%d, v1, 4, 1" % (T + 1), "v_add_u32 v%d, s29, v%d" % (T + 1, T + 1), "s_mov_b32 s29, %d" % (144 * 1024),
                    "v_mul_lo_u32 v7, v%d, s29" % (T + 1), "v_lshl_add_u32 v7, v14, 8, v7", "v_and_b32 v%d, 15, v1" % (T + 1), "v_lshl_add_u32 v7, v%d, 4, v7" % (T + 1),
                    "v_add_u32 v7, 0x%x, v7" % H_OFF,
                    "v_add_u32 v%d, %d, v11" % (T + 1, 32 * g), "s_mul_i32 s29, s17, 36", "v_add_u32 v12, s29, v%d" % (T + 1), "v_lshlrev_b32 v12, 12, v12",
                    "v_lshl_add_u32 v12, v14, 4, v12", "s_lshl_b32 s29, s33, 1", "s_add_u32 s29, s29, 0x%x" % X1_OFF, "v_add_u32 v12, s29, v12",
                    ("grp", ["v_cmp_gt_u32 vcc, 36, v%d" % (T + 1), "s_mul_i32 s39, s17, 9", "s_nop 0", "v_cndmask_b32 v12, v15, v12, vcc"])]
            ops += ["v_lshlrev_b32 v%d, 2, v11" % (T + 1), "v_add_u32 v%d, %d, v%d" % (T + 1, CSF_LDS + 1024 * g, T + 1)]
            for k in range(8): ops.append(("ds", "ds_read_b32 v%d, v%d offset:%d" % (T + 8 + k, T + 1, 128 * k), "csf"))
            ops += ["v_mov_b32 v11, v%d" % (T + 3),
                    "v_and_b32 v8, 31, v1", "v_lshlrev_b32 v8, 3, v8", "v_add_u32 v8, %d, v8" % AUG_LDS, "v_mov_b32 v%d, %d" % (T + 1, ZERO_LDS),
                    "v_cndmask_b32 v8, v8, v%d, s[24:25]" % (T + 1), ("lwait", "csf")]
            for k in range(1, 8): ops.append("v_add_f32 v%d, v%d, v%d" % (T + 8, T + 8, T + 8 + k))
            ops += split3(T + 8, T + 9, AUGR, AUGR + 1, "0")
            ops += ["v_cndmask_b32 v%d, v%d, 0, s[24:25]" % (AUGR, AUGR), "v_cndmask_b32 v%d, v%d, 0, s[24:25]" % (AUGR + 1, AUGR + 1)]
            return ops
        def prog_w2(rnd):
            cmpa = "s_cmp_eq_u32 s57, %d" % (rnd + 1)
            ld = []
            for n2 in range(2):
                wl = []
                for n in (2 * n2, 2 * n2 + 1):
                    wl += ["s_add_u32 m0, s38, %d" % (n * 1024), "s_add_u32 s28, s3, %d" % (n * 8 * 1152),
                           "buffer_load_dwordx4 v%d, s[52:55], s28 offen lds" % (EX + 8)]
                ld.append(("cond", cmpa, wl, "w2p"))
            fin = [("mwait", "w2p")]
            for hf in range(2):
                for nt in (2 * hf, 2 * hf + 1):
                    for h in range(2):
                        fin.append(("ds", "ds_read_b64_tr_b16 %s, v%d offset:%d" % (v(EX + 4 * (nt & 1) + 2 * h, 2), EX + 9, nt * 32 + h * 1024), "w2r"))
                fin.append(("lwait", "w2r"))
                fin.append(("cond", cmpa, ["buffer_store_dwordx4 %s, v3, s[4:7], s32 offen offset:%d%s" % (v(EX + 4 * (nt & 1), 4), nt * 1024, SC) for nt in (2 * hf, 2 * hf + 1)], "w2st"))
                fin.append("s_nop 0")
            return ld, fin
        def prog_w2addr():
            return ["v_lshrrev_b32 v%d, 5, v1" % (EX + 9), "v_lshlrev_b32 v%d, 4, v%d" % (EX + 9, EX + 9), "v_bfe_u32 v%d, v1, 4, 1" % (EX + 10),
                    "v_lshl_add_u32 v%d, v%d, 2, v%d" % (EX + 9, EX + 10, EX + 9), "v_bfe_u32 v%d, v1, 2, 2" % (EX + 10), "v_add_u32 v%d, v%d, v%d" % (EX + 9, EX + 9, EX + 10),
                    "v_lshlrev_b32 v%d, 7, v%d" % (EX + 9, EX + 9), "v_and_b32 v%d, 3, v1" % (EX + 10), "v_lshl_add_u32 v%d, v%d, 3, v%d" % (EX + 9, EX + 10, EX + 9),
                    "v_add_u32 v%d, s38, v%d" % (EX + 9, EX + 9),
                    ("grp", ["s_cmp_ge_u32 s18, 3", "s_cselect_b32 s57, 2, 1", "s_cmp_lt_u32 s100, 1296", "s_cselect_b32 s57, s57, 0"])]
        def prog_wt():
            ops = ["v_and_b32 v%d, 15, v0" % (T + 4), "v_mul_u32_u24 v%d, 80, v%d" % (T + 5, T + 4), "v_and_b32 v%d, 1, v0" % (T + 6),
                   "v_lshl_add_u32 v%d, v%d, 1, v%d" % (T + 5, T + 6, T + 5), "v_lshrrev_b32 v%d, 4, v0" % (T + 6),
                   "v_lshl_add_u32 v%d, v%d, 1, v%d" % (T + 5, T + 6, T + 5), "v_add_u32 v%d, %d, v%d" % (T + 5, WTS, T + 5),
                   "v_lshlrev_b32 v%d, 4, v%d" % (T + 4, T + 4), "v_lshl_add_u32 v%d, v%d, 13, v%d" % (T + 4, T + 6, T + 4),
                   ("grp", ["v_cmp_gt_u32 vcc, 80, v0", "v_add_u32 v%d, %d, v%d" % (T + 6, 32 * 8192, T + 4), "s_nop 0", "v_cndmask_b32 v%d, v15, v%d, vcc" % (T + 6, T + 6)])]
            for rd_ in range(2):
                for r in range(4):
                    ops.append(("ds", "ds_read_u16 v%d, v%d offset:%d" % (EX + 4 * rd_ + r, T + 5, r * 1280 + 64 * rd_), "wtr"))
                    ops.append(("ds", "ds_read_u16 v%d, v%d offset:%d" % (T + 8 + 4 * rd_ + r, T + 5, 5120 + r * 1280 + 64 * rd_), "wtr"))
            ops.append(("lwait", "wtr"))
            for e in range(8): ops.append("v_lshl_or_b32 v%d, v%d, 16, v%d" % (EX + e, T + 8 + e, EX + e))
            return ops
        def prog_st2():
            ops = [("vm", "buffer_store_dwordx4 %s, v%d, s[4:7], s56 offen%s" % (v(EX, 4), T + 4, SC), "side"),
                   ("cond", "s_cmp_lt_u32 s18, 2", ["buffer_store_dwordx4 %s, v%d, s[4:7], s56 offen%s" % (v(EX + 4, 4), T + 6, SC)], None)]
            return ops
        def cs_flag():
            pub = a.newlabel("noflag")
            a("s_cmp_eq_u32 s18, 7")
            a("s_cbranch_scc0 %s" % pub)
            a("v_mov_b32 v%d, s59" % (T + 2))
            a("v_mov_b32 v%d, 0" % (T + 1))
            a("s_waitcnt vmcnt(%d)" % min(63, len(a.vmq) - csmark))
            a("s_mov_b64 exec, 1")
            a("buffer_store_dword v%d, v%d, s[4:7], s101 offen sc1" % (T + 2, T + 1))
            a("s_mov_b64 exec, -1")
            a.label(pub)
        def cs_chk():
            a("v_cmp_eq_u32 vcc, s59, v254")
            a("s_nop 1")
            a("s_cmp_eq_u64 vcc, -1")
        def cs_fetch():
            skip = a.newlabel("csskip"); lp = a.newlabel("cspoll"); ok = a.newlabel("csok")
            a("s_cmp_lt_u32 s18, 5")
            a("s_cbranch_scc0 %s" % skip)
            a.vm_wait_mark("cspl")
            cs_chk()
            a("s_cbranch_scc1 %s" % ok)
            a("s_mov_b32 s33, 0")
            a.label(lp)
            a("s_sleep 4")
            a("buffer_load_dword v254, v253, s[4:7], 0 offen sc1")
            a("s_waitcnt vmcnt(0)")
            cs_chk()
            a("s_cbranch_scc1 %s" % ok)
            a("s_add_u32 s33, s33, 1")
            a("s_cmp_lt_u32 s33, 0x40000")
            a("s_cbranch_scc1 %s" % lp)
            a.label(ok)
            a("s_mul_i32 s28, s17, %d" % (16 * 1152))
            a("s_add_u32 s28, s28, 0x%x" % CS_OFF)
            a("s_mul_i32 s29, s17, 576")
            a("v_lshlrev_b32 v253, 3, v251")
            a("buffer_load_dwordx2 v[254:255], v253, s[12:15], s29 offen")
            for kk in range(4):
                a("buffer_load_dwordx4 %s, v252, s[4:7], s28 offen offset:%d sc1" % (v(T + 4 * kk, 4), kk * 1152))
            a.label(skip)
            a.vm_mark("csl")
        def prog_dft():
            acc = ACCS[0]
            ops = ["s_lshl_b32 s28, s19, 7", "v_lshlrev_b32 v%d, 4, v14" % T, "v_add_u32 v%d, s28, v%d" % (T, T), "v_add_u32 v%d, %d, v%d" % (T, ROWP_LDS, T)]
            RP = [EX, EX + 4, T + 4, T + 12]
            for i in range(4): ops.append(("ds", "ds_read_b128 %s, v%d offset:%d" % (v(RP[i], 4), T, 32 * i), "rowp"))
            ops.append(("lwait", "rowp"))
            for i in range(16):
                sc = RP[i >> 2] + (i & 3)
                ops.append("v_mul_f32 v%d, v%d, v%d" % (acc + i, acc + i, sc))
            for i in range(8): ops.append("v_cvt_pk_f16_f32 v%d, v%d, v%d" % (T + 8 + i, acc + 2 * i, acc + 2 * i + 1))
            ops += ["s_nop 0", "s_nop 0"]
            for i in (0, 2):
                ops += ["v_permlane32_swap_b32 v%d, v%d" % (T + 8 + 2 * i, T + 10 + 2 * i), "v_permlane32_swap_b32 v%d, v%d" % (T + 9 + 2 * i, T + 11 + 2 * i)]
            for i in range(2):
                ops.append(("vm", "buffer_store_dwordx4 %s, v12, s[4:7], 0 offen offset:%d%s" % (v(T + 8 + 4 * i, 4), 32 * i, SC), "side"))
            return ops
        def prog_cs0():
            return [("grp", ["s_and_b32 s28, s2, 0xe1", "v_bfe_u32 v253, v1, 2, 2", "v_lshlrev_b32 v253, 1, v253", "v_and_b32 v254, 3, v1", "v_lshl_add_u32 v253, v254, 3, v253",
                             "v_or_b32 v253, s28, v253", "v_lshlrev_b32 v253, 4, v253", "v_add_u32 v253, 0x%x, v253" % FLAG_OFF]),
                    ("cond", "s_cmp_lt_u32 s18, 5", ["buffer_load_dword v254, v253, s[4:7], 0 offen sc1"], "cspl"),
                    ("grp", ["s_lshl_b32 s28, s18, 4", "v_and_b32 v251, 15, v1", "v_add_u32 v251, s28, v251"]), "v_lshrrev_b32 v252, 4, v1", "v_mul_u32_u24 v252, %d, v252" % (4 * 1152),
                    "v_lshl_add_u32 v252, v251, 4, v252",
                    ("grp", ["v_cmp_gt_u32 vcc, 72, v251", "s_nop 1", "v_cndmask_b32 v252, v15, v252, vcc"])]
        def prog_cs2():
            ops = [("mwait", "csl")]
            for kk in range(1, 4):
                for i in range(4): ops.append("v_add_f32 v%d, v%d, v%d" % (T + i, T + i, T + 4 * kk + i))
            for sw in ("32", "16"):
                for i in range(4): ops.append("v_mov_b32 v%d, v%d" % (T + 4 + i, T + i))
                ops.append("s_nop 0")
                for i in range(4): ops.append("v_permlane%s_swap_b32 v%d, v%d" % (sw, T + i, T + 4 + i))
                for i in range(4): ops.append("v_add_f32 v%d, v%d, v%d" % (T + i, T + i, T + 4 + i))
            ops += ["v_lshlrev_b32 v%d, 16, v254" % (T + 4), "v_and_b32 v%d, 0xffff0000, v254" % (T + 5), "v_lshlrev_b32 v%d, 16, v255" % (T + 6), "v_and_b32 v%d, 0xffff0000, v255" % (T + 7)]
            for i in range(4): ops += split3(T + i, 253, T + 8 + 2 * i, T + 9 + 2 * i, "v%d" % (T + 4 + i))
            ops += ["v_lshlrev_b32 v253, 5, v251", "v_add_u32 v253, %d, v253" % AUG_LDS, "v_and_b32 v252, 48, v1", "v_lshl_add_u32 v252, v252, 3, v251",
                    ("grp", ["v_cmp_gt_u32 vcc, 72, v252", "s_and_saveexec_b64 s[28:29], vcc", ("ds", "ds_write_b128 v253, %s" % v(T + 8, 4), "augw"),
                             ("ds", "ds_write_b128 v253, %s offset:16" % v(T + 12, 4), "augw"), "s_mov_b64 exec, -1"])]
            return ops
        def aug_read(p):
            sk = 36 + (p & 1); pi = p - 1
            ops = ["s_add_u32 s%d, s27, %d" % (sk, 2 * pi + g)]
            if pi == 4:
                ops += ["s_cmp_eq_u32 s27, 1", "s_cselect_b32 s%d, 0, 8" % sk]
            ops += ["s_lshl_b32 s28, s%d, 8" % sk, "v_mov_b32 v15, s28",
                    "v_cndmask_b32 v15, v15, 0, s[24:25]", "v_add_u32 v15, v15, v8",
                    ("ds", "ds_read_b64 %s, v15" % v(AUGR, 2), "aug")]
            return [("grp", ops)]
        def gelu_ops(p):
            ops = []
            for h2 in range(2):
                acc = ACCS[p & 1] + 8 * h2
                for i in range(8): ops.append("v_mul_f32 v%d, v%d, v%d" % (T + i, acc + i, acc + i))
                for i in range(8): ops.append("v_fma_f32 v%d, v%d, v10, v9" % (T + i, T + i))
                for i in range(8): ops.append("v_mul_f32 v%d, v%d, v%d" % (T + i, acc + i, T + i))
                for i in range(8): ops.append("v_exp_f32 v%d, v%d" % (T + i, T + i))
                for i in range(8): ops.append("v_fma_f32 v%d, v%d, v11, v11" % (T + i, T + i))
                for i in range(8): ops.append("v_rcp_f32 v%d, v%d" % (T + i, T + i))
                for i in range(8): ops.append("v_mul_f32 v%d, v%d, v%d" % (T + i, acc + i, T + i))
                for i in range(4): ops.append("v_cvt_pk_bf16_f32 v%d, v%d, v%d" % (T + 8 + 4 * h2 + i, T + 2 * i, T + 2 * i + 1))
                ops.append(("grp", ["s_add_u32 s28, s39, s%d" % (36 + (p & 1)), "s_lshl_b32 s28, s28, 10",
                                    ("vm", "buffer_store_dwordx4 %s, v7, s[4:7], s28 offen offset:%d%s" % (v(T + 8 + 4 * h2, 4), 512 * h2, SC), "h%d" % p)]))
            return ops

        ntile = 6 if g == 0 else 5
        nsteps = 36 * ntile
        LA = NFR - 1
        def rd(i):
            phi, st = divmod(i, 18)
            b = FR + 4 * (i % NFR)
            if phi < 2:
                if i == 18: a("v_add_u32 v13, %d, v13" % UNIT)
                a.ds("ds_read_b128 %s, v13 offset:%d" % (v(b, 4), st * 2048), "f%d" % i)
            else:
                if i == 180:
                    a("s_lshl_b32 s29, s27, 9")
                    for r_ in (4, 5, 6): a("v_add_u32 v%d, s29, v%d" % (r_, r_))
                for h in range(2):
                    addr = (phi % 4) * UNIT + st * 2048 + 256 * h
                    k = addr // 49152
                    a.ds("ds_read_b64_tr_b16 %s, v%d offset:%d" % (v(b + 2 * h, 2), 4 + k, addr - k * 49152), "f%d" % i)
        pri = []
        def barrier(phi):
            if phi <= 8: a.stamp()
            if phi + 1 >= 2: a.vm_wait("u%d" % (phi + 1))
            if 1 <= phi <= 2 and not hooks: a.stamp()
            if phi == 1: a.vm_wait_mark("wt")
            if phi == 10 and hooks: a.vm_wait("h3")
            a.lg_wait("augw"); a.lg_wait("xtw")
            a("s_barrier")
            if hooks: hooks.after_barrier(a, g, phi)
            if phi <= 8: a.stamp()
            u = phi + 3
            if u is not None and u <= 11: pri.extend(dma_list(u))
        for i in range(LA): rd(i)
        if g == 1: cs_flag()
        for tau in range(ntile):
            if tau == 0:
                wt = prog_wt()
                progs = [(0, 24, prog_side()), (26, 29, wt[:10]), (31, 35, wt[10:] + prog_st2())]
            elif tau == 1:
                ld, fin = prog_w2(0)
                progs = [(0, 3, prog_w2addr()), (4, 11, prog_dft()), (13, 14, ld), (8, 11, prog_cs0()), (25, 25, [("call", cs_fetch)]), (29, 34, fin)]
            elif tau == 2:
                ld, fin = prog_w2(1)
                late_aug = aug_read(1) + [("lwait", "aug"), "v_mfma_f32_32x32x16_bf16 %s, %s, %s, %s" % (v(ACCS[1], 16), v(AUGR, 4), v(XA, 4), v(ACCS[1], 16))]
                progs = [(3, 11, prog_cs2()), (13, 14, late_aug), (13, 14, ld), (17, 35, gelu_ops(1)), (26, 30, fin), (32, 33, aug_read(2))]
            else: progs = [(3, 31, gelu_ops(tau - 1)), (32, 33, aug_read(tau))]
            sched = [[] for _ in range(36)]
            for s0, s1, ops in progs:
                n = s1 - s0 + 1
                for k, o in enumerate(ops):
                    sched[s0 + (k * n) // len(ops)].append(o)
            acc = ACCS[tau & 1]
            for st in range(36):
                i = 36 * tau + st
                j = i + LA
                if j < nsteps:
                    if j % 18 == 0:
                        barrier(j // 18 - 1)
                    rd(j)
                if pri and (st % 2 == 0 or len(pri) > ndma): emit_op(a, pri.pop(0))
                a.lg_wait("f%d" % i)
                b = FR + 4 * (i % NFR)
                x = XN + 4 * st
                c = "0" if st == 0 else v(acc, 16)
                if tau == 0:
                    a("v_mfma_f32_32x32x16_bf16 %s, %s, %s, %s" % (v(acc, 16), v(x, 4), v(b, 4), c))
                else:
                    a("v_mfma_f32_32x32x16_bf16 %s, %s, %s, %s" % (v(acc, 16), v(b, 4), v(x, 4), c))
                for o in sched[st]: emit_op(a, o)
            if tau == 0:
                a("v_mfma_f32_32x32x16_bf16 %s, %s, %s, %s" % (v(acc, 16), v(XA, 4), v(AUGR, 4), v(acc, 16)))
            elif tau != 1:
                a.lg_wait("aug")
                a("v_mfma_f32_32x32x16_bf16 %s, %s, %s, %s" % (v(acc, 16), v(AUGR, 4), v(XA, 4), v(acc, 16)))
        a("s_nop 7"); a("s_nop 4")
        last = gelu_ops(ntile - 1)
        if g == 1 and hooks:
            hooks.g1_end(a, last, barrier)
        elif g == 1:
            barrier(9)
            assert not pri
            for k, o in enumerate(last):
                if k == len(last) // 2: barrier(10)
                emit_op(a, o)
        else:
            for o in last: emit_op(a, o)
        if hooks:
            if g == 0: hooks.tail(a, g)
        elif g == 1:
            a("s_lshl_b32 s36, s19, 8")
            a("s_add_u32 s36, s36, s2")
            k0.job_finv(a, XN, 36, 4, 37)
        a.stamp()
        a.stamp(True)
        a.stamp_flush(4, STAMP_OFF, 18, T)
        a("s_endpgm")

    group(0)
    a.label("L_k1_g1")
    group(1)
    a.label("L_k1_end")
    a("s_endpgm")
    return (name, 256, 512, 163840 if hooks else K1_LDS, NV)
```

```python
from asmlib import *
from layout import *
import k0, k1d
from k1d import SP, FLG_LDS, UNIT
from k2 import T_M32F, T_TW1, T_M64, T_TW2, T_M32I

KS = 17408
NSLOT = 8
OWN_LDS = 139264
DBG_ALL, DBG_LATE, DBG_ALL2 = 128, 132, 64
OOB = 0x7ff00000
ZR = [SP + 4096, SP + 12288]
ZI = [SP + 8192, 69632]
SW_LDS = k1d.ZERO_LDS + 16
RC_LDS = FLG_LDS + 32
def slot_addr(n):
    s_ = n % NSLOT
    return s_ * KS + (4096 if s_ >= 4 else 0)
def red_addr(f): return 143360 + f * 1024 if f < 4 else (69632 + (f - 4) * 1024 if f < 8 else SP + 4096 + (f - 8) * 1024)
NK = 54
LCNT_LDS = FLG_LDS + 60

def spin_begin(a, name):
    lp = a.newlabel(name)
    a("s_mov_b32 s33, 0")
    a.label(lp)
    return lp
def spin_end(a, lp, sleep=4):
    out = a.newlabel("spinout")
    a("s_cbranch_scc1 %s" % out)
    if sleep: a("s_sleep %d" % sleep)
    a("s_add_u32 s33, s33, 1")
    a("s_cmp_lt_u32 s33, 0x40000")
    a("s_cbranch_scc1 %s" % lp)
    a.label(out)

def one_lane(a, lines):
    a("s_mov_b64 exec, 1")
    for l in lines: a(l)
    a("s_mov_b64 exec, -1")

XF_OFF = FLAG_OFF + 16384
def flag_store(a, val, s_off, woff=0):
    a("s_add_u32 s28, s59, %d" % val)
    a("v_mov_b32 v253, %d" % woff)
    a("v_mov_b32 v254, s28")
    one_lane(a, ["buffer_store_dword v254, v253, s[4:7], s%d offen sc1" % s_off])
def chk_range(a, R, n, lo, hi=4):
    a("s_add_u32 s28, s59, %d" % lo)
    for i in range(n): a("v_subrev_u32 v%d, s28, v%d" % (R + i, R + i))
    for i in range(1, n): a("v_max_u32 v%d, v%d, v%d" % (R, R, R + i))
    a("v_cmp_ge_u32 vcc, %d, v%d" % (hi - lo, R))
    a("s_nop 1")
    a("s_cmp_eq_u64 vcc, -1")
def all_load(a, R, stage, wave, tag=None):
    lines = ["s_mov_b32 s29, 0x%x" % (FLAG_OFF + (stage - 1) * 4096)]
    lines += ["buffer_load_dword v%d, v3, s[4:7], s29 offen offset:%d sc1" % (R + i, 1024 * i) for i in range(4)]
    if tag: k1d.emit_op(a, ("cond", "s_cmp_eq_u32 s18, %d" % wave, lines, tag))
    else:
        for l in lines: a(l)
def all_check(a, R, stage, wave, tag):
    ok = a.newlabel("aok")
    a("s_cmp_eq_u32 s18, %d" % wave)
    a("s_cbranch_scc0 %s" % ok)
    a.vm_wait_mark(tag)
    chk_range(a, R, 4, 0, 0)
    a("s_cbranch_scc1 %s" % ok)
    lp = spin_begin(a, "aspin")
    all_load(a, R, stage, wave)
    a("s_waitcnt vmcnt(0)")
    chk_range(a, R, 4, 0, 0)
    spin_end(a, lp, 8)
    a.label(ok)

class Hooks:
    def after_barrier(self, a, g, phi):
        if g == 0 and phi in (5, 7):
            lab = a.newlabel("noall")
            a("s_cmp_eq_u32 s18, 0"); a("s_cbranch_scc0 %s" % lab)
            flag_store(a, 0, 101, 4096 if phi == 5 else 8192)
            a.label(lab)
        if g == 1 and phi == 8:
            all_load(a, 248, 2, 4, "allp")
        if g == 1 and phi in (9, 10):
            lab = a.newlabel("noprog")
            a("s_cmp_eq_u32 s18, 4"); a("s_cbranch_scc0 %s" % lab)
            flag_store(a, phi - 8, 101, 4)
            a.label(lab)
    def ids2(self, a):
        a("s_lshr_b32 s26, s17, 2")
        a("s_and_b32 s27, s17, 3")
    def tail(self, a, g):
        a.stamp()
        self.ids2(a)
        consumer(a)
    def g1_end(self, a, last, barrier):
        all_check(a, 248, 2, 4, "allp")
        all_load(a, 232, 3, 5, "allp3")
        nofft = a.newlabel("nofft"); done = a.newlabel("latedone")
        a("s_cmp_lt_u32 s2, 145")
        a("s_cbranch_scc0 %s" % nofft)
        vm0, ns0 = list(a.vmq), a.nstamp
        for isfft in (True, False):
            if not isfft: a.label(nofft)
            a.vmq, a.nstamp = list(vm0), ns0
            extra = []
            if isfft:
                a("s_and_b32 s52, s19, 1")
                a("s_lshr_b32 s53, s19, 1")
                a("s_lshl_b32 s54, s2, 1")
                a("s_add_u32 s54, s54, s53")
                extra = fft_preload(54, 52, 53)
            barrier(9)
            for kk, o in enumerate(last):
                if kk == len(last) // 2:
                    all_check(a, 232, 3, 5, "allp3")
                    barrier(10)
                    if isfft:
                        for z in fft_zload(): k1d.emit_op(a, z)
                if extra: k1d.emit_op(a, extra.pop(0))
                k1d.emit_op(a, o)
            for o in extra: k1d.emit_op(a, o)
            a.stamp()
            self.ids2(a)
            L = Loader(a)
            if isfft:
                fft(a, 52, L)
            else:
                L.prefetch()
                a("s_sub_u32 s52, s2, 145")
                a("s_lshl_b32 s52, s52, 2")
                a("s_add_u32 s52, s52, s19")
                k0.job_finv(a, 16, 52, 4, 44)
                a("s_add_u32 s52, s52, 444")
                k0.job_finv(a, 40, 52, 4, 44)
                a.vm_mark("late")
            a.stamp()
            L.run()
            if isfft:
                a.stamp(); a.stamp(True)
                a.stamp_flush(4, STAMP_OFF, 18, 72)
                a("s_endpgm")

def dma_bases(a):
    for o in ["s_lshl_b32 s38, s19, 10",
              "s_mul_i32 s34, s26, %d" % (36 * 36 * 1024), "s_mul_i32 s28, s27, 9216", "s_add_u32 s28, s28, s38", "s_add_u32 s34, s34, s28",
              "s_add_u32 s34, s34, 0x%x" % W2P_OFF, "s_add_u32 s35, s28, 0x%x" % (W2P_OFF + 144 * 36 * 1024),
              "s_lshl_b32 s36, s16, 3", "s_add_u32 s36, s36, s19", "s_mul_i32 s36, s36, 144", "s_mul_i32 s28, s26, 36", "s_add_u32 s36, s36, s28",
              "s_lshl_b32 s36, s36, 10", "s_add_u32 s36, s36, 0x%x" % H_OFF]:
        a(o)
def dma_ops(n, vl):
    slot = slot_addr(n)
    def aoff(t): return ("s34", kmap(n) * 36 * 1024 + t * 1024) if n < 36 else ("s35", (n - 36) * 36 * 1024 + t * 1024)
    ops = [("cond", "s_cmp_eq_u32 s19, 0", ["s_add_u32 m0, s38, %d" % (slot + 8192), "s_add_u32 s30, %s, %d" % aoff(8),
                                            "buffer_load_dwordx4 v%d, s[4:7], s30 offen sc1 lds" % vl], None)]
    if n >= 36:
        ops.append(("cond", "s_cmp_lt_u32 s39, 2", ["s_add_u32 m0, s38, %d" % (slot + 8192), "s_add_u32 s30, s37, %d" % ((n - 36) * 32 * 4096),
                                                     "buffer_load_dwordx4 v4, s[4:7], s30 offen sc1 lds"], None))
    for t in (0, 4):
        ops.append(("grp", ["s_add_u32 m0, s38, %d" % (slot + t * 1024), "s_add_u32 s30, %s, %d" % aoff(t),
                            ("vm", "buffer_load_dwordx4 v%d, s[4:7], s30 offen sc1 lds" % vl, "k%d" % n)]))
    if n < 36:
        for u in range(2):
            ops.append(("grp", ["s_add_u32 m0, s38, %d" % (slot + 9216 + u * 4096), "s_add_u32 s30, s36, %d" % (kmap(n) * 1024 + u * 4 * 144 * 1024),
                                ("vm", "buffer_load_dwordx4 v%d, s[4:7], s30 offen sc1 lds" % vl, "k%d" % n)]))
    return ops
def peer_addr(a, vd):
    for o in ["s_and_b32 s28, s2, 63", "v_and_b32 v%d, 3, v1" % vd, "v_lshlrev_b32 v%d, 6, v%d" % (vd, vd), "v_add_u32 v%d, s28, v%d" % (vd, vd),
              "v_lshlrev_b32 v%d, 4, v%d" % (vd, vd), "v_add_u32 v%d, 0x%x, v%d" % (vd, FLAG_OFF + 4, vd)]:
        a(o)

def kmap(kk):
    n, cc = divmod(kk, 4)
    return 9 * cc + (n + (cc & 1)) % 9

M64, TW, MF, WV, ZA, AC, PK, T0 = 88, 152, 184, 196, 212, 16, 48, 72
MI = 244
M32Q = [196, 200, 204, 208, 184, 188, 192, 252]
vLO, vFq, vFP, vSG = 12, 13, 14, 15
sRE, sIM, sT, sU, sZR, sZI, sROW, sZO = 44, 45, 46, 47, 48, 49, 50, 51
def m64r(t, u, ci): return M64 + ((2 * t + u) * 2 + ci) * 4
def fft_preload(s_col, s_hw, s_cs):
    ops = []
    X0, X1_ = 48, 49
    def ld(dst, pre, off, tag):
        ops.append(("grp", pre + [("vm", "buffer_load_dwordx4 %s, v3, s[4:7], s55 offen offset:%d sc1" % (v(dst, 4), off), tag)]))
    pre = ["s_min_u32 s55, s%d, 288" % s_col, "s_lshl_b32 s55, s55, 13", "s_lshl_b32 s56, s%d, 12" % s_hw, "s_add_u32 s55, s55, s56", "s_add_u32 s55, s55, 0x%x" % WT_OFF]
    for t in range(4): ld(WV + 4 * t, pre if t == 0 else [], t * 1024, "w")
    ld(m64r(0, 0, 0), ["s_mov_b32 s55, 0x%x" % (TAB_OFF + T_M64 * 1024)], 0, "m64")
    ld(m64r(0, 0, 1), [], 1024, "m64")
    ld(MF, ["s_mul_i32 s55, s%d, 3072" % s_hw, "s_add_u32 s55, s55, 0x%x" % (TAB_OFF + T_M32F * 1024)], 0, "mf")
    ld(MF + 4, [], 1024, "mf")
    ld(MI, ["s_mov_b32 s55, 0x%x" % (TAB_OFF + T_M32I * 1024)], 0, "m32i")
    ld(MI + 4, [], 1024, "m32i")
    ops.append(("grp", ["s_lshl_b32 s%d, s%d, 13" % (sRE, s_col), "s_add_u32 s%d, s%d, 4096" % (sIM, sRE),
                        "s_cmp_eq_u32 s%d, 0" % s_col, "s_cselect_b32 s%d, 0x%x, s%d" % (sIM, OOB, sIM),
                        "s_cmp_eq_u32 s%d, 288" % s_col, "s_cselect_b32 s%d, 0x%x, s%d" % (sIM, OOB, sIM), "s_cselect_b32 s%d, 4096, s%d" % (sRE, sRE),
                        "s_cmp_gt_u32 s%d, 288" % s_col, "s_cselect_b32 s%d, 0x%x, s%d" % (sRE, OOB, sRE), "s_cselect_b32 s%d, 0x%x, s%d" % (sIM, OOB, sIM),
                        "s_cmp_eq_u32 s%d, 0" % s_cs, "s_mov_b32 s%d, %d" % (sZR, ZR[1]), "s_mov_b32 s%d, %d" % (sZI, ZI[1]),
                        "s_cselect_b32 s%d, %d, s%d" % (sZR, ZR[0], sZR), "s_cselect_b32 s%d, %d, s%d" % (sZI, ZI[0], sZI),
                        "s_cmp_eq_u32 s%d, 0" % s_hw, "s_cselect_b32 s%d, s%d, s%d" % (sROW, sRE, sIM), "s_cselect_b32 s%d, s%d, s%d" % (sZO, sZR, sZI),
                        "s_lshl_b32 s%d, s%d, 3" % (sT, s_cs), "s_lshl_b32 s%d, s%d, 2" % (sU, s_hw), "s_add_u32 s%d, s%d, %d" % (sT, sT, FLG_LDS),
                        "s_add_u32 s%d, s%d, s%d" % (sU, sU, sT), "v_mov_b32 v%d, s%d" % (vFq, sU), "s_xor_b32 s%d, s%d, 4" % (sU, sU), "v_mov_b32 v%d, s%d" % (vFP, sU),
                        "s_lshl_b32 s%d, s%d, 2" % (sT, s_cs), "s_add_u32 s%d, s%d, %d" % (sT, sT, FLG_LDS + 16), "v_mov_b32 v%d, s%d" % (vSG, sT)]))
    ops += ["v_and_b32 v50, 15, v1", "s_lshl_b32 s56, s%d, 4" % s_hw, "v_add_u32 v50, s56, v50", "v_cvt_f32_u32 v50, v50",
            "v_mul_f32 v50, 0x%x, v50" % f32bits(-1.0 / 2048),
            "v_lshrrev_b32 v51, 4, v1", "v_lshlrev_b32 v51, 2, v51", "v_cvt_f32_u32 v51, v51", "v_mul_f32 v51, v51, v50"]
    for t in range(4):
        for r in range(4): ops.append("v_fmamk_f32 v%d, v50, 0x%x, v51" % (TW + 8 * t + 4 + r, f32bits(16.0 * t + r)))
        for r in range(4): ops.append("v_cos_f32 v%d, v%d" % (TW + 8 * t + r, TW + 8 * t + 4 + r))
        for r in range(4): ops.append("v_sin_f32 v%d, v%d" % (TW + 8 * t + 4 + r, TW + 8 * t + 4 + r))
    mid = len(ops)
    ops += [("vwait", "w"), "v_mov_b32 v52, 0x7fff7fff", "v_and_b32 v%d, v%d, v52" % (X0, WV)]
    for i in range(1, 16):
        ops += ["v_and_b32 v%d, v%d, v52" % (X1_, WV + i), "v_pk_max_u16 v%d, v%d, v%d" % (X0, X0, X1_)]
    ops += ["v_lshrrev_b32 v%d, 16, v%d" % (X1_, X0), "v_and_b32 v%d, 0xffff, v%d" % (X0, X0), "v_max_u32 v%d, v%d, v%d" % (X0, X0, X1_),
            "ds_max_u32 v%d, v%d" % (vSG, X0), "v_mov_b32 v%d, 1" % X1_, "ds_write_b32 v%d, v%d" % (vFq, X1_)]
    ops += [("vwait", "mf"), "v_and_b32 v%d, 1, v1" % vLO, "v_mov_b32 v52, 0xffff", "v_mul_u32_u24 v%d, 0x8000, v%d" % (vLO, vLO),
            "v_lshl_or_b32 v%d, v%d, 16, v%d" % (vLO, vLO, vLO)]
    for k in range(4):
        cr, ci = m64r(0, 0, 0) + k, m64r(0, 0, 1) + k
        c1, i1 = m64r(1, 0, 0) + k, m64r(1, 0, 1) + k
        ops += ["v_bfi_b32 v%d, v52, v%d, v%d" % (c1, cr, ci), "v_bfi_b32 v%d, v52, v%d, v%d" % (i1, ci, cr)]
        if k & 1: ops.append("v_xor_b32 v%d, 0x80008000, v%d" % (c1, c1))
        ops += ["v_xor_b32 v%d, 0x%x, v%d" % (i1, 0x8000 if k & 1 else 0x80000000, i1), "v_xor_b32 v%d, 0x80008000, v%d" % (MF + 8 + k, MF + 4 + k)]
    for t in (2, 3):
        for k in range(8): ops.append("v_xor_b32 v%d, 0x80000000, v%d" % (m64r(t, 0, 0) + k, m64r(t - 2, 0, 0) + k))
    for t in range(4):
        for k in range(8): ops.append("v_xor_b32 v%d, v%d, v%d" % (m64r(t, 1, 0) + k, vLO, m64r(t, 0, 0) + k))
    return ops
def fft_zload():
    ops = [("grp", ["v_add_u32 v53, s%d, v3" % sROW, "s_mov_b32 s%d, 0x%x" % (sT, X1_OFF), "s_mov_b32 m0, s%d" % sZO, "s_nop 0"] +
                   [("vm", "buffer_load_dwordx4 v53, s[4:7], s%d offen offset:%d sc1 lds" % (sT, n * 1024), "z") for n in range(4)])]
    return ops

def weave(a, mf, va):
    va = list(va)
    for i, x in enumerate(mf):
        a(x)
        n = (len(va) + len(mf) - i - 1) // (len(mf) - i)
        for _ in range(n): a(va.pop(0))

def fft(a, s_hw, L):
    vTR, vTI, vSC, vX, vY, vONE = T0 + 8, T0 + 9, T0 + 12, T0 + 13, T0 + 14, T0 + 15
    vL16 = 3
    R = "s[4:7]"
    WS = ZA
    a("v_lshrrev_b32 v%d, 4, v1" % vX)
    a("v_bfe_u32 v%d, v1, 2, 2" % vY)
    a("v_lshl_add_u32 v%d, v%d, 3, v%d" % (vY, vX, vY))
    a("v_lshlrev_b32 v%d, 7, v%d" % (vTR, vY))
    a("v_and_b32 v%d, 3, v1" % vY)
    a("v_lshl_add_u32 v%d, v%d, 3, v%d" % (vTR, vY, vTR))
    a("v_add_u32 v%d, s%d, v%d" % (vTI, sZI, vTR))
    a("v_add_u32 v%d, s%d, v%d" % (vTR, sZR, vTR))
    def signal(k):
        a("v_mov_b32 v%d, %d" % (vONE, k))
        a("ds_write_b32 v%d, v%d" % (vFq, vONE))
    def wait(k):
        lp = spin_begin(a, "pw")
        a("ds_read_b32 v%d, v%d" % (vONE, vFP))
        a("s_waitcnt lgkmcnt(0)")
        a("v_readfirstlane_b32 s28, v%d" % vONE)
        a("s_cmp_ge_u32 s28, %d" % k)
        spin_end(a, lp, 0)
    a.vm_wait("z")
    signal(2); wait(2)
    a("ds_read_b32 v%d, v%d" % (vX, vSG))
    for t in range(4):
        for p in range(2):
            for h in range(2):
                a("ds_read_b64_tr_b16 %s, v%d offset:%d" % (v(ZA + (2 * t + p) * 4 + 2 * h, 2), vTI if p else vTR, t * 32 + h * 512))
    CR, CI, NCI = MF, MF + 4, MF + 8
    mf = "v_mfma_f32_16x16x32_f16"
    a("s_waitcnt lgkmcnt(0)")
    signal(3)
    sa = []
    for t in range(4):
        zr, zi = ZA + 8 * t, ZA + 8 * t + 4
        sa += ["%s %s, %s, %s, 0" % (mf, v(AC + 8 * t, 4), v(zr, 4), v(CR, 4)), "%s %s, %s, %s, 0" % (mf, v(AC + 8 * t + 4, 4), v(zr, 4), v(CI, 4)),
               "%s %s, %s, %s, %s" % (mf, v(AC + 8 * t, 4), v(zi, 4), v(NCI, 4), v(AC + 8 * t, 4)),
               "%s %s, %s, %s, %s" % (mf, v(AC + 8 * t + 4, 4), v(zi, 4), v(CR, 4), v(AC + 8 * t + 4, 4))]
    weave(a, sa, ["v_lshrrev_b32 v%d, 7, v%d" % (vX, vX), "v_sub_u32 v%d, 247, v%d" % (vSG, vX), "v_max_i32 v%d, 1, v%d" % (vSG, vSG),
                  "v_lshlrev_b32 v%d, 23, v%d" % (vSG, vSG), "v_subrev_u32 v%d, 126, v%d" % (vX, vX), "v_mov_b32 v%d, 0x%x" % (vSC, f32bits(1.0 / 96)),
                  "v_ldexp_f32 v%d, v%d, v%d" % (vSC, vSC, vX)])
    def cmul(xr, xi, wr, wi, t0, t1):
        a("v_mul_f32 v%d, v%d, v%d" % (t0, xi, wi))
        a("v_mul_f32 v%d, v%d, v%d" % (t1, xr, wi))
        a("v_fma_f32 v%d, v%d, v%d, -v%d" % (xr, xr, wr, t0))
        a("v_fma_f32 v%d, v%d, v%d, v%d" % (xi, xi, wr, t1))
    def call(W):
        for t in range(4):
            for r in range(4):
                cmul(AC + 8 * t + r, AC + 8 * t + 4 + r, W + 8 * t + r, W + 8 * t + 4 + r, T0 + (2 * r) % 8, T0 + (2 * r + 1) % 8)
    def packs(neg_first):
        for u in range(2):
            for tt in range(2):
                t = 2 * u + tt
                for hh in range(2):
                    re0, im0 = AC + 8 * t + 2 * hh, AC + 8 * t + 4 + 2 * hh
                    d = 4 * u + 2 * tt + hh
                    a("v_cvt_pk_f16_f32 v%d, v%d, v%d" % (PK + d, re0, re0 + 1))
                    a("v_cvt_pk_f16_f32 v%d, v%d, v%d" % (PK + 8 + d, im0, im0 + 1))
                    n0 = re0 if neg_first else im0
                    a("v_cvt_pk_f16_f32 v%d, -v%d, -v%d" % (PK + 16 + d, n0, n0 + 1))
    call(TW)
    packs(False)
    m64 = m64r
    def stage64(data_is_b):
        out = []
        for u in range(2):
            for half in range(2):
                for t in range(4):
                    for part in range(2):
                        acc = AC + 8 * t + 4 * part
                        c = "0" if (u == 0 and half == 0) else v(acc, 4)
                        if data_is_b:
                            mat = m64(t, u, (part if half == 0 else 1 - part))
                            dat = PK + 4 * u if half == 0 else (PK + 16 + 4 * u if part == 0 else PK + 8 + 4 * u)
                            out.append("%s %s, %s, %s, %s" % (mf, v(acc, 4), v(mat, 4), v(dat, 4), c))
                        else:
                            mat = m64(t, u, half)
                            dat = (PK + 4 * u if part == 0 else PK + 8 + 4 * u) if half == 0 else (PK + 8 + 4 * u if part == 0 else PK + 16 + 4 * u)
                            out.append("%s %s, %s, %s, %s" % (mf, v(acc, 4), v(dat, 4), v(mat, 4), c))
        return out
    va = []
    for t in range(4):
        for r in range(4):
            w = WV + 4 * t + r
            va += ["v_lshlrev_b32 v%d, 16, v%d" % (WS + 8 * t + r, w), "v_and_b32 v%d, 0xffff0000, v%d" % (WS + 8 * t + 4 + r, w)]
        for r in range(8): va.append("v_mul_f32 v%d, v%d, v%d" % (WS + 8 * t + r, WS + 8 * t + r, vSG))
    a("s_nop 0")
    weave(a, stage64(True), va)
    L.prefetch()
    call(WS)
    packs(True)
    va = ["v_and_b32 v%d, 15, v1" % vX, "v_cvt_f32_u32 v%d, v%d" % (vX, vX), "v_mul_f32 v%d, 0x%x, v%d" % (vX, f32bits(1.0 / 2048), vX),
          "v_lshrrev_b32 v%d, 4, v1" % vY, "v_lshlrev_b32 v%d, 2, v%d" % (vY, vY), "s_lshl_b32 s%d, s%d, 4" % (sT, s_hw), "v_add_u32 v%d, s%d, v%d" % (vY, sT, vY),
          "v_cvt_f32_u32 v%d, v%d" % (vY, vY)]
    for t in range(4):
        if t: va.append("v_add_f32 v%d, 0x%x, v%d" % (vX, f32bits(16.0 / 2048), vX))
        va.append("v_mul_f32 v%d, v%d, v%d" % (TW + 8 * t + 4, vX, vY))
        for r in range(1, 4): va.append("v_fmamk_f32 v%d, v%d, 0x%x, v%d" % (TW + 8 * t + 4 + r, vX, f32bits(float(r)), TW + 8 * t + 4))
        for r in range(4): va.append("v_cos_f32 v%d, v%d" % (TW + 8 * t + r, TW + 8 * t + 4 + r))
        for r in range(4): va.append("v_sin_f32 v%d, v%d" % (TW + 8 * t + 4 + r, TW + 8 * t + 4 + r))
    a("s_nop 0")
    weave(a, stage64(False), va)
    a("v_mul_lo_u32 v%d, v%d, s%d" % (vX, vLO, s_hw))
    a("v_xor_b32 v%d, v%d, v%d" % (vY, vX, vLO))
    for nt in range(2):
        for oo in range(2):
            mk = vX if oo == 0 else vY
            if nt: a("v_xor_b32 v%d, 0x80000000, v%d" % (mk, mk))
            for p in range(2):
                for kq in range(4):
                    a("v_xor_b32 v%d, v%d, v%d" % (M32Q[(2 * nt + oo) * 2 + p] + kq, mk, MI + 4 * p + kq))
    call(TW)
    for t in range(4):
        for k in range(4):
            a("v_cvt_pk_f16_f32 v%d, v%d, v%d" % (PK + 4 * t + k, AC + 8 * t + 2 * k, AC + 8 * t + 2 * k + 1))
    a("s_xor_b32 s%d, s%d, 1" % (sT, s_hw))
    a("s_lshl_b32 s%d, s%d, 11" % (sT, sT))
    a("s_add_u32 s%d, s%d, s%d" % (sT, sT, sZR))
    a("v_add_u32 v%d, s%d, v%d" % (vX, sT, vL16))
    a("s_lshl_b32 s%d, s%d, 11" % (sT, s_hw))
    a("s_add_u32 s%d, s%d, s%d" % (sT, sT, sZR))
    a("v_add_u32 v%d, s%d, v%d" % (vTR, sT, vL16))
    wait(3)
    lab = a.newlabel("fft_hw1"); lab2 = a.newlabel("fft_j")
    a("s_cmp_eq_u32 s%d, 1" % s_hw)
    a("s_cbranch_scc1 %s" % lab)
    a("ds_write_b128 v%d, %s" % (vX, v(PK + 8, 4)))
    a("ds_write_b128 v%d, %s offset:1024" % (vX, v(PK + 12, 4)))
    a("s_branch %s" % lab2)
    a.label(lab)
    a("ds_write_b128 v%d, %s" % (vX, v(PK, 4)))
    a("ds_write_b128 v%d, %s offset:1024" % (vX, v(PK + 4, 4)))
    a("s_waitcnt lgkmcnt(0)")
    for i in range(8):
        a("v_mov_b32 v%d, v%d" % (PK + i, PK + 8 + i))
    a.label(lab2)
    signal(4)
    def accy(bt, nt, p): return AC + ((2 * bt + nt) * 2 + p) * 4
    def sA(oo):
        return ["%s %s, %s, %s, %s" % (mf, v(accy(bt, nt, p), 4), v(PK + 8 * oo + 4 * bt, 4), v(M32Q[(2 * nt + oo) * 2 + p], 4), "0" if oo == 0 else v(accy(bt, nt, p), 4))
                for bt in range(2) for nt in range(2) for p in range(2)]
    for x in sA(0): a(x)
    wait(4)
    a("ds_read_b128 %s, v%d" % (v(PK + 16, 4), vTR))
    a("ds_read_b128 %s, v%d offset:1024" % (v(PK + 20, 4), vTR))
    va = ["v_and_b32 v%d, 15, v1" % vY, "v_lshlrev_b32 v%d, 7, v%d" % (vY, vY), "v_lshrrev_b32 v%d, 4, v1" % vX, "v_lshl_add_u32 v%d, v%d, 3, v%d" % (vY, vX, vY),
          "s_lshl_b32 s%d, s%d, 6" % (sT, s_hw), "v_add_u32 v%d, s%d, v%d" % (vY, sT, vY), "v_bfe_u32 v%d, v1, 1, 3" % T0, "v_lshlrev_b32 v%d, 4, v%d" % (T0, T0),
          "v_xor_b32 v%d, v%d, v%d" % (vY, vY, T0), "v_xor_b32 v%d, 32, v%d" % (T0, vY), "v_add_u32 v%d, s%d, v%d" % (T0 + 4, sZR, vY),
          "v_add_u32 v%d, s%d, v%d" % (vTI, sZI, vY), "v_add_u32 v%d, s%d, v%d" % (T0 + 1, sZR, T0), "v_add_u32 v%d, s%d, v%d" % (T0 + 2, sZI, T0),
          "v_lshlrev_b32 v%d, 4, v%d" % (vX, vX), "v_xor_b32 v%d, v%d, v%d" % (vX, vX, vL16), "v_xor_b32 v%d, 64, v%d" % (T0 + 3, vX),
          "v_add_u32 v%d, s%d, v%d" % (vX, sZO, vX), "v_add_u32 v%d, s%d, v%d" % (T0 + 3, sZO, T0 + 3), "v_add_u32 v%d, s%d, v%d" % (vY, sROW, vL16)]
    for o in va: a(o)
    a("s_waitcnt lgkmcnt(0)")
    signal(5)
    for bt in range(2):
        for nt in range(2):
            for p in range(2):
                a("%s %s, %s, %s, %s" % (mf, v(accy(bt, nt, p), 4), v(PK + 16 + 4 * bt, 4), v(M32Q[(2 * nt + 1) * 2 + p], 4), v(accy(bt, nt, p), 4)))
    wait(5)
    for i in range(32):
        a("v_mul_f32 v%d, v%d, v%d" % (AC + i, AC + i, vSC))
        if i & 1: a("v_cvt_pk_bf16_f32 v%d, v%d, v%d" % (ZA + i // 2, AC + i - 1, AC + i))
    for bt in range(2):
        for nt in range(2):
            for p in range(2):
                k = (2 * bt + nt) * 2 + p
                a("ds_write_b64 v%d, %s offset:%d" % ([[T0 + 4, vTI], [T0 + 1, T0 + 2]][bt][p], v(ZA + 2 * k, 2), nt * 2048))
    signal(6); wait(6)
    for n in range(4):
        a("ds_read_b128 %s, v%d offset:%d" % (v(AC + 4 * n, 4), T0 + 3 if n & 1 else vX, n * 1024))
    a("s_mov_b32 s%d, 0x%x" % (sT, Y1_OFF))
    for n in range(4):
        a("s_waitcnt lgkmcnt(%d)" % (3 - n))
        a.vm("buffer_store_dwordx4 %s, v%d, %s, s%d offen offset:%d sc1" % (v(AC + 4 * n, 4), vY, R, sT, n * 1024), "y")
    a.vm_mark("late")

class Loader:
    def __init__(self, a):
        self.a = a
        for o in ["v_lshrrev_b32 v6, 2, v1", "v_and_b32 v7, 3, v1", "v_lshlrev_b32 v7, 4, v7", "v_lshl_add_u32 v4, v6, 12, v7", "v_mov_b32 v6, 0",
                  "s_lshl_b32 s37, s16, 8", "s_lshl_b32 s28, s26, 6", "s_add_u32 s37, s37, s28", "s_lshl_b32 s28, s19, 16", "s_add_u32 s37, s37, s28",
                  "s_add_u32 s37, s37, 0x%x" % (Y1_OFF - 65536),
                  "s_lshl_b32 s28, s19, 2", "s_add_u32 s28, s28, %d" % (SW_LDS + 32), "v_mov_b32 v7, s28", "s_sub_u32 s39, s19, 1"]:
            a(o)
        peer_addr(a, 5)
        dma_bases(a)
        self.prog_load(1)
        self.u = 0
        self.issued = 0
    def prog_load(self, t): self.a.vm("buffer_load_dword v2, v5, s[4:7], 0 offen sc1", "pg%d" % t)
    def prog_check(self, t):
        a = self.a
        ok = a.newlabel("pok")
        a.vm_wait("pg%d" % t)
        chk_range(a, 2, 1, t, 3)
        a("s_cbranch_scc1 %s" % ok)
        lp = spin_begin(a, "pgw")
        a("buffer_load_dword v2, v5, s[4:7], 0 offen sc1")
        a("s_waitcnt vmcnt(0)")
        chk_range(a, 2, 1, t, 3)
        spin_end(a, lp)
        a.label(ok)
    def issue(self, n):
        if n in (14, 22): self.prog_load(2 if n == 14 else 3)
        if n in (16, 24): self.prog_check(2 if n == 16 else 3)
        if n == 32:
            a = self.a
            a("v_lshlrev_b32 v12, 12, v1")
            a("s_mul_i32 s28, s19, %d" % (144 * 4096 - 65536))
            a("s_add_u32 s28, s28, s37")
            a("s_add_u32 s28, s28, 65536")
            for i in range(3):
                a.vm("buffer_load_dword v%d, v12, s[4:7], s28 offen sc1" % (13 + i), "ypf")
                a("s_add_u32 s28, s28, %d" % (48 * 4096))
        for o in dma_ops(n, 3): k1d.emit_op(self.a, o)
        self.issued = n + 1
    def prefetch(self):
        self.prog_check(1)
        for n in range(4): self.issue(n)
    def svc(self):
        a = self.a; u = self.u
        a.vm_wait("k%d" % (2 * u + 2))
        if u == 2: a.vm_wait_mark("late")
        if u == 12: all_check(a, 8, 4, 6, "g4")
        a("s_barrier")
        if u in (0, 2):
            lab = a.newlabel("svc"); a("s_cmp_eq_u32 s19, 3"); a("s_cbranch_scc0 %s" % lab)
            if u == 0: flag_store(a, 3, 101, 4)
            else: flag_store(a, 0, 101, 12288)
            a.label(lab)
        if u == 10: all_load(a, 8, 4, 6, "g4")
        for n in range(self.issued, 2 * u + 9): self.issue(n)
        self.u += 1
    def publish(self, k):
        a = self.a
        a.vm_wait("k%d" % k)
        a("v_mov_b32 v8, %d" % k)
        a("ds_write_b32 v7, v8")
    def run(self):
        a = self.a
        while self.u < 18: self.svc()
        a.stamp()
        a("v_mov_b32 v10, %d" % (SW_LDS + 16))
        a("s_lshl_b32 s28, s26, 2")
        a("v_add_u32 v11, s28, v10")
        pub = 37
        n = self.issued
        while n < NK:
            hi = min(n + (0 if n == 43 else 1), NK - 1)
            if pub <= hi - 6:
                pub = hi - 6
                self.publish(pub); pub += 1
            lp = spin_begin(a, "cpw")
            if n - 8 <= 35:
                a("ds_read_b128 v[12:15], v10")
                a("s_waitcnt lgkmcnt(0)")
                a("v_min3_u32 v12, v12, v13, v14")
                a("v_min_u32 v12, v12, v15")
                a("s_nop 0")
            else:
                a("ds_read_b32 v12, v11")
                a("s_waitcnt lgkmcnt(0)")
            a("v_readfirstlane_b32 s28, v12")
            a("s_cmp_ge_u32 s28, %d" % (hi - 7))
            spin_end(a, lp, 0)
            for k in range(n, hi + 1): self.issue(k)
            n = hi + 1
        while pub < NK: self.publish(pub); pub += 1

def consumer(a):
    ACC = 96
    BUF = [8, 52]
    def lds_ref(addr, b0):
        k = addr // 49152
        return b0 + k, addr - k * 49152
    a("v_mov_b32 v2, v3")
    a("v_add_u32 v3, 49152, v2")
    a("v_add_u32 v4, 98304, v2")
    a("s_lshl_b32 s28, s19, 11")
    a("s_add_u32 s28, s28, 9216")
    a("v_add_u32 v5, s28, v2")
    a("v_add_u32 v6, 49152, v5")
    a("v_add_u32 v7, 98304, v5")
    for o in ["v_lshrrev_b32 v174, 5, v1", "v_lshlrev_b32 v174, 4, v174", "v_bfe_u32 v175, v1, 4, 1", "v_lshl_add_u32 v174, v175, 2, v174",
              "v_bfe_u32 v175, v1, 2, 2", "v_add_u32 v174, v174, v175", "v_lshlrev_b32 v174, 6, v174", "v_and_b32 v175, 3, v1",
              "v_lshl_add_u32 v174, v175, 3, v174", "v_add_u32 v168, 9216, v174", "v_add_u32 v169, 49152, v168", "v_add_u32 v170, 98304, v168",
              "v_mov_b32 v171, %d" % SW_LDS, "s_lshl_b32 s28, s19, 2", "v_add_u32 v172, s28, v171",
              "s_load_dwordx4 s[52:55], s[0:1], %d" % KA_B2]:
        a(o)
    SWR = 176
    def reads(n):
        B = BUF[n & 1]; slot = slot_addr(n); out = []
        if n < 36:
            for mt in range(2):
                br, off = lds_ref(slot + mt * 1024, 5)
                out.append("ds_read_b128 %s, v%d offset:%d" % (v(B + 4 * mt, 4), br, off))
        else:
            for mt in range(2):
                for hh in range(2):
                    br, off = lds_ref(slot + hh * 512 + mt * 32, 168)
                    out.append("ds_read_b64_tr_b16 %s, v%d offset:%d" % (v(B + 4 * mt + 2 * hh, 2), br, off))
        for t in range(9):
            br, off = lds_ref(slot + t * 1024, 2)
            out.append("ds_read_b128 %s, v%d offset:%d" % (v(B + 8 + 4 * t, 4), br, off))
        return out
    def kstep(n, rd, late=()):
        B = BUF[n & 1]
        rd = list(rd); late = list(late)
        per = [[] for _ in range(18)]
        for i, o in enumerate(rd): per[(i * 13) // len(rd)].append(o)
        for i, o in enumerate(late): per[13 + i].append(o)
        k = 0
        for t in range(9):
            for mt in range(2):
                acc = ACC + (2 * t + mt) * 4
                a("v_mfma_f32_16x16x32_bf16 %s, %s, %s, %s" % (v(acc, 4), v(B + 8 + 4 * t, 4), v(B + 4 * mt, 4), "0" if n == 0 else v(acc, 4)))
                for o in per[k]: k1d.emit_op(a, o)
                k += 1
    def swrd(grp): return "ds_read_b128 %s, v171 offset:%d" % (v(SWR + 4 * grp, 4), 16 * grp)
    def need(grp, val):
        R = SWR + 4 * grp
        ok = a.newlabel("nok")
        def chk():
            a("v_min3_u32 v%d, v%d, v%d, v%d" % (R, R, R + 1, R + 2))
            a("v_min_u32 v%d, v%d, v%d" % (R, R, R + 3))
            a("s_nop 0")
            a("v_readfirstlane_b32 s28, v%d" % R)
            a("s_cmp_ge_u32 s28, %d" % val)
        chk()
        a("s_cbranch_scc1 %s" % ok)
        lp = spin_begin(a, "nw")
        a(swrd(grp))
        a("s_waitcnt lgkmcnt(0)")
        chk()
        spin_end(a, lp, 0)
        a.label(ok)
    def setw(off, val):
        a("v_mov_b32 v174, %d" % val)
        a("ds_write_b32 v172, v174 offset:%d" % off)
    a("s_waitcnt vmcnt(0) lgkmcnt(0)")
    a.srd(44, 52, D * 2)
    a.srd(48, 54, S * D * 2)
    a.stamp()
    a("s_barrier")
    a.stamp()
    for r_ in reads(0): a(r_)
    for n in range(35):
        a("s_waitcnt lgkmcnt(0)")
        if n % 2 == 0 and n > 0: a("s_barrier")
        kstep(n, reads(n + 1))
    own = a.newlabel("own")
    a("s_waitcnt lgkmcnt(0)")
    setw(16, 36)
    a("s_cmp_eq_u32 s19, s26")
    a("s_cbranch_scc1 %s" % own)
    ns = a.nstamp
    kstep(35, [])
    a.stamp()
    a("s_andn2_b32 s28, s2, 0x21")
    a("s_lshr_b32 s29, s19, 1")
    a("s_or_b32 s28, s28, s29")
    a("s_and_b32 s29, s19, 1")
    a("s_lshl_b32 s29, s29, 5")
    a("s_or_b32 s28, s28, s29")
    a("s_lshl_b32 s30, s28, 7")
    a("s_add_u32 s30, s30, 0x%x" % XF_OFF)
    a("s_lshl_b32 s28, s28, 2")
    a("s_add_u32 s28, s28, s26")
    a("s_mul_i32 s28, s28, %d" % (9 * 1024))
    a("s_add_u32 s28, s28, 0x%x" % P_OFF)
    for t in range(9):
        for e in range(4):
            a("v_cvt_pk_bf16_f32 v%d, v%d, v%d" % (28 + 4 * t + e, ACC + 8 * t + 2 * e, ACC + 8 * t + 2 * e + 1))
        if t % 4 == 0 and t > 0: a("s_add_u32 s28, s28, 4096")
        a("buffer_store_dwordx4 %s, v2, s[4:7], s28 offen offset:%d sc1" % (v(28 + 4 * t, 4), (t % 4) * 1024))
    a("s_lshl_b32 s29, s26, 2")
    a("s_add_u32 s30, s30, s29")
    a("s_sub_u32 s31, s19, s26")
    a("s_sub_u32 s31, s31, 1")
    a("s_and_b32 s31, s31, 3")
    X, Bv, P = 8, 20, 28
    a("v_and_b32 v4, 15, v1")
    a("s_lshl_b32 s28, s16, 7")
    a("s_lshl_b32 s29, s26, 5")
    a("s_add_u32 s28, s28, s29")
    a("v_add_u32 v4, s28, v4")
    a("v_mul_u32_u24 v4, 1152, v4")
    a("v_lshrrev_b32 v5, 4, v1")
    a("v_lshlrev_b32 v5, 3, v5")
    a("s_mul_i32 s28, s27, 288")
    a("s_mul_i32 s29, s31, 96")
    a("s_add_u32 s28, s28, s29")
    a("v_add_u32 v5, s28, v5")
    a("v_add_u32 v4, v4, v5")
    a("v_add_u32 v6, %d, v4" % (16 * 1152))
    for f in range(6):
        a("buffer_load_dwordx2 %s, v%d, s[40:43], 0 offen offset:%d" % (v(X + 2 * f, 2), 6 if f & 1 else 4, 32 * (f >> 1)))
    for t in range(3):
        a("buffer_load_dwordx2 %s, v5, s[44:47], 0 offen offset:%d" % (v(Bv + 2 * t, 2), 32 * t))
    a("s_waitcnt vmcnt(9)")
    flag_store(a, 0, 30)
    a.stamp()
    a("v_and_b32 v7, 3, v1")
    a("v_min_u32 v7, 2, v7")
    a("s_add_u32 s28, s26, 1")
    a("v_add_u32 v7, s28, v7")
    a("v_and_b32 v7, 3, v7")
    a("v_lshlrev_b32 v7, 2, v7")
    a("s_lshl_b32 s34, s2, 7")
    a("s_add_u32 s34, s34, 0x%x" % XF_OFF)
    lp = spin_begin(a, "xpoll")
    a("buffer_load_dword v100, v7, s[4:7], s34 offen sc1")
    a("s_waitcnt vmcnt(0)")
    chk_range(a, 100, 1, 0, 0)
    spin_end(a, lp, 2)
    a.stamp()
    a("s_mul_i32 s28, s2, %d" % (4 * 9 * 1024))
    a("s_mul_i32 s29, s31, 3072")
    a("s_add_u32 s28, s28, s29")
    a("s_add_u32 s28, s28, 0x%x" % P_OFF)
    for i in range(3):
        a("s_add_u32 s29, s26, %d" % (i + 1))
        a("s_and_b32 s29, s29, 3")
        a("s_mul_i32 s29, s29, %d" % (9 * 1024))
        a("s_add_u32 s29, s29, s28")
        for t in range(3):
            a("buffer_load_dwordx4 %s, v2, s[4:7], s29 offen offset:%d sc1" % (v(P + 12 * i + 4 * t, 4), t * 1024))
    O = 104
    for f in range(6):
        bq = Bv + 2 * (f >> 1)
        for e in range(2):
            a("v_lshlrev_b32 v%d, 16, v%d" % (O + 4 * f + 2 * e, X + 2 * f + e))
            a("v_and_b32 v%d, 0xffff0000, v%d" % (O + 4 * f + 2 * e + 1, X + 2 * f + e))
            a("v_lshlrev_b32 v100, 16, v%d" % (bq + e))
            a("v_and_b32 v101, 0xffff0000, v%d" % (bq + e))
            a("v_add_f32 v%d, v%d, v100" % (O + 4 * f + 2 * e, O + 4 * f + 2 * e))
            a("v_add_f32 v%d, v%d, v101" % (O + 4 * f + 2 * e + 1, O + 4 * f + 2 * e + 1))
    for pr in range(3):
        vals = [red_addr(6 * gi + 2 * pr) for gi in range(3)]
        a("s_mov_b32 s28, %d" % vals[2])
        a("s_cmp_eq_u32 s31, 1"); a("s_cselect_b32 s28, %d, s28" % vals[1])
        a("s_cmp_eq_u32 s31, 0"); a("s_cselect_b32 s28, %d, s28" % vals[0])
        a("v_add_u32 v%d, s28, v2" % (4 + pr))
    for i in range(3):
        a("s_waitcnt vmcnt(%d)" % (6 - 3 * i))
        for e in range(12):
            a("v_lshlrev_b32 v100, 16, v%d" % (P + 12 * i + e))
            a("v_and_b32 v101, 0xffff0000, v%d" % (P + 12 * i + e))
            a("v_add_f32 v%d, v%d, v100" % (O + 2 * e, O + 2 * e))
            a("v_add_f32 v%d, v%d, v101" % (O + 2 * e + 1, O + 2 * e + 1))
    for f in range(6):
        a("ds_write_b128 v%d, %s offset:%d" % (4 + (f >> 1), v(O + 4 * f, 4), (f & 1) * 1024))
    a("v_mov_b32 v7, %d" % RC_LDS)
    a("v_mov_b32 v8, 1")
    one_lane(a, ["ds_add_u32 v7, v8"])
    a.stamp(); a.stamp(True)
    a.stamp_flush(4, STAMP_OFF, 18, 72)
    a("s_endpgm")
    a.label(own)
    a.nstamp = ns
    for n in range(35, NK):
        if n > 35:
            a("s_waitcnt lgkmcnt(0)")
            setw(16, n + 1)
        if n + 1 < NK:
            if n > 35: need(2, n + 1)
            kstep(n, reads(n + 1), [swrd(2)])
        else:
            kstep(n, [])
        if n == 35: a.stamp()
    a.stamp()
    a("v_and_b32 v4, 15, v1")
    a("s_lshl_b32 s28, s16, 7")
    a("s_lshl_b32 s29, s26, 5")
    a("s_add_u32 s28, s28, s29")
    a("v_add_u32 v4, s28, v4")
    a("v_mul_u32_u24 v4, 1152, v4")
    a("v_lshrrev_b32 v5, 4, v1")
    a("v_lshlrev_b32 v5, 3, v5")
    a("s_mul_i32 s28, s27, 288")
    a("v_add_u32 v5, s28, v5")
    a("v_add_u32 v4, v4, v5")
    a("v_add_u32 v6, %d, v4" % (16 * 1152))
    a("v_add_u32 v3, 131072, v2")
    a("v_add_u32 v7, 65536, v2")
    a("v_mov_b32 v9, %d" % RC_LDS)
    lp = spin_begin(a, "rcw")
    a("ds_read_b32 v8, v9")
    a("s_waitcnt lgkmcnt(0)")
    a("v_readfirstlane_b32 s28, v8")
    a("s_cmp_ge_u32 s28, 3")
    spin_end(a, lp, 1)
    a.stamp()
    for f in range(18):
        ra = red_addr(f)
        a("ds_read_b128 %s, v%d offset:%d" % (v(8 + 4 * f, 4), 3 if ra >= 131072 else 7, ra - 131072 if ra >= 131072 else ra - 65536))
    for f in range(18):
        a("s_waitcnt lgkmcnt(%d)" % min(15, 17 - f))
        for e in range(4):
            a("v_add_f32 v%d, v%d, v%d" % (ACC + 4 * f + e, ACC + 4 * f + e, 8 + 4 * f + e))
        a("v_cvt_pk_bf16_f32 v%d, v%d, v%d" % (8 + 4 * f, ACC + 4 * f, ACC + 4 * f + 1))
        a("v_cvt_pk_bf16_f32 v%d, v%d, v%d" % (9 + 4 * f, ACC + 4 * f + 2, ACC + 4 * f + 3))
        a("buffer_store_dwordx2 %s, v%d, s[48:51], 0 offen offset:%d" % (v(8 + 4 * f, 2), 6 if f & 1 else 4, 32 * (f >> 1)))

def gen_mega(a):
    return k1d.gen_k1(a, Hooks(), "mega_kernel")

if __name__ == "__main__":
    import gen
    gen.build([gen_mega], "m1.s")
    gen.build([gen_mega], "m1t.s", True)
```

```python
import os
from asmlib import *
from layout import *
from k1 import ids
import k0

UNIT = 36864
SP = 4 * UNIT
ROWP_LDS = SP
AUG_LDS = SP + 512
ZERO_LDS = AUG_LDS + 3456
FLG_LDS = ZERO_LDS + 64
STAT_LDS = SP + 4096
CSF_LDS = SP + 14336
K1_LDS = SP + 16384
WTS = STAT_LDS
SCR = STAT_LDS

XN = 88
ACCS = [16, 32]
FR = 48
NFR = 6
T = 72
XA = 232
AUGR = 236
EX = 240
NV = 256
OOB = 0x7ff00000
SC = os.environ.get("K1_SC", " sc1")
PF1 = int(os.environ.get("PF1", "0"))
ROT = int(os.environ.get("ROT", "1"))
C0 = -2.0 * 1.4426950408889634 * 0.7978845608028654

def emit_op(a, o):
    if isinstance(o, str): a(o)
    elif o[0] == "vm": a.vm(o[1], o[2])
    elif o[0] == "ds": a.ds(o[1], o[2])
    elif o[0] == "vwait": a.vm_wait(o[1])
    elif o[0] == "lwait": a.lg_wait(o[1])
    elif o[0] == "call": o[1]()
    elif o[0] == "cond":
        lab = a.newlabel("skip")
        a(o[1]); a("s_cbranch_scc0 %s" % lab)
        for x in o[2]: a(x)
        a.label(lab)
        if o[3]: a.vm_mark(o[3])
    elif o[0] == "mwait": a.vm_wait_mark(o[1])
    elif o[0] == "grp":
        for x in o[1]: emit_op(a, x)
    else: raise ValueError(o)

def split3(c, t, w0, w1, last):
    return ["v_cvt_pk_bf16_f32 v%d, v%d, v%d" % (t, c, c),
            "v_lshlrev_b32 v%d, 16, v%d" % (t, t),
            "v_sub_f32 v%d, v%d, v%d" % (t, c, t),
            "v_cvt_pk_bf16_f32 v%d, v%d, v%d" % (w0, c, t),
            "v_and_b32 v%d, 0xffff0000, v%d" % (c, w0),
            "v_sub_f32 v%d, v%d, v%d" % (t, t, c),
            "v_cvt_pk_bf16_f32 v%d, v%d, %s" % (w1, t, last)]

def gen_k1(a, hooks=None, name="k1_kernel"):
    a.kernel_begin(name)
    a("s_cmp_ge_u32 s2, 256")
    a("s_cbranch_scc1 L_k1_end")
    a.lg_reset()
    a.stamp()
    a.stamp(True)
    a("s_load_dwordx4 s[20:23], s[0:1], %d" % KA_X)
    a("s_load_dwordx2 s[24:25], s[0:1], %d" % KA_WI)
    a("s_load_dwordx4 s[36:39], s[0:1], %d" % KA_W1)
    a("s_load_dwordx2 s[56:57], s[0:1], %d" % KA_W2)
    a("s_load_dwordx4 s[52:55], s[0:1], %d" % KA_DBG)
    ids(a)
    a("s_lshl_b32 s28, s16, 7")
    a("s_lshl_b32 s29, s19, 5")
    a("s_add_u32 s33, s28, s29")
    a("v_and_b32 v11, 31, v1")
    a("v_lshrrev_b32 v14, 5, v1")
    a("v_lshlrev_b32 v3, 4, v1")
    a("v_mov_b32 v15, 0x%x" % OOB)
    a("s_lshl_b32 s34, s16, 3")
    a("s_add_u32 s34, s34, s18")
    a("s_mul_i32 s34, s34, %d" % (16 * 1152))
    a("s_mul_i32 s3, s18, %d" % (18 * 1024))
    a("v_lshrrev_b32 v4, 3, v1")
    a("v_lshrrev_b32 v5, 1, v4")
    a("v_and_b32 v6, 7, v1")
    a("v_xor_b32 v5, v5, v6")
    a("v_mul_u32_u24 v4, 1152, v4")
    a("v_lshl_add_u32 v8, v5, 4, v4")
    a("v_xor_b32 v9, 64, v8")
    a("s_waitcnt lgkmcnt(0)")
    a.srd(40, 20, S * D * 2)
    a.vm_reset()
    def xdma(i):
        return ["s_add_u32 m0, s3, %d" % (i * 1024), "s_add_u32 s30, s34, %d" % ((i // 9) * 9216 + (i % 9) * 128),
                ("vm", "buffer_load_dwordx4 v%d, s[40:43], s30 offen lds" % (8 + i // 9), "x")]
    a.srd(8, 36, D * F * 2)
    a("s_mul_i32 s35, s17, 576")
    CJ = XN + 40
    nocs = a.newlabel("nocs")
    a("s_cmp_lt_u32 s18, 6")
    a("s_cbranch_scc1 %s" % nocs)
    a("v_subrev_u32 v4, 384, v0")
    a("v_mul_u32_u24 v12, 1821, v4")
    a("v_lshrrev_b32 v12, 16, v12")
    a("v_mul_u32_u24 v13, 36, v12")
    a("v_sub_u32 v13, v4, v13")
    a("v_mul_u32_u24 v%d, 1152, v12" % (CJ + 48))
    a("v_lshl_add_u32 v%d, v13, 5, v%d" % (CJ + 48, CJ + 48))
    a("v_add_u32 v%d, %d, v%d" % (CJ + 48, AUG_LDS, CJ + 48))
    a("s_mov_b32 s29, %d" % (12 * 9216))
    a("v_mul_lo_u32 v12, v12, s29")
    a("v_lshl_add_u32 v12, v13, 4, v12")
    a("v_cmp_gt_u32 vcc, 108, v4")
    a("s_mul_i32 s28, s16, %d" % (36 * 9216))
    a("s_add_u32 s28, s28, s35")
    a("v_cndmask_b32 v12, v15, v12, vcc")
    for i in range(12):
        a("buffer_load_dwordx4 %s, v12, s[8:11], s28 offen" % v(CJ + 4 * i, 4))
        if i < 11: a("s_add_u32 s28, s28, 9216")
    a.label(nocs)
    NX0 = 6
    for i in range(NX0):
        for o in xdma(i): emit_op(a, o)
    a.srd(4, 54, WS_USED)
    a.srd(12, 38, F * 2)
    a.srd(44, 22, S * 289 * 2)
    a.srd(48, 24, S * 289 * 2)
    a("s_mov_b32 s58, s52"); a("s_mov_b32 s59, s53")
    a.srd(52, 56, F * D * 2)
    a.srd(20, 58, 256)
    lab = a.newlabel("nonce")
    a("s_or_b32 s28, s2, s18")
    a("s_cmp_eq_u32 s28, 0")
    a("s_cbranch_scc0 %s" % lab)
    a("s_memrealtime s[28:29]")
    a("s_waitcnt lgkmcnt(0)")
    a("s_lshl_b32 s28, s28, 3")
    a("s_or_b32 s28, s28, 8")
    a("v_mov_b32 v16, s28")
    a("v_mov_b32 v17, 0")
    a("s_mov_b64 exec, 1")
    a("buffer_store_dword v16, v17, s[20:23], 0 offen sc1")
    a("s_mov_b64 exec, -1")
    a.label(lab)
    a("s_lshl_b32 s101, s2, 4")
    a("s_add_u32 s101, s101, 0x%x" % FLAG_OFF)
    if int(os.environ.get("LIN", "0")):
        a("v_lshlrev_b32 v250, 7, v1")
        a("s_mul_i32 s28, s2, 20736")
        a("s_and_b32 s28, s28, 0xffffff80")
        a("s_cmp_ge_u32 s18, 3"); a("s_cselect_b32 s29, 3, 0"); a("s_sub_u32 s29, s18, s29"); a("s_lshl_b32 s29, s29, 13"); a("s_add_u32 s28, s28, s29")
        emit_op(a, ("cond", "s_cmp_lt_u32 s18, 3", ["buffer_load_dword v251, v250, s[8:11], s28 offen"], None))
        a("s_sub_u32 s29, s18, 3")
        emit_op(a, ("cond", "s_cmp_lt_u32 s29, 3", ["buffer_load_dword v251, v250, s[52:55], s28 offen"], None))
    a("v_bfe_u32 v13, v1, 2, 3")
    a("v_and_b32 v12, 3, v1")
    a("v_lshlrev_b32 v12, 4, v12")
    a("v_lshl_add_u32 v12, v14, 6, v12")
    a("v_mul_u32_u24 v2, 9216, v13")
    a("v_add_u32 v2, v2, v12")
    a("v_cmp_eq_u32 s[24:25], 1, v14")
    a("s_cmp_eq_u32 s26, 1")
    a("s_cbranch_scc1 L_k1_g1")
    ns0 = a.nstamp
    vm0 = list(a.vmq)
    FG = 16

    def group(g):
        a.nstamp = ns0
        a.vmq = list(vm0)
        a.lg_reset()
        a("s_mul_i32 s36, s17, 36")
        a("s_add_u32 s36, s36, %d" % (32 * g))
        a("v_add_u32 v%d, s36, v11" % T)
        a("v_lshrrev_b32 v%d, 1, v%d" % (T + 1, T))
        a("v_and_b32 v%d, 1, v%d" % (T + 2, T))
        a("v_mul_u32_u24 v%d, 144, v%d" % (T + 2, T + 2))
        a("v_cmp_eq_u32 vcc, 1, v%d" % T)
        a("v_mov_b32 v%d, 288" % (T + 3))
        a("s_nop 0")
        a("v_cndmask_b32 v%d, v%d, v%d, vcc" % (T + 1, T + 1, T + 3))
        a("v_cndmask_b32 v%d, v%d, 0, vcc" % (T + 2, T + 2))
        a("s_mul_i32 s37, s19, 144")
        a("v_lshlrev_b32 v%d, 3, v14" % (T + 3))
        a("v_add_u32 v%d, s37, v%d" % (T + 3, T + 3))
        a("v_mad_u32_u24 v%d, v%d, v%d, v%d" % (T + 3, T + 3, T + 1, T + 2))
        def mod576(x, t):
            a("v_cvt_f32_u32 v%d, v%d" % (t, x))
            a("v_mul_f32 v%d, 0x%x, v%d" % (t, f32bits(1.0 / 576), t))
            a("v_cvt_u32_f32 v%d, v%d" % (t, t))
            a("v_mul_u32_u24 v%d, 576, v%d" % (t, t))
            a("v_sub_u32 v%d, v%d, v%d" % (x, x, t))
        mod576(T + 3, T + 4)
        a("v_mul_u32_u24 v%d, 15, v%d" % (T + 5, T + 1))
        mod576(T + 5, T + 4)
        a("v_cvt_f32_u32 v%d, v%d" % (T + 6, T + 1))
        a("v_mul_f32 v%d, 0x%x, v%d" % (T + 6, f32bits(1.0 / 576), T + 6))
        a("v_cos_f32 v%d, v%d" % (T + 6, T + 6))
        a("v_mov_b32 v%d, 0" % (T + 7))
        a("v_add_f32 v%d, v%d, v%d" % (T + 6, T + 6, T + 6))
        a("v_mov_b32 v%d, 0x3f803f80" % (T + 2))
        rN, rJ, rJ15, rC = T + 3, T + 1, T + 5, T + 6
        for i in range(9):
            for j in range(2):
                tv = T + 8 + j
                a("v_cvt_f32_u32 v%d, v%d" % (tv, rN))
                a("v_add_u32 v%d, v%d, v%d" % (rN, rN, rJ if j == 0 else rJ15))
                a("v_mul_f32 v%d, 0x%x, v%d" % (tv, f32bits(1.0 / 576), tv))
                a("v_subrev_u32 v%d, 576, v%d" % (T + 4, rN))
                a("v_cos_f32 v%d, v%d" % (tv, tv))
                a("v_min_u32 v%d, v%d, v%d" % (rN, rN, T + 4))
            for j in range(2, 8):
                a("v_fma_f32 v%d, v%d, v%d, -v%d" % (T + 8 + j, rC, T + 7 + j, T + 6 + j))
                if j % 2 == 1:
                    k = (j - 3) // 2
                    a("v_cvt_pk_bf16_f32 v%d, v%d, v%d" % (FG + 4 * i + k, T + 8 + 2 * k, T + 8 + 2 * k + 1))
            a("v_cvt_pk_bf16_f32 v%d, v%d, v%d" % (FG + 4 * i + 3, T + 14, T + 15))
            for k in range(4):
                a("v_dot2c_f32_bf16 v%d, v%d, v%d" % (T + 7, FG + 4 * i + k, T + 2))
            for xi in range(NX0 + (12 * i) // 9, NX0 + (12 * (i + 1)) // 9):
                for o in xdma(xi): emit_op(a, o)
        a("s_lshl_b32 s36, s19, 8")
        a("s_add_u32 s36, s36, %d" % (CSF_LDS + 1024 * g))
        a("v_lshlrev_b32 v12, 2, v1")
        a("v_add_u32 v12, s36, v12")
        a("ds_write_b32 v12, v%d" % (T + 7))
        a("s_lshl_b32 s36, s18, 8")
        a("s_add_u32 s36, s36, s2")
        if g == 0:
            a("v_lshlrev_b32 v12, 2, v0")
            a("v_add_u32 v12, %d, v12" % ZERO_LDS)
            a("v_mov_b32 v13, 0")
            a("v_cmp_gt_u32 vcc, 32, v0")
            a("s_and_saveexec_b64 s[36:37], vcc")
            a("ds_write_b32 v12, v13")
            a("s_mov_b64 exec, s[36:37]")
        else:
            a("s_sub_u32 s36, s36, 1024")
            k0.job_tab(a, XN + 16, 36, 4, 37)
            nocs = a.newlabel("nocs2")
            a("s_cmp_lt_u32 s18, 6")
            a("s_cbranch_scc1 %s" % nocs)
            a("s_waitcnt vmcnt(%d)" % len(a.vmq))
            for k in range(4):
                a("v_lshlrev_b32 v%d, 16, v%d" % (T + 2 * k, CJ + k))
                a("v_and_b32 v%d, 0xffff0000, v%d" % (T + 2 * k + 1, CJ + k))
            for i in range(1, 12):
                for k in range(4):
                    a("v_lshlrev_b32 v%d, 16, v%d" % (T + 8 + 2 * k, CJ + 4 * i + k))
                    a("v_and_b32 v%d, 0xffff0000, v%d" % (T + 9 + 2 * k, CJ + 4 * i + k))
                for k in range(8):
                    a("v_add_f32 v%d, v%d, v%d" % (T + k, T + k, T + 8 + k))
            a("v_cmp_gt_u32 vcc, 492, v0")
            a("s_and_saveexec_b64 s[36:37], vcc")
            a("ds_write_b128 v%d, %s" % (CJ + 48, v(T, 4)))
            a("ds_write_b128 v%d, %s offset:16" % (CJ + 48, v(T + 4, 4)))
            a("s_mov_b64 exec, s[36:37]")
            a.label(nocs)
        for o in ["s_cmp_ge_u32 s18, 3", "s_cselect_b32 s38, 3, 0", "s_sub_u32 s38, s18, s38", "s_lshl_b32 s38, s38, 12", "s_add_u32 s38, s38, %d" % SCR,
                  "s_lshl_b32 s56, s18, 8", "s_add_u32 s56, s56, s2",
                  "s_mul_hi_u32 s32, s56, 0x%x" % ((2**32 + 8) // 9), "s_mul_i32 s28, s32, 9", "s_sub_u32 s28, s56, s28",
                  "s_mul_i32 s3, s32, %d" % (32 * 1152), "s_lshl_b32 s57, s28, 7", "s_add_u32 s3, s3, s57",
                  "v_lshrrev_b32 v4, 3, v1", "v_mul_u32_u24 v4, 1152, v4", "v_and_b32 v5, 7, v1",
                  "v_lshl_add_u32 v%d, v5, 4, v4" % (EX + 8),
                  "s_mul_i32 s32, s32, 36", "s_lshl_b32 s28, s28, 2", "s_add_u32 s32, s32, s28", "s_lshl_b32 s32, s32, 10",
                  "s_add_u32 s32, s32, 0x%x" % W2P_OFF,
                  "s_mov_b32 s100, s56",
                  "s_and_b32 s56, s2, 31", "s_lshr_b32 s57, s2, 5",
                  "s_lshr_b32 s28, s56, 4", "s_lshl_b32 s28, s28, 4", "s_and_b32 s36, s56, 15", "s_lshl_b32 s36, s36, 7", "s_add_u32 s28, s28, s36",
                  "s_mul_i32 s28, s28, 578", "s_mul_i32 s36, s57, 72", "s_add_u32 s28, s28, s36",
                  "v_mul_u32_u24 v4, 13108, v0", "v_lshrrev_b32 v4, 16, v4",
                  "v_mul_u32_u24 v5, 5, v4", "v_sub_u32 v5, v0, v5",
                  "v_lshrrev_b32 v6, 4, v4", "v_lshlrev_b32 v6, 5, v6", "v_and_b32 v7, 15, v4",
                  "v_add_u32 v6, v6, v7", "v_mul_u32_u24 v6, 578, v6",
                  "v_lshl_add_u32 v6, v5, 4, v6", "v_and_b32 v4, 1, v4", "v_lshlrev_b32 v4, 1, v4",
                  "v_sub_u32 v6, v6, v4", "v_add_u32 v%d, s28, v6" % (EX + 9),
                  "s_mul_i32 s57, s57, %d" % (36 * 8192), "s_lshl_b32 s56, s56, 8",
                  "s_add_u32 s56, s56, s57", "s_add_u32 s56, s56, 0x%x" % WT_OFF]:
            a(o)
        a("s_lshl_b32 s36, s19, 5")
        a("v_add_u32 v13, s36, v11")
        a("v_bfe_u32 v12, v13, 1, 3")
        a("v_lshrrev_b32 v10, 3, v13")
        a("v_mul_u32_u24 v10, 9216, v10")
        a("v_and_b32 v9, 7, v13")
        a("v_lshl_add_u32 v10, v9, 7, v10")
        for q in range(4):
            a("v_add_u32 v%d, %d, v14" % (4 + q, 2 * q))
            a("v_xor_b32 v%d, v%d, v12" % (4 + q, 4 + q))
            a("v_lshl_add_u32 v%d, v%d, 4, v10" % (4 + q, 4 + q))
        a("v_lshlrev_b32 v9, 5, v13")
        a("v_add_u32 v9, %d, v9" % STAT_LDS)
        a("v_lshl_add_u32 v8, v14, 3, v9")
        a.vm_wait("x", " lgkmcnt(0)")
        a("s_barrier")
        a.stamp()
        own = list(range(18 * g, 18 * g + 18)); oth = list(range(18 * (1 - g), 18 * (1 - g) + 18))
        def xrd(s_): a("ds_read_b128 %s, v%d offset:%d" % (v(XN + 4 * s_, 4), 4 + (s_ & 3), (s_ >> 2) * 1024))
        if g == 1:
            pub = a.newlabel("nopub")
            a("s_cmp_eq_u32 s18, 7")
            a("s_cbranch_scc0 %s" % pub)
            a("v_lshlrev_b32 v12, 5, v1")
            a("v_add_u32 v13, %d, v12" % AUG_LDS)
            for kk in range(3):
                for hh in range(2):
                    a("ds_read_b128 %s, v13 offset:%d" % (v(XA + 8 * kk + 4 * hh if kk < 2 else T + 4 * hh, 4), kk * 1152 + hh * 16))
            a("s_lshl_b32 s36, s17, 4")
            a("s_add_u32 s36, s36, s16")
            a("s_mul_i32 s36, s36, 1152")
            a("s_add_u32 s36, s36, 0x%x" % CS_OFF)
            a("v_cmp_gt_u32 vcc, 36, v1")
            a("s_nop 1")
            a("v_cndmask_b32 v12, v15, v12, vcc")
            a("s_waitcnt lgkmcnt(0)")
            for i in range(8):
                a("v_add_f32 v%d, v%d, v%d" % (XA + i, XA + i, XA + 8 + i))
                a("v_add_f32 v%d, v%d, v%d" % (XA + i, XA + i, T + i))
            a("buffer_store_dwordx4 %s, v12, s[4:7], s36 offen sc1" % v(XA, 4))
            a("buffer_store_dwordx4 %s, v12, s[4:7], s36 offen offset:16 sc1" % v(XA + 4, 4))
            a.label(pub)
        csmark = len(a.vmq)
        a("v_mov_b32 v253, 0")
        a.vm("buffer_load_dword v255, v253, s[20:23], 0 offen sc1", "nonce")
        if PF1:
            a("s_and_b32 s28, s35, 0xffffff80")
            a("s_and_b32 s29, s16, 3")
            a("s_mul_i32 s29, s29, %d" % (144 * 9216))
            a("s_add_u32 s28, s28, s29")
            for rd_ in range(2):
                a("v_add_u32 v12, %d, v0" % (512 * rd_))
                a("v_mul_u32_u24 v13, 13108, v12")
                a("v_lshrrev_b32 v13, 16, v13")
                a("v_mul_u32_u24 v250, 5, v13")
                a("v_sub_u32 v250, v12, v250")
                a("v_mul_u32_u24 v13, 9216, v13")
                a("v_lshl_add_u32 v13, v250, 7, v13")
                if rd_ == 0:
                    a.vm("buffer_load_dword v251, v13, s[8:11], s28 offen", "pf")
                else:
                    a("v_cmp_gt_u32 vcc, 720, v12")
                    a("s_nop 1")
                    a("v_cndmask_b32 v13, v15, v13, vcc")
                    if g == 0: a.vm("buffer_load_dword v252, v13, s[8:11], s28 offen", "pf")
        a("v_mul_u32_u24 v12, 1152, v11")
        emit_op(a, ("cond", "s_cmp_lt_u32 s100, 1296", ["buffer_load_dword v254, v12, s[52:55], s3 offen"], None))
        for s_ in own: xrd(s_)
        for i in range(8): a("v_mov_b32 v%d, 0" % (T + 8 + i))
        a("v_mov_b32 v%d, 0x3f803f80" % (T + 7))
        for n in range(18):
            xrd(oth[n])
            a("s_waitcnt lgkmcnt(15)")
            for kk in range(4):
                x = XN + 4 * own[n] + kk
                a("v_dot2c_f32_bf16 v%d, v%d, v%d" % (T + 8 + kk, x, T + 7))
                a("v_dot2c_f32_bf16 v%d, v%d, v%d" % (T + 12 + kk, x, x))
        a("s_nop 2")
        for A in (T + 8, T + 12):
            a("v_add_f32 v%d, v%d, v%d" % (A, A, A + 1))
            a("v_add_f32 v%d, v%d, v%d" % (A + 2, A + 2, A + 3))
        a("v_add_f32 v%d, v%d, v%d" % (T + 8, T + 8, T + 10))
        a("v_add_f32 v%d, v%d, v%d" % (T + 9, T + 12, T + 14))
        a("ds_write_b64 v8, %s offset:%d" % (v(T + 8, 2), 16 * g))
        a("v_bfe_u32 v13, v1, 2, 2")
        a("v_lshlrev_b32 v12, 6, v13")
        a("v_bfe_u32 v13, v1, 4, 1")
        a("v_lshl_add_u32 v12, v13, 5, v12")
        a("v_and_b32 v13, 3, v1")
        a("v_lshl_add_u32 v12, v13, 3, v12")
        a("v_lshl_add_u32 v12, v14, 10, v12")
        a("v_add_u32 v12, %d, v12" % (512 * g))
        a("s_lshr_b32 s36, s19, 1")
        a("s_mul_i32 s36, s36, %d" % UNIT)
        a("s_and_b32 s37, s19, 1")
        a("s_mul_i32 s37, s37, %d" % (9 * 2048))
        a("s_add_u32 s36, s36, s37")
        a("v_add_u32 v13, s36, v3")
        a("s_lshl_b32 s29, s27, 6")
        a("s_add_u32 s35, s35, s29")
        a("s_mul_i32 s34, s18, %d" % (8 * 9216))
        a("s_add_u32 s35, s35, s34")
        a("s_lshl_b32 s34, s18, 10")
        a("s_mul_i32 s29, s27, 640")
        a("s_sub_u32 s31, s35, s29")
        a("s_and_b32 s96, s16, %d" % (3 if ROT else 0))
        for pi in range(4):
            a("s_add_u32 s29, s96, %d" % pi)
            a("s_and_b32 s29, s29, 3")
            a("s_lshl_b32 s29, s29, 7")
            a("s_add_u32 s%d, s35, s29" % (92 + pi))
        a("s_waitcnt lgkmcnt(0)")
        a("s_barrier")
        a("ds_read_b128 %s, v9" % v(T, 4))
        a("ds_read_b128 %s, v9 offset:16" % v(T + 4, 4))
        for i in range(9):
            a("ds_write_b128 v13, %s offset:%d" % (v(FG + 4 * i, 4), i * 2048 + g * 1024))
        a("v_mov_b32 v4, v12")
        a("v_add_u32 v5, 49152, v12")
        a("v_add_u32 v6, 98304, v12")
        ndma = 5 if g == 0 else 4
        def dma_list(u):
            pi, kh = (u - 2) >> 1, u & 1
            out = []
            for n in range(ndma):
                off = (0 if pi < 4 else 512) + (kh * 288 + n * 64) * 9216
                out.append(("grp", ["s_add_u32 m0, s34, %d" % ((u % 4) * UNIT + n * 8192),
                                    "s_add_u32 s30, s%d, %d" % (92 + pi if pi < 4 else 31, off),
                                    ("vm", "buffer_load_dwordx4 v2, s[8:11], s30 offen lds", "u%d" % u)]))
            return out
        a("s_waitcnt lgkmcnt(9)")
        for o in ["v_add_f32 v%d, v%d, v%d" % (T, T, T + 2), "v_add_f32 v%d, v%d, v%d" % (T + 4, T + 4, T + 6),
                  "v_add_f32 v%d, v%d, v%d" % (T + 1, T + 1, T + 3), "v_add_f32 v%d, v%d, v%d" % (T + 5, T + 5, T + 7),
                  "v_add_f32 v%d, v%d, v%d" % (T, T, T + 4), "v_add_f32 v%d, v%d, v%d" % (T + 1, T + 1, T + 5),
                  "v_mul_f32 v%d, 0x%x, v%d" % (T, f32bits(1.0 / 576), T),
                  "v_mul_f32 v%d, 0x%x, v%d" % (T + 1, f32bits(1.0 / 576), T + 1),
                  "v_fma_f32 v%d, -v%d, v%d, v%d" % (T + 1, T, T, T + 1),
                  "v_max_f32 v%d, 0, v%d" % (T + 1, T + 1),
                  "v_cvt_pk_bf16_f32 v%d, -v%d, v%d" % (T + 2, T, T + 1),
                  "v_and_b32 v%d, 0xffff0000, v%d" % (T + 1, T + 2),
                  "v_add_f32 v%d, 0x%x, v%d" % (T + 1, f32bits(1e-5), T + 1),
                  "v_cvt_pk_bf16_f32 v%d, v%d, v%d" % (T + 1, T + 1, T + 1),
                  "v_lshlrev_b32 v%d, 16, v%d" % (T + 1, T + 1),
                  "v_sqrt_f32 v%d, v%d" % (T + 1, T + 1),
                  "v_and_b32 v%d, 0xffff, v%d" % (T + 2, T + 2),
                  "v_cvt_pk_bf16_f32 v%d, v%d, v%d" % (T + 1, T + 1, T + 1),
                  "v_lshl_or_b32 v%d, v%d, 16, v%d" % (XA, T + 2, T + 2),
                  "v_and_b32 v%d, 0xffff0000, v%d" % (T + 3, T + 1),
                  "v_or_b32 v%d, v%d, v%d" % (XA + 1, T + 3, T + 2),
                  "v_rcp_f32 v%d, v%d" % (T, T + 3),
                  "v_lshrrev_b32 v%d, 3, v9" % (T + 4),
                  "v_add_u32 v%d, %d, v%d" % (T + 4, ROWP_LDS - STAT_LDS // 8, T + 4),
                  "v_mul_f32 v%d, 0x%x, v%d" % (T + 1, f32bits(1.0 / 24), T),
                  "ds_write_b32 v%d, v%d" % (T + 4, T + 1),
                  "v_add_u32 v13, %d, v3" % (1024 * g)]:
            a(o)
        a("s_waitcnt lgkmcnt(0)")
        a("s_barrier")
        ok = a.newlabel("nok"); lp = a.newlabel("nlp")
        a.vm_wait("nonce")
        a("v_readfirstlane_b32 s59, v255")
        a("s_cmp_lg_u32 s59, 0")
        a("s_cbranch_scc1 %s" % ok)
        a("s_mov_b32 s28, 0")
        a.label(lp)
        a("s_sleep 8")
        a("buffer_load_dword v255, v253, s[20:23], 0 offen sc1")
        a("s_waitcnt vmcnt(0)")
        a("v_readfirstlane_b32 s59, v255")
        a("s_cmp_lg_u32 s59, 0")
        a("s_cbranch_scc1 %s" % ok)
        a("s_add_u32 s28, s28, 1")
        a("s_cmp_lt_u32 s28, 0x40000")
        a("s_cbranch_scc1 %s" % lp)
        a.label(ok)
        a.lg_reset()
        a.stamp()

        def prog_side():
            wl = []
            for arr in range(2):
                wl += ["s_add_u32 m0, s34, %d" % (WTS + arr * 5120), "s_nop 0",
                       "buffer_load_dwordx4 v%d, s[%d:%d], 0 offen lds" % (EX + 9, 44 + 4 * arr, 47 + 4 * arr)]
            ops = [("cond", "s_cmp_lt_u32 s18, 5", wl, "wt")]
            ops += dma_list(2)
            ops += ["v_mov_b32 v%d, 0" % (XA + 2), "v_mov_b32 v%d, 0" % (XA + 3), "v_mov_b32 v%d, 0" % (AUGR + 2), "v_mov_b32 v%d, 0" % (AUGR + 3),
                   "v_cndmask_b32 v%d, v%d, 0, s[24:25]" % (XA, XA), "v_cndmask_b32 v%d, v%d, 0, s[24:25]" % (XA + 1, XA + 1),
                   "v_mul_f32 v9, 0x%x, v%d" % (f32bits(C0), T),
                   "v_mul_f32 v10, v%d, v%d" % (T, T), "v_mul_f32 v10, v10, v%d" % T, "v_mul_f32 v10, 0x%x, v10" % f32bits(C0 * 0.044715)]
            ops += ["s_lshr_b32 s29, s33, 4", "v_bfe_u32 v%d, v1, 4, 1" % (T + 1), "v_add_u32 v%d, s29, v%d" % (T + 1, T + 1), "s_mov_b32 s29, %d" % (144 * 1024),
                    "v_mul_lo_u32 v7, v%d, s29" % (T + 1), "v_lshl_add_u32 v7, v14, 8, v7", "v_and_b32 v%d, 15, v1" % (T + 1), "v_lshl_add_u32 v7, v%d, 4, v7" % (T + 1),
                    "v_add_u32 v7, 0x%x, v7" % H_OFF,
                    "v_add_u32 v%d, %d, v11" % (T + 1, 32 * g), "s_mul_i32 s29, s17, 36", "v_add_u32 v12, s29, v%d" % (T + 1), "v_lshlrev_b32 v12, 12, v12",
                    "v_lshl_add_u32 v12, v14, 4, v12", "s_lshl_b32 s29, s33, 1", "s_add_u32 s29, s29, 0x%x" % X1_OFF, "v_add_u32 v12, s29, v12",
                    ("grp", ["v_cmp_gt_u32 vcc, 36, v%d" % (T + 1), "s_mul_i32 s39, s17, 9", "s_nop 0", "v_cndmask_b32 v12, v15, v12, vcc"])]
            ops += ["v_lshlrev_b32 v%d, 2, v11" % (T + 1), "v_add_u32 v%d, %d, v%d" % (T + 1, CSF_LDS + 1024 * g, T + 1)]
            for k in range(8): ops.append(("ds", "ds_read_b32 v%d, v%d offset:%d" % (T + 8 + k, T + 1, 128 * k), "csf"))
            ops += ["v_mov_b32 v11, v%d" % (T + 3),
                    "v_and_b32 v8, 31, v1", "v_lshlrev_b32 v8, 3, v8", "v_add_u32 v8, %d, v8" % AUG_LDS, "v_mov_b32 v%d, %d" % (T + 1, ZERO_LDS),
                    "v_cndmask_b32 v8, v8, v%d, s[24:25]" % (T + 1), ("lwait", "csf")]
            for k in range(1, 8): ops.append("v_add_f32 v%d, v%d, v%d" % (T + 8, T + 8, T + 8 + k))
            ops += split3(T + 8, T + 9, AUGR, AUGR + 1, "0")
            ops += ["v_cndmask_b32 v%d, v%d, 0, s[24:25]" % (AUGR, AUGR), "v_cndmask_b32 v%d, v%d, 0, s[24:25]" % (AUGR + 1, AUGR + 1)]
            return ops
        def prog_w2(rnd):
            cmpa = "s_cmp_eq_u32 s57, %d" % (rnd + 1)
            ld = []
            for n2 in range(2):
                wl = []
                for n in (2 * n2, 2 * n2 + 1):
                    wl += ["s_add_u32 m0, s38, %d" % (n * 1024), "s_add_u32 s28, s3, %d" % (n * 8 * 1152),
                           "buffer_load_dwordx4 v%d, s[52:55], s28 offen lds" % (EX + 8)]
                ld.append(("cond", cmpa, wl, "w2p"))
            fin = [("mwait", "w2p")]
            for hf in range(2):
                for nt in (2 * hf, 2 * hf + 1):
                    for h in range(2):
                        fin.append(("ds", "ds_read_b64_tr_b16 %s, v%d offset:%d" % (v(EX + 4 * (nt & 1) + 2 * h, 2), EX + 9, nt * 32 + h * 1024), "w2r"))
                fin.append(("lwait", "w2r"))
                fin.append(("cond", cmpa, ["buffer_store_dwordx4 %s, v3, s[4:7], s32 offen offset:%d%s" % (v(EX + 4 * (nt & 1), 4), nt * 1024, SC) for nt in (2 * hf, 2 * hf + 1)], "w2st"))
                fin.append("s_nop 0")
            return ld, fin
        def prog_w2addr():
            return ["v_lshrrev_b32 v%d, 5, v1" % (EX + 9), "v_lshlrev_b32 v%d, 4, v%d" % (EX + 9, EX + 9), "v_bfe_u32 v%d, v1, 4, 1" % (EX + 10),
                    "v_lshl_add_u32 v%d, v%d, 2, v%d" % (EX + 9, EX + 10, EX + 9), "v_bfe_u32 v%d, v1, 2, 2" % (EX + 10), "v_add_u32 v%d, v%d, v%d" % (EX + 9, EX + 9, EX + 10),
                    "v_lshlrev_b32 v%d, 7, v%d" % (EX + 9, EX + 9), "v_and_b32 v%d, 3, v1" % (EX + 10), "v_lshl_add_u32 v%d, v%d, 3, v%d" % (EX + 9, EX + 10, EX + 9),
                    "v_add_u32 v%d, s38, v%d" % (EX + 9, EX + 9),
                    ("grp", ["s_cmp_ge_u32 s18, 3", "s_cselect_b32 s57, 2, 1", "s_cmp_lt_u32 s100, 1296", "s_cselect_b32 s57, s57, 0"])]
        def prog_wt():
            ops = ["v_and_b32 v%d, 15, v0" % (T + 4), "v_mul_u32_u24 v%d, 80, v%d" % (T + 5, T + 4), "v_and_b32 v%d, 1, v0" % (T + 6),
                   "v_lshl_add_u32 v%d, v%d, 1, v%d" % (T + 5, T + 6, T + 5), "v_lshrrev_b32 v%d, 4, v0" % (T + 6),
                   "v_lshl_add_u32 v%d, v%d, 1, v%d" % (T + 5, T + 6, T + 5), "v_add_u32 v%d, %d, v%d" % (T + 5, WTS, T + 5),
                   "v_lshlrev_b32 v%d, 4, v%d" % (T + 4, T + 4), "v_lshl_add_u32 v%d, v%d, 13, v%d" % (T + 4, T + 6, T + 4),
                   ("grp", ["v_cmp_gt_u32 vcc, 80, v0", "v_add_u32 v%d, %d, v%d" % (T + 6, 32 * 8192, T + 4), "s_nop 0", "v_cndmask_b32 v%d, v15, v%d, vcc" % (T + 6, T + 6)])]
            for rd_ in range(2):
                for r in range(4):
                    ops.append(("ds", "ds_read_u16 v%d, v%d offset:%d" % (EX + 4 * rd_ + r, T + 5, r * 1280 + 64 * rd_), "wtr"))
                    ops.append(("ds", "ds_read_u16 v%d, v%d offset:%d" % (T + 8 + 4 * rd_ + r, T + 5, 5120 + r * 1280 + 64 * rd_), "wtr"))
            ops.append(("lwait", "wtr"))
            for e in range(8): ops.append("v_lshl_or_b32 v%d, v%d, 16, v%d" % (EX + e, T + 8 + e, EX + e))
            return ops
        def prog_st2():
            ops = [("vm", "buffer_store_dwordx4 %s, v%d, s[4:7], s56 offen%s" % (v(EX, 4), T + 4, SC), "side"),
                   ("cond", "s_cmp_lt_u32 s18, 2", ["buffer_store_dwordx4 %s, v%d, s[4:7], s56 offen%s" % (v(EX + 4, 4), T + 6, SC)], None)]
            return ops
        def cs_flag():
            pub = a.newlabel("noflag")
            a("s_cmp_eq_u32 s18, 7")
            a("s_cbranch_scc0 %s" % pub)
            a("v_mov_b32 v%d, s59" % (T + 2))
            a("v_mov_b32 v%d, 0" % (T + 1))
            a("s_waitcnt vmcnt(%d)" % min(63, len(a.vmq) - csmark))
            a("s_mov_b64 exec, 1")
            a("buffer_store_dword v%d, v%d, s[4:7], s101 offen sc1" % (T + 2, T + 1))
            a("s_mov_b64 exec, -1")
            a.label(pub)
        def cs_chk():
            a("v_cmp_eq_u32 vcc, s59, v254")
            a("s_nop 1")
            a("s_cmp_eq_u64 vcc, -1")
        def cs_fetch():
            skip = a.newlabel("csskip"); lp = a.newlabel("cspoll"); ok = a.newlabel("csok")
            a("s_cmp_lt_u32 s18, 5")
            a("s_cbranch_scc0 %s" % skip)
            a.vm_wait_mark("cspl")
            cs_chk()
            a("s_cbranch_scc1 %s" % ok)
            a("s_mov_b32 s33, 0")
            a.label(lp)
            a("s_sleep 4")
            a("buffer_load_dword v254, v253, s[4:7], 0 offen sc1")
            a("s_waitcnt vmcnt(0)")
            cs_chk()
            a("s_cbranch_scc1 %s" % ok)
            a("s_add_u32 s33, s33, 1")
            a("s_cmp_lt_u32 s33, 0x40000")
            a("s_cbranch_scc1 %s" % lp)
            a.label(ok)
            a("s_mul_i32 s28, s17, %d" % (16 * 1152))
            a("s_add_u32 s28, s28, 0x%x" % CS_OFF)
            a("s_mul_i32 s29, s17, 576")
            a("v_lshlrev_b32 v253, 3, v251")
            a("buffer_load_dwordx2 v[254:255], v253, s[12:15], s29 offen")
            for kk in range(4):
                a("buffer_load_dwordx4 %s, v252, s[4:7], s28 offen offset:%d sc1" % (v(T + 4 * kk, 4), kk * 1152))
            a.label(skip)
            a.vm_mark("csl")
        def prog_dft():
            acc = ACCS[0]
            ops = ["s_lshl_b32 s28, s19, 7", "v_lshlrev_b32 v%d, 4, v14" % T, "v_add_u32 v%d, s28, v%d" % (T, T), "v_add_u32 v%d, %d, v%d" % (T, ROWP_LDS, T)]
            RP = [EX, EX + 4, T + 4, T + 12]
            for i in range(4): ops.append(("ds", "ds_read_b128 %s, v%d offset:%d" % (v(RP[i], 4), T, 32 * i), "rowp"))
            ops.append(("lwait", "rowp"))
            for i in range(16):
                sc = RP[i >> 2] + (i & 3)
                ops.append("v_mul_f32 v%d, v%d, v%d" % (acc + i, acc + i, sc))
            for i in range(8): ops.append("v_cvt_pk_f16_f32 v%d, v%d, v%d" % (T + 8 + i, acc + 2 * i, acc + 2 * i + 1))
            ops += ["s_nop 0", "s_nop 0"]
            for i in (0, 2):
                ops += ["v_permlane32_swap_b32 v%d, v%d" % (T + 8 + 2 * i, T + 10 + 2 * i), "v_permlane32_swap_b32 v%d, v%d" % (T + 9 + 2 * i, T + 11 + 2 * i)]
            for i in range(2):
                ops.append(("vm", "buffer_store_dwordx4 %s, v12, s[4:7], 0 offen offset:%d%s" % (v(T + 8 + 4 * i, 4), 32 * i, SC), "side"))
            return ops
        def prog_cs0():
            return [("grp", ["s_and_b32 s28, s2, 0xe1", "v_bfe_u32 v253, v1, 2, 2", "v_lshlrev_b32 v253, 1, v253", "v_and_b32 v254, 3, v1", "v_lshl_add_u32 v253, v254, 3, v253",
                             "v_or_b32 v253, s28, v253", "v_lshlrev_b32 v253, 4, v253", "v_add_u32 v253, 0x%x, v253" % FLAG_OFF]),
                    ("cond", "s_cmp_lt_u32 s18, 5", ["buffer_load_dword v254, v253, s[4:7], 0 offen sc1"], "cspl"),
                    ("grp", ["s_lshl_b32 s28, s18, 4", "v_and_b32 v251, 15, v1", "v_add_u32 v251, s28, v251"]), "v_lshrrev_b32 v252, 4, v1", "v_mul_u32_u24 v252, %d, v252" % (4 * 1152),
                    "v_lshl_add_u32 v252, v251, 4, v252",
                    ("grp", ["v_cmp_gt_u32 vcc, 72, v251", "s_nop 1", "v_cndmask_b32 v252, v15, v252, vcc"])]
        def prog_cs2():
            ops = [("mwait", "csl")]
            for kk in range(1, 4):
                for i in range(4): ops.append("v_add_f32 v%d, v%d, v%d" % (T + i, T + i, T + 4 * kk + i))
            for sw in ("32", "16"):
                for i in range(4): ops.append("v_mov_b32 v%d, v%d" % (T + 4 + i, T + i))
                ops.append("s_nop 0")
                for i in range(4): ops.append("v_permlane%s_swap_b32 v%d, v%d" % (sw, T + i, T + 4 + i))
                for i in range(4): ops.append("v_add_f32 v%d, v%d, v%d" % (T + i, T + i, T + 4 + i))
            ops += ["v_lshlrev_b32 v%d, 16, v254" % (T + 4), "v_and_b32 v%d, 0xffff0000, v254" % (T + 5), "v_lshlrev_b32 v%d, 16, v255" % (T + 6), "v_and_b32 v%d, 0xffff0000, v255" % (T + 7)]
            for i in range(4): ops += split3(T + i, 253, T + 8 + 2 * i, T + 9 + 2 * i, "v%d" % (T + 4 + i))
            ops += ["v_lshlrev_b32 v253, 5, v251", "v_add_u32 v253, %d, v253" % AUG_LDS, "v_and_b32 v252, 48, v1", "v_lshl_add_u32 v252, v252, 3, v251",
                    ("grp", ["v_cmp_gt_u32 vcc, 72, v252", "s_and_saveexec_b64 s[28:29], vcc", ("ds", "ds_write_b128 v253, %s" % v(T + 8, 4), "augw"),
                             ("ds", "ds_write_b128 v253, %s offset:16" % v(T + 12, 4), "augw"), "s_mov_b64 exec, -1"])]
            return ops
        def aug_read(p):
            sk = 36 + (p & 1); pi = p - 1
            ops = ["s_add_u32 s%d, s96, %d" % (sk, pi), "s_and_b32 s%d, s%d, 3" % (sk, sk), "s_lshl_b32 s%d, s%d, 1" % (sk, sk),
                   "s_add_u32 s%d, s%d, s27" % (sk, sk), "s_add_u32 s%d, s%d, %d" % (sk, sk, g)]
            if pi == 4:
                ops += ["s_cmp_eq_u32 s27, 1", "s_cselect_b32 s%d, 0, 8" % sk]
            ops += ["s_lshl_b32 s28, s%d, 8" % sk, "v_mov_b32 v15, s28",
                    "v_cndmask_b32 v15, v15, 0, s[24:25]", "v_add_u32 v15, v15, v8",
                    ("ds", "ds_read_b64 %s, v15" % v(AUGR, 2), "aug")]
            return [("grp", ops)]
        def gelu_ops(p):
            ops = []
            for h2 in range(2):
                acc = ACCS[p & 1] + 8 * h2
                for i in range(8): ops.append("v_mul_f32 v%d, v%d, v%d" % (T + i, acc + i, acc + i))
                for i in range(8): ops.append("v_fma_f32 v%d, v%d, v10, v9" % (T + i, T + i))
                for i in range(8): ops.append("v_mul_f32 v%d, v%d, v%d" % (T + i, acc + i, T + i))
                for i in range(8): ops.append("v_exp_f32 v%d, v%d" % (T + i, T + i))
                for i in range(8): ops.append("v_fma_f32 v%d, v%d, v11, v11" % (T + i, T + i))
                for i in range(8): ops.append("v_rcp_f32 v%d, v%d" % (T + i, T + i))
                for i in range(8): ops.append("v_mul_f32 v%d, v%d, v%d" % (T + i, acc + i, T + i))
                for i in range(4): ops.append("v_cvt_pk_bf16_f32 v%d, v%d, v%d" % (T + 8 + 4 * h2 + i, T + 2 * i, T + 2 * i + 1))
                ops.append(("grp", ["s_add_u32 s28, s39, s%d" % (36 + (p & 1)), "s_lshl_b32 s28, s28, 10",
                                    ("vm", "buffer_store_dwordx4 %s, v7, s[4:7], s28 offen offset:%d%s" % (v(T + 8 + 4 * h2, 4), 512 * h2, SC), "h%d" % p)]))
            return ops

        ntile = 6 if g == 0 else 5
        nsteps = 36 * ntile
        LA = NFR - 1
        def rd(i):
            phi, st = divmod(i, 18)
            b = FR + 4 * (i % NFR)
            if phi < 2:
                if i == 18: a("v_add_u32 v13, %d, v13" % UNIT)
                a.ds("ds_read_b128 %s, v13 offset:%d" % (v(b, 4), st * 2048), "f%d" % i)
            else:
                if i == 180:
                    a("s_lshl_b32 s29, s27, 9")
                    for r_ in (4, 5, 6): a("v_add_u32 v%d, s29, v%d" % (r_, r_))
                for h in range(2):
                    addr = (phi % 4) * UNIT + st * 2048 + 256 * h
                    k = addr // 49152
                    a.ds("ds_read_b64_tr_b16 %s, v%d offset:%d" % (v(b + 2 * h, 2), 4 + k, addr - k * 49152), "f%d" % i)
        pri = []
        def barrier(phi):
            if phi + 1 >= 2: a.vm_wait("u%d" % (phi + 1))
            if 1 <= phi <= 2 and not hooks: a.stamp()
            if phi == 1: a.vm_wait_mark("wt")
            if phi == 10 and hooks: a.vm_wait("h3")
            a.lg_wait("augw"); a.lg_wait("xtw")
            a("s_barrier")
            if hooks: hooks.after_barrier(a, g, phi)
            if phi in (3, 8): a.stamp()
            u = phi + 3
            if u is not None and u <= 11: pri.extend(dma_list(u))
        for i in range(LA): rd(i)
        if g == 1: cs_flag()
        for tau in range(ntile):
            if tau == 0:
                wt = prog_wt()
                progs = [(0, 24, prog_side()), (26, 29, wt[:10]), (31, 35, wt[10:] + prog_st2())]
            elif tau == 1:
                ld, fin = prog_w2(0)
                progs = [(0, 3, prog_w2addr()), (4, 11, prog_dft()), (13, 14, ld), (8, 11, prog_cs0()), (25, 25, [("call", cs_fetch)]), (29, 34, fin)]
            elif tau == 2:
                ld, fin = prog_w2(1)
                late_aug = aug_read(1) + [("lwait", "aug"), "v_mfma_f32_32x32x16_bf16 %s, %s, %s, %s" % (v(ACCS[1], 16), v(AUGR, 4), v(XA, 4), v(ACCS[1], 16))]
                progs = [(3, 11, prog_cs2()), (13, 14, late_aug), (13, 14, ld), (17, 35, gelu_ops(1)), (26, 30, fin), (32, 33, aug_read(2))]
            else: progs = [(3, 31, gelu_ops(tau - 1)), (32, 33, aug_read(tau))]
            sched = [[] for _ in range(36)]
            for s0, s1, ops in progs:
                n = s1 - s0 + 1
                for k, o in enumerate(ops):
                    sched[s0 + (k * n) // len(ops)].append(o)
            acc = ACCS[tau & 1]
            for st in range(36):
                i = 36 * tau + st
                j = i + LA
                if j < nsteps:
                    if j % 18 == 0:
                        barrier(j // 18 - 1)
                    rd(j)
                if pri and (st % 2 == 0 or len(pri) > ndma): emit_op(a, pri.pop(0))
                a.lg_wait("f%d" % i)
                b = FR + 4 * (i % NFR)
                x = XN + 4 * st
                c = "0" if st == 0 else v(acc, 16)
                if tau == 0:
                    a("v_mfma_f32_32x32x16_bf16 %s, %s, %s, %s" % (v(acc, 16), v(x, 4), v(b, 4), c))
                else:
                    a("v_mfma_f32_32x32x16_bf16 %s, %s, %s, %s" % (v(acc, 16), v(b, 4), v(x, 4), c))
                for o in sched[st]: emit_op(a, o)
            if tau == 0:
                a("v_mfma_f32_32x32x16_bf16 %s, %s, %s, %s" % (v(acc, 16), v(XA, 4), v(AUGR, 4), v(acc, 16)))
            elif tau != 1:
                a.lg_wait("aug")
                a("v_mfma_f32_32x32x16_bf16 %s, %s, %s, %s" % (v(acc, 16), v(AUGR, 4), v(XA, 4), v(acc, 16)))
        a("s_nop 7"); a("s_nop 4")
        last = gelu_ops(ntile - 1)
        if g == 1 and hooks:
            hooks.g1_end(a, last, barrier)
        elif g == 1:
            barrier(9)
            assert not pri
            for k, o in enumerate(last):
                if k == len(last) // 2: barrier(10)
                emit_op(a, o)
        else:
            for o in last: emit_op(a, o)
        if hooks:
            if g == 0: hooks.tail(a, g)
        elif g == 1:
            a("s_lshl_b32 s36, s19, 8")
            a("s_add_u32 s36, s36, s2")
            k0.job_finv(a, XN, 36, 4, 37)
        a.stamp()
        a.stamp(True)
        a.stamp_flush(4, STAMP_OFF, 18, T)
        a("s_endpgm")

    group(0)
    a.label("L_k1_g1")
    group(1)
    a.label("L_k1_end")
    a("s_endpgm")
    return (name, 256, 512, 163840 if hooks else K1_LDS, NV)
```

```python
S, D, F = 2048, 576, 4608
def al(x, a=4096): return (x + a - 1) // a * a
XN_OFF = 0
XN_SZ = S * D * 2
FT_OFF = al(XN_OFF + XN_SZ)
FT_SZ = 16 * 72 * 1024
H_OFF = al(FT_OFF + FT_SZ)
H_SZ = S * F * 2
X1_OFF = al(H_OFF + H_SZ)
X1_SZ = D * S * 2
Y1_OFF = al(X1_OFF + X1_SZ)
Y1_SZ = D * S * 2
WT_OFF = al(Y1_OFF + Y1_SZ)
WT_SZ = 289 * 8192
W2P_OFF = al(WT_OFF + WT_SZ)
W2P_SZ = 162 * 36 * 1024
TAB_OFF = al(W2P_OFF + W2P_SZ)
TAB_SZ = 65536
P_OFF = al(TAB_OFF + TAB_SZ)
P_SZ = 4 * S * D * 4
FLAG_OFF = al(P_OFF + P_SZ)
FLAG_SZ = 65536
CS_OFF = al(FLAG_OFF + FLAG_SZ)
CS_SZ = 16 * 16 * 1152
STAMP_OFF = al(CS_OFF + CS_SZ)
STAMP_SZ = 4 * 2048 * 16 * 128
WS_USED = STAMP_OFF + STAMP_SZ
KA_X, KA_WR, KA_WI, KA_BX, KA_W1, KA_B1, KA_W2, KA_B2, KA_OUT, KA_DBG, KA_WS = [8 * i for i in range(11)]
```

```python
from asmlib import *
from layout import *

SLOT = 73728
BIAS_LDS = 2 * SLOT
K1_LDS = BIAS_LDS + 288 * 4

XN = 64
ACC = 16
FR = 32
NFR = 6
TMP = 208

def ids(a):
    a("s_bfe_u32 s16, s2, 0x30003")
    a("s_and_b32 s28, s2, 4")
    a("s_lshl_b32 s28, s28, 1")
    a("s_add_u32 s16, s16, s28")
    a("s_and_b32 s17, s2, 3")
    a("s_lshl_b32 s17, s17, 2")
    a("s_lshr_b32 s28, s2, 6")
    a("s_add_u32 s17, s17, s28")
    a("v_lshrrev_b32 v1, 6, v0")
    a("s_nop 0")
    a("v_readfirstlane_b32 s18, v1")
    a("v_and_b32 v1, 63, v0")
    a("s_and_b32 s19, s18, 3")
    a("s_lshr_b32 s26, s18, 2")
    a("s_and_b32 s27, s17, 1")

def dma_pair(a, srd, voff, s_col, rowstride, slot):
    a("s_mul_i32 s28, s18, %d" % (8 * rowstride))
    a("s_add_u32 s28, s28, s%d" % s_col)
    a("s_lshl_b32 s29, s18, 10")
    for n in range(9):
        a("s_add_u32 m0, s29, %d" % (slot * SLOT + n * 8192))
        a("s_add_u32 s30, s28, %d" % (n * 64 * rowstride))
        a("buffer_load_dwordx4 v%d, s[%d:%d], s30 offen lds" % (voff, srd, srd + 3))

def tr_addr(slot, sstep, second):
    addr = slot * SLOT + sstep * 2048 + (256 if second else 0)
    k = addr // 49152
    return 4 + k, addr - k * 49152

def mfma_tile(a, slot, dft):
    def rd(st):
        b = FR + 4 * (st % NFR)
        for h in range(2):
            br, off = tr_addr(slot, st, h)
            a("ds_read_b64_tr_b16 %s, v%d offset:%d" % (v(b + 2 * h, 2), br, off))
    for st in range(NFR - 1):
        rd(st)
    for st in range(36):
        if st + NFR - 1 < 36:
            rd(st + NFR - 1)
            out = 2 * (NFR - 1)
        else:
            out = 2 * (35 - st)
        a("s_waitcnt lgkmcnt(%d)" % out)
        b = FR + 4 * (st % NFR)
        x = XN + 4 * st
        if dft:
            c = "0" if st == 0 else v(ACC, 16)
            a("v_mfma_f32_32x32x16_bf16 %s, %s, %s, %s" % (v(ACC, 16), v(x, 4), v(b, 4), c))
        else:
            a("v_mfma_f32_32x32x16_bf16 %s, %s, %s, %s" % (v(ACC, 16), v(b, 4), v(x, 4), v(ACC, 16)))

def bias_init(a, s_kt):
    a("s_lshl_b32 s28, s%d, 7" % s_kt)
    a("v_add_u32 v11, s28, v8")
    for i in range(4):
        a("ds_read_b128 %s, v11 offset:%d" % (v(ACC + 4 * i, 4), 32 * i))

def epi_gelu(a, s_kt):
    T = TMP
    a("s_nop 7"); a("s_nop 7")
    for i in range(16): a("v_mul_f32 v%d, v%d, v%d" % (T + i, ACC + i, ACC + i))
    for i in range(16): a("v_fma_f32 v%d, v%d, v10, v9" % (T + i, T + i))
    for i in range(16): a("v_mul_f32 v%d, v%d, v%d" % (T + i, ACC + i, T + i))
    for i in range(16): a("v_exp_f32 v%d, v%d" % (T + i, T + i))
    for i in range(16): a("v_add_f32 v%d, 1.0, v%d" % (T + i, T + i))
    for i in range(16): a("v_rcp_f32 v%d, v%d" % (T + i, T + i))
    for i in range(16): a("v_mul_f32 v%d, v%d, v%d" % (ACC + i, ACC + i, T + i))
    for i in range(8): a("v_cvt_pk_bf16_f32 v%d, v%d, v%d" % (T + i, ACC + 2 * i, ACC + 2 * i + 1))
    a("s_mul_i32 s28, s17, 9")
    a("s_add_u32 s28, s28, s%d" % s_kt)
    a("s_lshl_b32 s28, s28, 10")
    a("buffer_store_dwordx4 %s, v7, s[4:7], s28 offen" % v(T, 4))
    a("buffer_store_dwordx4 %s, v7, s[4:7], s28 offen offset:512" % v(T + 4, 4))
    return 2

def epi_dft(a):
    T = TMP
    a("s_nop 7"); a("s_nop 7")
    a("v_mov_b32 v11, 0x%x" % f32bits(1.0 / 24))
    for i in range(16): a("v_mul_f32 v%d, v%d, v11" % (ACC + i, ACC + i))
    for i in range(8): a("v_cvt_pk_f16_f32 v%d, v%d, v%d" % (T + i, ACC + 2 * i, ACC + 2 * i + 1))
    for i in range(4):
        a("buffer_store_dwordx2 %s, v12, s[4:7], 0 offen offset:%d" % (v(T + 2 * i, 2), 16 * i))
    return 4

def gen_k1(a):
    a.kernel_begin("k1_kernel")
    a("s_cmp_ge_u32 s2, 256")
    a("s_cbranch_scc1 L_k1_end")
    a.stamp()
    a("s_load_dwordx2 s[20:21], s[0:1], %d" % KA_W1)
    a("s_load_dwordx2 s[22:23], s[0:1], %d" % KA_B1)
    a("s_load_dwordx2 s[24:25], s[0:1], %d" % KA_WS)
    ids(a)
    a("s_lshl_b32 s28, s16, 7")
    a("s_lshl_b32 s29, s19, 5")
    a("s_add_u32 s28, s28, s29")
    a("s_mov_b32 s33, s28")
    a("v_and_b32 v11, 31, v1")
    a("v_lshrrev_b32 v14, 5, v1")
    a("v_add_u32 v13, s28, v11")
    a("v_mul_u32_u24 v13, 1152, v13")
    a("v_lshl_add_u32 v13, v14, 4, v13")
    if XN_OFF: a("v_add_u32 v13, 0x%x, v13" % XN_OFF)
    a("v_bfe_u32 v15, v1, 2, 3")
    a("v_and_b32 v12, 3, v1")
    a("v_lshlrev_b32 v12, 4, v12")
    a("v_lshl_add_u32 v12, v14, 6, v12")
    a("v_mul_u32_u24 v2, 9216, v15")
    a("v_add_u32 v2, v2, v12")
    a("v_lshlrev_b32 v3, 11, v15")
    a("v_add_u32 v3, v3, v12")
    a("v_bfe_u32 v15, v1, 2, 2")
    a("v_lshlrev_b32 v4, 6, v15")
    a("v_bfe_u32 v15, v1, 4, 1")
    a("v_lshl_add_u32 v4, v15, 5, v4")
    a("v_and_b32 v15, 3, v1")
    a("v_lshl_add_u32 v4, v15, 3, v4")
    a("v_lshl_add_u32 v4, v14, 10, v4")
    a("s_lshl_b32 s29, s26, 9")
    a("v_add_u32 v4, s29, v4")
    a("v_add_u32 v5, 49152, v4")
    a("v_add_u32 v6, 98304, v4")
    a("s_lshr_b32 s29, s33, 4")
    a("v_bfe_u32 v15, v1, 4, 1")
    a("v_add_u32 v15, s29, v15")
    a("s_mov_b32 s29, %d" % (144 * 1024))
    a("v_mul_lo_u32 v7, v15, s29")
    a("v_lshl_add_u32 v7, v14, 8, v7")
    a("v_and_b32 v15, 15, v1")
    a("v_lshl_add_u32 v7, v15, 4, v7")
    a("v_add_u32 v7, 0x%x, v7" % H_OFF)
    a("v_lshlrev_b32 v8, 4, v14")
    a("v_add_u32 v8, %d, v8" % BIAS_LDS)
    c0 = -2.0 * 1.4426950408889634 * 0.7978845608028654
    a("v_mov_b32 v9, 0x%x" % f32bits(c0))
    a("v_mov_b32 v10, 0x%x" % f32bits(c0 * 0.044715))
    a("s_lshl_b32 s29, s26, 5")
    a("v_add_u32 v15, s29, v11")
    a("s_mul_i32 s29, s17, 36")
    a("v_add_u32 v12, s29, v15")
    a("v_lshlrev_b32 v12, 12, v12")
    a("v_lshl_add_u32 v12, v14, 3, v12")
    a("s_lshl_b32 s29, s33, 1")
    a("s_add_u32 s29, s29, 0x%x" % X1_OFF)
    a("v_add_u32 v12, s29, v12")
    a("v_cmp_gt_u32 vcc, 36, v15")
    a("v_mov_b32 v15, 0x7ff00000")
    a("s_nop 1")
    a("v_cndmask_b32 v12, v15, v12, vcc")
    a("s_mul_i32 s29, s17, 288")
    a("v_add_u32 v11, s29, v0")
    a("v_lshlrev_b32 v11, 1, v11")
    a("v_cmp_gt_u32 vcc, 288, v0")
    a("s_nop 1")
    a("v_cndmask_b32 v11, v15, v11, vcc")
    a("s_waitcnt lgkmcnt(0)")
    a.srd(4, 24, WS_USED)
    a.srd(8, 20, D * F * 2)
    a.srd(12, 22, F * 2)
    a("buffer_load_ushort v14, v11, s[12:15], 0 offen")
    for st in range(36):
        a("buffer_load_dwordx4 %s, v13, s[4:7], 0 offen offset:%d" % (v(XN + 4 * st, 4), 32 * st))
    a("s_lshl_b32 s34, s17, 7")
    a("s_add_u32 s34, s34, 0x%x" % FT_OFF)
    dma_pair(a, 4, 3, 34, 2048, 0)
    a("s_mul_i32 s35, s17, 576")
    a("s_lshl_b32 s29, s27, 6")
    a("s_add_u32 s35, s35, s29")
    dma_pair(a, 8, 2, 35, 9216, 1)
    a.stamp()
    a("s_waitcnt vmcnt(54)")
    a("v_lshlrev_b32 v14, 16, v14")
    a("v_lshlrev_b32 v11, 2, v0")
    a("v_add_u32 v11, %d, v11" % BIAS_LDS)
    a("v_cmp_gt_u32 vcc, 288, v0")
    a("s_and_saveexec_b64 s[36:37], vcc")
    a("ds_write_b32 v11, v14")
    a("s_mov_b64 exec, s[36:37]")
    a("s_waitcnt vmcnt(9) lgkmcnt(0)")
    a.stamp()
    a("s_barrier")
    a.stamp()
    ns0 = a.nstamp
    a("s_cmp_eq_u32 s26, 1")
    a("s_cbranch_scc1 L_k1_g1")

    def next_pair(i):
        pi = i
        if pi > 4: return
        a("s_add_u32 s34, s35, %d" % (128 * pi))
        if pi == 4:
            a("s_mul_i32 s29, s27, 640")
            a("s_sub_u32 s34, s34, s29")
        dma_pair(a, 8, 2, 34, 9216, (i + 1) & 1)

    mfma_tile(a, 0, True)
    a.stamp()
    n = epi_dft(a)
    a("s_waitcnt vmcnt(%d)" % n)
    a("s_barrier")
    a.stamp()
    for i in range(1, 6):
        next_pair(i)
        pi = i - 1
        a("s_add_u32 s38, s27, %d" % (2 * pi))
        if pi == 4:
            a("s_cmp_eq_u32 s27, 1")
            a("s_cselect_b32 s38, 0, 8")
            a("s_lshl_b32 s29, s27, 9")
            a("v_add_u32 v4, s29, v4")
            a("v_add_u32 v5, s29, v5")
            a("v_add_u32 v6, s29, v6")
        bias_init(a, 38)
        mfma_tile(a, i & 1, False)
        a.stamp()
        n = epi_gelu(a, 38)
        if i < 5:
            a("s_waitcnt vmcnt(%d)" % n)
            a("s_barrier")
        a.stamp()
    a.stamp_flush(4, STAMP_OFF, 18, 224)
    a("s_endpgm")
    a.nstamp = ns0
    a.label("L_k1_g1")
    mfma_tile(a, 0, True)
    a.stamp()
    a("s_waitcnt vmcnt(0)")
    a("s_barrier")
    a.stamp()
    for i in range(1, 6):
        next_pair(i)
        n = epi_dft(a) if i == 1 else epi_gelu(a, 38)
        a.stamp()
        if i < 5:
            pi = i - 1
            a("s_add_u32 s38, s27, %d" % (2 * pi + 1))
            bias_init(a, 38)
            mfma_tile(a, i & 1, False)
            a("s_waitcnt vmcnt(%d)" % n)
            a("s_barrier")
            a.stamp()
    a.stamp_flush(4, STAMP_OFF, 18, 224)
    a.label("L_k1_end")
    a("s_endpgm")
    return ("k1_kernel", 256, 512, K1_LDS, 226 if a.stamps_on else 224)
```

```python
import os
from asmlib import *
from layout import *
from k1 import ids
import k0

UNIT = 36864
SP = 4 * UNIT
ROWP_LDS = SP
AUG_LDS = SP + 512
ZERO_LDS = AUG_LDS + 3456
FLG_LDS = ZERO_LDS + 64
STAT_LDS = SP + 4096
CSF_LDS = SP + 14336
K1_LDS = SP + 16384
WTS = STAT_LDS
SCR = STAT_LDS

XN = 88
ACCS = [16, 32]
FR = 48
NFR = 6
T = 72
XA = 232
AUGR = 236
EX = 240
NV = 256
OOB = 0x7ff00000
SC = os.environ.get("K1_SC", " sc1")
PF1 = int(os.environ.get("PF1", "0"))
ROT = int(os.environ.get("ROT", "1"))
C0 = -2.0 * 1.4426950408889634 * 0.7978845608028654

def emit_op(a, o):
    if isinstance(o, str): a(o)
    elif o[0] == "vm": a.vm(o[1], o[2])
    elif o[0] == "ds": a.ds(o[1], o[2])
    elif o[0] == "vwait": a.vm_wait(o[1])
    elif o[0] == "lwait": a.lg_wait(o[1])
    elif o[0] == "call": o[1]()
    elif o[0] == "cond":
        lab = a.newlabel("skip")
        a(o[1]); a("s_cbranch_scc0 %s" % lab)
        for x in o[2]: a(x)
        a.label(lab)
        if o[3]: a.vm_mark(o[3])
    elif o[0] == "mwait": a.vm_wait_mark(o[1])
    elif o[0] == "grp":
        for x in o[1]: emit_op(a, x)
    else: raise ValueError(o)

def split3(c, t, w0, w1, last):
    return ["v_cvt_pk_bf16_f32 v%d, v%d, v%d" % (t, c, c),
            "v_lshlrev_b32 v%d, 16, v%d" % (t, t),
            "v_sub_f32 v%d, v%d, v%d" % (t, c, t),
            "v_cvt_pk_bf16_f32 v%d, v%d, v%d" % (w0, c, t),
            "v_and_b32 v%d, 0xffff0000, v%d" % (c, w0),
            "v_sub_f32 v%d, v%d, v%d" % (t, t, c),
            "v_cvt_pk_bf16_f32 v%d, v%d, %s" % (w1, t, last)]

def gen_k1(a, hooks=None, name="k1_kernel"):
    a.kernel_begin(name)
    a("s_cmp_ge_u32 s2, 256")
    a("s_cbranch_scc1 L_k1_end")
    a.lg_reset()
    a.stamp()
    a.stamp(True)
    a("s_load_dwordx4 s[20:23], s[0:1], %d" % KA_X)
    a("s_load_dwordx2 s[24:25], s[0:1], %d" % KA_WI)
    a("s_load_dwordx4 s[36:39], s[0:1], %d" % KA_W1)
    a("s_load_dwordx2 s[56:57], s[0:1], %d" % KA_W2)
    a("s_load_dwordx4 s[52:55], s[0:1], %d" % KA_DBG)
    ids(a)
    a("s_lshl_b32 s28, s16, 7")
    a("s_lshl_b32 s29, s19, 5")
    a("s_add_u32 s33, s28, s29")
    a("v_and_b32 v11, 31, v1")
    a("v_lshrrev_b32 v14, 5, v1")
    a("v_lshlrev_b32 v3, 4, v1")
    a("v_mov_b32 v15, 0x%x" % OOB)
    a("s_lshl_b32 s34, s16, 3")
    a("s_add_u32 s34, s34, s18")
    a("s_mul_i32 s34, s34, %d" % (16 * 1152))
    a("s_mul_i32 s3, s18, %d" % (18 * 1024))
    a("v_lshrrev_b32 v4, 3, v1")
    a("v_lshrrev_b32 v5, 1, v4")
    a("v_and_b32 v6, 7, v1")
    a("v_xor_b32 v5, v5, v6")
    a("v_mul_u32_u24 v4, 1152, v4")
    a("v_lshl_add_u32 v8, v5, 4, v4")
    a("v_xor_b32 v9, 64, v8")
    a("s_waitcnt lgkmcnt(0)")
    a.srd(40, 20, S * D * 2)
    a.vm_reset()
    def xdma(i):
        return ["s_add_u32 m0, s3, %d" % (i * 1024), "s_add_u32 s30, s34, %d" % ((i // 9) * 9216 + (i % 9) * 128),
                ("vm", "buffer_load_dwordx4 v%d, s[40:43], s30 offen lds" % (8 + i // 9), "x")]
    a.srd(8, 36, D * F * 2)
    a("s_mul_i32 s35, s17, 576")
    CJ = XN + 40
    nocs = a.newlabel("nocs")
    a("s_cmp_lt_u32 s18, 6")
    a("s_cbranch_scc1 %s" % nocs)
    a("v_subrev_u32 v4, 384, v0")
    a("v_mul_u32_u24 v12, 1821, v4")
    a("v_lshrrev_b32 v12, 16, v12")
    a("v_mul_u32_u24 v13, 36, v12")
    a("v_sub_u32 v13, v4, v13")
    a("v_mul_u32_u24 v%d, 1152, v12" % (CJ + 48))
    a("v_lshl_add_u32 v%d, v13, 5, v%d" % (CJ + 48, CJ + 48))
    a("v_add_u32 v%d, %d, v%d" % (CJ + 48, AUG_LDS, CJ + 48))
    a("s_mov_b32 s29, %d" % (12 * 9216))
    a("v_mul_lo_u32 v12, v12, s29")
    a("v_lshl_add_u32 v12, v13, 4, v12")
    a("v_cmp_gt_u32 vcc, 108, v4")
    a("s_mul_i32 s28, s16, %d" % (36 * 9216))
    a("s_add_u32 s28, s28, s35")
    a("v_cndmask_b32 v12, v15, v12, vcc")
    for i in range(12):
        a("buffer_load_dwordx4 %s, v12, s[8:11], s28 offen" % v(CJ + 4 * i, 4))
        if i < 11: a("s_add_u32 s28, s28, 9216")
    a.label(nocs)
    NX0 = 6
    for i in range(NX0):
        for o in xdma(i): emit_op(a, o)
    a.srd(4, 54, WS_USED)
    a.srd(12, 38, F * 2)
    a.srd(44, 22, S * 289 * 2)
    a.srd(48, 24, S * 289 * 2)
    a("s_mov_b32 s58, s52"); a("s_mov_b32 s59, s53")
    a.srd(52, 56, F * D * 2)
    a.srd(20, 58, 256)
    lab = a.newlabel("nonce")
    a("s_or_b32 s28, s2, s18")
    a("s_cmp_eq_u32 s28, 0")
    a("s_cbranch_scc0 %s" % lab)
    a("s_memrealtime s[28:29]")
    a("s_waitcnt lgkmcnt(0)")
    a("s_lshl_b32 s28, s28, 3")
    a("s_or_b32 s28, s28, 8")
    a("v_mov_b32 v16, s28")
    a("v_mov_b32 v17, 0")
    a("s_mov_b64 exec, 1")
    a("buffer_store_dword v16, v17, s[20:23], 0 offen sc1")
    a("s_mov_b64 exec, -1")
    a.label(lab)
    a("s_lshl_b32 s101, s2, 4")
    a("s_add_u32 s101, s101, 0x%x" % FLAG_OFF)
    if int(os.environ.get("LIN", "0")):
        a("v_lshlrev_b32 v250, 7, v1")
        a("s_mul_i32 s28, s2, 20736")
        a("s_and_b32 s28, s28, 0xffffff80")
        a("s_cmp_ge_u32 s18, 3"); a("s_cselect_b32 s29, 3, 0"); a("s_sub_u32 s29, s18, s29"); a("s_lshl_b32 s29, s29, 13"); a("s_add_u32 s28, s28, s29")
        emit_op(a, ("cond", "s_cmp_lt_u32 s18, 3", ["buffer_load_dword v251, v250, s[8:11], s28 offen"], None))
        a("s_sub_u32 s29, s18, 3")
        emit_op(a, ("cond", "s_cmp_lt_u32 s29, 3", ["buffer_load_dword v251, v250, s[52:55], s28 offen"], None))
    a("v_bfe_u32 v13, v1, 2, 3")
    a("v_and_b32 v12, 3, v1")
    a("v_lshlrev_b32 v12, 4, v12")
    a("v_lshl_add_u32 v12, v14, 6, v12")
    a("v_mul_u32_u24 v2, 9216, v13")
    a("v_add_u32 v2, v2, v12")
    a("v_cmp_eq_u32 s[24:25], 1, v14")
    a("s_cmp_eq_u32 s26, 1")
    a("s_cbranch_scc1 L_k1_g1")
    ns0 = a.nstamp
    vm0 = list(a.vmq)
    FG = 16

    def group(g):
        a.nstamp = ns0
        a.vmq = list(vm0)
        a.lg_reset()
        a("s_mul_i32 s36, s17, 36")
        a("s_add_u32 s36, s36, %d" % (32 * g))
        a("v_add_u32 v%d, s36, v11" % T)
        a("v_lshrrev_b32 v%d, 1, v%d" % (T + 1, T))
        a("v_and_b32 v%d, 1, v%d" % (T + 2, T))
        a("v_mul_u32_u24 v%d, 144, v%d" % (T + 2, T + 2))
        a("v_cmp_eq_u32 vcc, 1, v%d" % T)
        a("v_mov_b32 v%d, 288" % (T + 3))
        a("s_nop 0")
        a("v_cndmask_b32 v%d, v%d, v%d, vcc" % (T + 1, T + 1, T + 3))
        a("v_cndmask_b32 v%d, v%d, 0, vcc" % (T + 2, T + 2))
        a("s_mul_i32 s37, s19, 144")
        a("v_lshlrev_b32 v%d, 3, v14" % (T + 3))
        a("v_add_u32 v%d, s37, v%d" % (T + 3, T + 3))
        a("v_mad_u32_u24 v%d, v%d, v%d, v%d" % (T + 3, T + 3, T + 1, T + 2))
        def mod576(x, t):
            a("v_cvt_f32_u32 v%d, v%d" % (t, x))
            a("v_mul_f32 v%d, 0x%x, v%d" % (t, f32bits(1.0 / 576), t))
            a("v_cvt_u32_f32 v%d, v%d" % (t, t))
            a("v_mul_u32_u24 v%d, 576, v%d" % (t, t))
            a("v_sub_u32 v%d, v%d, v%d" % (x, x, t))
        mod576(T + 3, T + 4)
        a("v_mul_u32_u24 v%d, 15, v%d" % (T + 5, T + 1))
        mod576(T + 5, T + 4)
        a("v_cvt_f32_u32 v%d, v%d" % (T + 6, T + 1))
        a("v_mul_f32 v%d, 0x%x, v%d" % (T + 6, f32bits(1.0 / 576), T + 6))
        a("v_cos_f32 v%d, v%d" % (T + 6, T + 6))
        a("v_mov_b32 v%d, 0" % (T + 7))
        a("v_add_f32 v%d, v%d, v%d" % (T + 6, T + 6, T + 6))
        a("v_mov_b32 v%d, 0x3f803f80" % (T + 2))
        rN, rJ, rJ15, rC = T + 3, T + 1, T + 5, T + 6
        for i in range(9):
            for j in range(2):
                tv = T + 8 + j
                a("v_cvt_f32_u32 v%d, v%d" % (tv, rN))
                a("v_add_u32 v%d, v%d, v%d" % (rN, rN, rJ if j == 0 else rJ15))
                a("v_mul_f32 v%d, 0x%x, v%d" % (tv, f32bits(1.0 / 576), tv))
                a("v_subrev_u32 v%d, 576, v%d" % (T + 4, rN))
                a("v_cos_f32 v%d, v%d" % (tv, tv))
                a("v_min_u32 v%d, v%d, v%d" % (rN, rN, T + 4))
            for j in range(2, 8):
                a("v_fma_f32 v%d, v%d, v%d, -v%d" % (T + 8 + j, rC, T + 7 + j, T + 6 + j))
                if j % 2 == 1:
                    k = (j - 3) // 2
                    a("v_cvt_pk_bf16_f32 v%d, v%d, v%d" % (FG + 4 * i + k, T + 8 + 2 * k, T + 8 + 2 * k + 1))
            a("v_cvt_pk_bf16_f32 v%d, v%d, v%d" % (FG + 4 * i + 3, T + 14, T + 15))
            for k in range(4):
                a("v_dot2c_f32_bf16 v%d, v%d, v%d" % (T + 7, FG + 4 * i + k, T + 2))
            for xi in range(NX0 + (12 * i) // 9, NX0 + (12 * (i + 1)) // 9):
                for o in xdma(xi): emit_op(a, o)
        a("s_lshl_b32 s36, s19, 8")
        a("s_add_u32 s36, s36, %d" % (CSF_LDS + 1024 * g))
        a("v_lshlrev_b32 v12, 2, v1")
        a("v_add_u32 v12, s36, v12")
        a("ds_write_b32 v12, v%d" % (T + 7))
        a("s_lshl_b32 s36, s18, 8")
        a("s_add_u32 s36, s36, s2")
        if g == 0:
            a("v_lshlrev_b32 v12, 2, v0")
            a("v_add_u32 v12, %d, v12" % ZERO_LDS)
            a("v_mov_b32 v13, 0")
            a("v_cmp_gt_u32 vcc, 32, v0")
            a("s_and_saveexec_b64 s[36:37], vcc")
            a("ds_write_b32 v12, v13")
            a("s_mov_b64 exec, s[36:37]")
        else:
            a("s_sub_u32 s36, s36, 1024")
            k0.job_tab(a, XN + 16, 36, 4, 37)
            nocs = a.newlabel("nocs2")
            a("s_cmp_lt_u32 s18, 6")
            a("s_cbranch_scc1 %s" % nocs)
            a("s_waitcnt vmcnt(%d)" % len(a.vmq))
            for k in range(4):
                a("v_lshlrev_b32 v%d, 16, v%d" % (T + 2 * k, CJ + k))
                a("v_and_b32 v%d, 0xffff0000, v%d" % (T + 2 * k + 1, CJ + k))
            for i in range(1, 12):
                for k in range(4):
                    a("v_lshlrev_b32 v%d, 16, v%d" % (T + 8 + 2 * k, CJ + 4 * i + k))
                    a("v_and_b32 v%d, 0xffff0000, v%d" % (T + 9 + 2 * k, CJ + 4 * i + k))
                for k in range(8):
                    a("v_add_f32 v%d, v%d, v%d" % (T + k, T + k, T + 8 + k))
            a("v_cmp_gt_u32 vcc, 492, v0")
            a("s_and_saveexec_b64 s[36:37], vcc")
            a("ds_write_b128 v%d, %s" % (CJ + 48, v(T, 4)))
            a("ds_write_b128 v%d, %s offset:16" % (CJ + 48, v(T + 4, 4)))
            a("s_mov_b64 exec, s[36:37]")
            a.label(nocs)
        for o in ["s_cmp_ge_u32 s18, 3", "s_cselect_b32 s38, 3, 0", "s_sub_u32 s38, s18, s38", "s_lshl_b32 s38, s38, 12", "s_add_u32 s38, s38, %d" % SCR,
                  "s_lshl_b32 s56, s18, 8", "s_add_u32 s56, s56, s2",
                  "s_mul_hi_u32 s32, s56, 0x%x" % ((2**32 + 8) // 9), "s_mul_i32 s28, s32, 9", "s_sub_u32 s28, s56, s28",
                  "s_mul_i32 s3, s32, %d" % (32 * 1152), "s_lshl_b32 s57, s28, 7", "s_add_u32 s3, s3, s57",
                  "v_lshrrev_b32 v4, 3, v1", "v_mul_u32_u24 v4, 1152, v4", "v_and_b32 v5, 7, v1",
                  "v_lshl_add_u32 v%d, v5, 4, v4" % (EX + 8),
                  "s_mul_i32 s32, s32, 36", "s_lshl_b32 s28, s28, 2", "s_add_u32 s32, s32, s28", "s_lshl_b32 s32, s32, 10",
                  "s_add_u32 s32, s32, 0x%x" % W2P_OFF,
                  "s_mov_b32 s100, s56",
                  "s_and_b32 s56, s2, 31", "s_lshr_b32 s57, s2, 5",
                  "s_lshr_b32 s28, s56, 4", "s_lshl_b32 s28, s28, 4", "s_and_b32 s36, s56, 15", "s_lshl_b32 s36, s36, 7", "s_add_u32 s28, s28, s36",
                  "s_mul_i32 s28, s28, 578", "s_mul_i32 s36, s57, 72", "s_add_u32 s28, s28, s36",
                  "v_mul_u32_u24 v4, 13108, v0", "v_lshrrev_b32 v4, 16, v4",
                  "v_mul_u32_u24 v5, 5, v4", "v_sub_u32 v5, v0, v5",
                  "v_lshrrev_b32 v6, 4, v4", "v_lshlrev_b32 v6, 5, v6", "v_and_b32 v7, 15, v4",
                  "v_add_u32 v6, v6, v7", "v_mul_u32_u24 v6, 578, v6",
                  "v_lshl_add_u32 v6, v5, 4, v6", "v_and_b32 v4, 1, v4", "v_lshlrev_b32 v4, 1, v4",
                  "v_sub_u32 v6, v6, v4", "v_add_u32 v%d, s28, v6" % (EX + 9),
                  "s_mul_i32 s57, s57, %d" % (36 * 8192), "s_lshl_b32 s56, s56, 8",
                  "s_add_u32 s56, s56, s57", "s_add_u32 s56, s56, 0x%x" % WT_OFF]:
            a(o)
        a("s_lshl_b32 s36, s19, 5")
        a("v_add_u32 v13, s36, v11")
        a("v_bfe_u32 v12, v13, 1, 3")
        a("v_lshrrev_b32 v10, 3, v13")
        a("v_mul_u32_u24 v10, 9216, v10")
        a("v_and_b32 v9, 7, v13")
        a("v_lshl_add_u32 v10, v9, 7, v10")
        for q in range(4):
            a("v_add_u32 v%d, %d, v14" % (4 + q, 2 * q))
            a("v_xor_b32 v%d, v%d, v12" % (4 + q, 4 + q))
            a("v_lshl_add_u32 v%d, v%d, 4, v10" % (4 + q, 4 + q))
        a("v_lshlrev_b32 v9, 5, v13")
        a("v_add_u32 v9, %d, v9" % STAT_LDS)
        a("v_lshl_add_u32 v8, v14, 3, v9")
        a.vm_wait("x", " lgkmcnt(0)")
        a("s_barrier")
        a.stamp()
        own = list(range(18 * g, 18 * g + 18)); oth = list(range(18 * (1 - g), 18 * (1 - g) + 18))
        def xrd(s_): a("ds_read_b128 %s, v%d offset:%d" % (v(XN + 4 * s_, 4), 4 + (s_ & 3), (s_ >> 2) * 1024))
        if g == 1:
            pub = a.newlabel("nopub")
            a("s_cmp_eq_u32 s18, 7")
            a("s_cbranch_scc0 %s" % pub)
            a("v_lshlrev_b32 v12, 5, v1")
            a("v_add_u32 v13, %d, v12" % AUG_LDS)
            for kk in range(3):
                for hh in range(2):
                    a("ds_read_b128 %s, v13 offset:%d" % (v(XA + 8 * kk + 4 * hh if kk < 2 else T + 4 * hh, 4), kk * 1152 + hh * 16))
            a("s_lshl_b32 s36, s17, 4")
            a("s_add_u32 s36, s36, s16")
            a("s_mul_i32 s36, s36, 1152")
            a("s_add_u32 s36, s36, 0x%x" % CS_OFF)
            a("v_cmp_gt_u32 vcc, 36, v1")
            a("s_nop 1")
            a("v_cndmask_b32 v12, v15, v12, vcc")
            a("s_waitcnt lgkmcnt(0)")
            for i in range(8):
                a("v_add_f32 v%d, v%d, v%d" % (XA + i, XA + i, XA + 8 + i))
                a("v_add_f32 v%d, v%d, v%d" % (XA + i, XA + i, T + i))
            a("buffer_store_dwordx4 %s, v12, s[4:7], s36 offen sc1" % v(XA, 4))
            a("buffer_store_dwordx4 %s, v12, s[4:7], s36 offen offset:16 sc1" % v(XA + 4, 4))
            a.label(pub)
        csmark = len(a.vmq)
        a("v_mov_b32 v253, 0")
        a.vm("buffer_load_dword v255, v253, s[20:23], 0 offen sc1", "nonce")
        if PF1:
            a("s_and_b32 s28, s35, 0xffffff80")
            a("s_and_b32 s29, s16, 3")
            a("s_mul_i32 s29, s29, %d" % (144 * 9216))
            a("s_add_u32 s28, s28, s29")
            for rd_ in range(2):
                a("v_add_u32 v12, %d, v0" % (512 * rd_))
                a("v_mul_u32_u24 v13, 13108, v12")
                a("v_lshrrev_b32 v13, 16, v13")
                a("v_mul_u32_u24 v250, 5, v13")
                a("v_sub_u32 v250, v12, v250")
                a("v_mul_u32_u24 v13, 9216, v13")
                a("v_lshl_add_u32 v13, v250, 7, v13")
                if rd_ == 0:
                    a.vm("buffer_load_dword v251, v13, s[8:11], s28 offen", "pf")
                else:
                    a("v_cmp_gt_u32 vcc, 720, v12")
                    a("s_nop 1")
                    a("v_cndmask_b32 v13, v15, v13, vcc")
                    if g == 0: a.vm("buffer_load_dword v252, v13, s[8:11], s28 offen", "pf")
        a("v_mul_u32_u24 v12, 1152, v11")
        emit_op(a, ("cond", "s_cmp_lt_u32 s100, 1296", ["buffer_load_dword v254, v12, s[52:55], s3 offen"], None))
        for s_ in own: xrd(s_)
        for i in range(8): a("v_mov_b32 v%d, 0" % (T + 8 + i))
        a("v_mov_b32 v%d, 0x3f803f80" % (T + 7))
        for n in range(18):
            xrd(oth[n])
            a("s_waitcnt lgkmcnt(15)")
            for kk in range(4):
                x = XN + 4 * own[n] + kk
                a("v_dot2c_f32_bf16 v%d, v%d, v%d" % (T + 8 + kk, x, T + 7))
                a("v_dot2c_f32_bf16 v%d, v%d, v%d" % (T + 12 + kk, x, x))
        a("s_nop 2")
        for A in (T + 8, T + 12):
            a("v_add_f32 v%d, v%d, v%d" % (A, A, A + 1))
            a("v_add_f32 v%d, v%d, v%d" % (A + 2, A + 2, A + 3))
        a("v_add_f32 v%d, v%d, v%d" % (T + 8, T + 8, T + 10))
        a("v_add_f32 v%d, v%d, v%d" % (T + 9, T + 12, T + 14))
        a("ds_write_b64 v8, %s offset:%d" % (v(T + 8, 2), 16 * g))
        a("v_bfe_u32 v13, v1, 2, 2")
        a("v_lshlrev_b32 v12, 6, v13")
        a("v_bfe_u32 v13, v1, 4, 1")
        a("v_lshl_add_u32 v12, v13, 5, v12")
        a("v_and_b32 v13, 3, v1")
        a("v_lshl_add_u32 v12, v13, 3, v12")
        a("v_lshl_add_u32 v12, v14, 10, v12")
        a("v_add_u32 v12, %d, v12" % (512 * g))
        a("s_lshr_b32 s36, s19, 1")
        a("s_mul_i32 s36, s36, %d" % UNIT)
        a("s_and_b32 s37, s19, 1")
        a("s_mul_i32 s37, s37, %d" % (9 * 2048))
        a("s_add_u32 s36, s36, s37")
        a("v_add_u32 v13, s36, v3")
        a("s_lshl_b32 s29, s27, 6")
        a("s_add_u32 s35, s35, s29")
        a("s_mul_i32 s34, s18, %d" % (8 * 9216))
        a("s_add_u32 s35, s35, s34")
        a("s_lshl_b32 s34, s18, 10")
        a("s_mul_i32 s29, s27, 640")
        a("s_sub_u32 s31, s35, s29")
        a("s_and_b32 s96, s16, %d" % (3 if ROT else 0))
        for pi in range(4):
            a("s_add_u32 s29, s96, %d" % pi)
            a("s_and_b32 s29, s29, 3")
            a("s_lshl_b32 s29, s29, 7")
            a("s_add_u32 s%d, s35, s29" % (92 + pi))
        a("s_waitcnt lgkmcnt(0)")
        a("s_barrier")
        a("ds_read_b128 %s, v9" % v(T, 4))
        a("ds_read_b128 %s, v9 offset:16" % v(T + 4, 4))
        for i in range(9):
            a("ds_write_b128 v13, %s offset:%d" % (v(FG + 4 * i, 4), i * 2048 + g * 1024))
        a("v_mov_b32 v4, v12")
        a("v_add_u32 v5, 49152, v12")
        a("v_add_u32 v6, 98304, v12")
        ndma = 5 if g == 0 else 4
        def dma_list(u):
            pi, kh = (u - 2) >> 1, u & 1
            out = []
            for n in range(ndma):
                off = (0 if pi < 4 else 512) + (kh * 288 + n * 64) * 9216
                out.append(("grp", ["s_add_u32 m0, s34, %d" % ((u % 4) * UNIT + n * 8192),
                                    "s_add_u32 s30, s%d, %d" % (92 + pi if pi < 4 else 31, off),
                                    ("vm", "buffer_load_dwordx4 v2, s[8:11], s30 offen lds", "u%d" % u)]))
            return out
        a("s_waitcnt lgkmcnt(9)")
        for o in ["v_add_f32 v%d, v%d, v%d" % (T, T, T + 2), "v_add_f32 v%d, v%d, v%d" % (T + 4, T + 4, T + 6),
                  "v_add_f32 v%d, v%d, v%d" % (T + 1, T + 1, T + 3), "v_add_f32 v%d, v%d, v%d" % (T + 5, T + 5, T + 7),
                  "v_add_f32 v%d, v%d, v%d" % (T, T, T + 4), "v_add_f32 v%d, v%d, v%d" % (T + 1, T + 1, T + 5),
                  "v_mul_f32 v%d, 0x%x, v%d" % (T, f32bits(1.0 / 576), T),
                  "v_mul_f32 v%d, 0x%x, v%d" % (T + 1, f32bits(1.0 / 576), T + 1),
                  "v_fma_f32 v%d, -v%d, v%d, v%d" % (T + 1, T, T, T + 1),
                  "v_max_f32 v%d, 0, v%d" % (T + 1, T + 1),
                  "v_cvt_pk_bf16_f32 v%d, -v%d, v%d" % (T + 2, T, T + 1),
                  "v_and_b32 v%d, 0xffff0000, v%d" % (T + 1, T + 2),
                  "v_add_f32 v%d, 0x%x, v%d" % (T + 1, f32bits(1e-5), T + 1),
                  "v_cvt_pk_bf16_f32 v%d, v%d, v%d" % (T + 1, T + 1, T + 1),
                  "v_lshlrev_b32 v%d, 16, v%d" % (T + 1, T + 1),
                  "v_sqrt_f32 v%d, v%d" % (T + 1, T + 1),
                  "v_and_b32 v%d, 0xffff, v%d" % (T + 2, T + 2),
                  "v_cvt_pk_bf16_f32 v%d, v%d, v%d" % (T + 1, T + 1, T + 1),
                  "v_lshl_or_b32 v%d, v%d, 16, v%d" % (XA, T + 2, T + 2),
                  "v_and_b32 v%d, 0xffff0000, v%d" % (T + 3, T + 1),
                  "v_or_b32 v%d, v%d, v%d" % (XA + 1, T + 3, T + 2),
                  "v_rcp_f32 v%d, v%d" % (T, T + 3),
                  "v_lshrrev_b32 v%d, 3, v9" % (T + 4),
                  "v_add_u32 v%d, %d, v%d" % (T + 4, ROWP_LDS - STAT_LDS // 8, T + 4),
                  "v_mul_f32 v%d, 0x%x, v%d" % (T + 1, f32bits(1.0 / 24), T),
                  "ds_write_b32 v%d, v%d" % (T + 4, T + 1),
                  "v_add_u32 v13, %d, v3" % (1024 * g)]:
            a(o)
        a("s_waitcnt lgkmcnt(0)")
        a("s_barrier")
        ok = a.newlabel("nok"); lp = a.newlabel("nlp")
        a.vm_wait("nonce")
        a("v_readfirstlane_b32 s59, v255")
        a("s_cmp_lg_u32 s59, 0")
        a("s_cbranch_scc1 %s" % ok)
        a("s_mov_b32 s28, 0")
        a.label(lp)
        a("s_sleep 8")
        a("buffer_load_dword v255, v253, s[20:23], 0 offen sc1")
        a("s_waitcnt vmcnt(0)")
        a("v_readfirstlane_b32 s59, v255")
        a("s_cmp_lg_u32 s59, 0")
        a("s_cbranch_scc1 %s" % ok)
        a("s_add_u32 s28, s28, 1")
        a("s_cmp_lt_u32 s28, 0x40000")
        a("s_cbranch_scc1 %s" % lp)
        a.label(ok)
        a.lg_reset()
        a.stamp()

        def prog_side():
            wl = []
            for arr in range(2):
                wl += ["s_add_u32 m0, s34, %d" % (WTS + arr * 5120), "s_nop 0",
                       "buffer_load_dwordx4 v%d, s[%d:%d], 0 offen lds" % (EX + 9, 44 + 4 * arr, 47 + 4 * arr)]
            ops = [("cond", "s_cmp_lt_u32 s18, 5", wl, "wt")]
            ops += dma_list(2)
            ops += ["v_mov_b32 v%d, 0" % (XA + 2), "v_mov_b32 v%d, 0" % (XA + 3), "v_mov_b32 v%d, 0" % (AUGR + 2), "v_mov_b32 v%d, 0" % (AUGR + 3),
                   "v_cndmask_b32 v%d, v%d, 0, s[24:25]" % (XA, XA), "v_cndmask_b32 v%d, v%d, 0, s[24:25]" % (XA + 1, XA + 1),
                   "v_mul_f32 v9, 0x%x, v%d" % (f32bits(C0), T),
                   "v_mul_f32 v10, v%d, v%d" % (T, T), "v_mul_f32 v10, v10, v%d" % T, "v_mul_f32 v10, 0x%x, v10" % f32bits(C0 * 0.044715)]
            ops += ["s_lshr_b32 s29, s33, 4", "v_bfe_u32 v%d, v1, 4, 1" % (T + 1), "v_add_u32 v%d, s29, v%d" % (T + 1, T + 1), "s_mov_b32 s29, %d" % (144 * 1024),
                    "v_mul_lo_u32 v7, v%d, s29" % (T + 1), "v_lshl_add_u32 v7, v14, 8, v7", "v_and_b32 v%d, 15, v1" % (T + 1), "v_lshl_add_u32 v7, v%d, 4, v7" % (T + 1),
                    "v_add_u32 v7, 0x%x, v7" % H_OFF,
                    "v_add_u32 v%d, %d, v11" % (T + 1, 32 * g), "s_mul_i32 s29, s17, 36", "v_add_u32 v12, s29, v%d" % (T + 1), "v_lshlrev_b32 v12, 12, v12",
                    "v_lshl_add_u32 v12, v14, 4, v12", "s_lshl_b32 s29, s33, 1", "s_add_u32 s29, s29, 0x%x" % X1_OFF, "v_add_u32 v12, s29, v12",
                    ("grp", ["v_cmp_gt_u32 vcc, 36, v%d" % (T + 1), "s_mul_i32 s39, s17, 9", "s_nop 0", "v_cndmask_b32 v12, v15, v12, vcc"])]
            ops += ["v_lshlrev_b32 v%d, 2, v11" % (T + 1), "v_add_u32 v%d, %d, v%d" % (T + 1, CSF_LDS + 1024 * g, T + 1)]
            for k in range(8): ops.append(("ds", "ds_read_b32 v%d, v%d offset:%d" % (T + 8 + k, T + 1, 128 * k), "csf"))
            ops += ["v_mov_b32 v11, v%d" % (T + 3),
                    "v_and_b32 v8, 31, v1", "v_lshlrev_b32 v8, 3, v8", "v_add_u32 v8, %d, v8" % AUG_LDS, "v_mov_b32 v%d, %d" % (T + 1, ZERO_LDS),
                    "v_cndmask_b32 v8, v8, v%d, s[24:25]" % (T + 1), ("lwait", "csf")]
            for k in range(1, 8): ops.append("v_add_f32 v%d, v%d, v%d" % (T + 8, T + 8, T + 8 + k))
            ops += split3(T + 8, T + 9, AUGR, AUGR + 1, "0")
            ops += ["v_cndmask_b32 v%d, v%d, 0, s[24:25]" % (AUGR, AUGR), "v_cndmask_b32 v%d, v%d, 0, s[24:25]" % (AUGR + 1, AUGR + 1)]
            return ops
        def prog_w2(rnd):
            cmpa = "s_cmp_eq_u32 s57, %d" % (rnd + 1)
            ld = []
            for n2 in range(2):
                wl = []
                for n in (2 * n2, 2 * n2 + 1):
                    wl += ["s_add_u32 m0, s38, %d" % (n * 1024), "s_add_u32 s28, s3, %d" % (n * 8 * 1152),
                           "buffer_load_dwordx4 v%d, s[52:55], s28 offen lds" % (EX + 8)]
                ld.append(("cond", cmpa, wl, "w2p"))
            fin = [("mwait", "w2p")]
            for hf in range(2):
                for nt in (2 * hf, 2 * hf + 1):
                    for h in range(2):
                        fin.append(("ds", "ds_read_b64_tr_b16 %s, v%d offset:%d" % (v(EX + 4 * (nt & 1) + 2 * h, 2), EX + 9, nt * 32 + h * 1024), "w2r"))
                fin.append(("lwait", "w2r"))
                fin.append(("cond", cmpa, ["buffer_store_dwordx4 %s, v3, s[4:7], s32 offen offset:%d%s" % (v(EX + 4 * (nt & 1), 4), nt * 1024, SC) for nt in (2 * hf, 2 * hf + 1)], "w2st"))
                fin.append("s_nop 0")
            return ld, fin
        def prog_w2addr():
            return ["v_lshrrev_b32 v%d, 5, v1" % (EX + 9), "v_lshlrev_b32 v%d, 4, v%d" % (EX + 9, EX + 9), "v_bfe_u32 v%d, v1, 4, 1" % (EX + 10),
                    "v_lshl_add_u32 v%d, v%d, 2, v%d" % (EX + 9, EX + 10, EX + 9), "v_bfe_u32 v%d, v1, 2, 2" % (EX + 10), "v_add_u32 v%d, v%d, v%d" % (EX + 9, EX + 9, EX + 10),
                    "v_lshlrev_b32 v%d, 7, v%d" % (EX + 9, EX + 9), "v_and_b32 v%d, 3, v1" % (EX + 10), "v_lshl_add_u32 v%d, v%d, 3, v%d" % (EX + 9, EX + 10, EX + 9),
                    "v_add_u32 v%d, s38, v%d" % (EX + 9, EX + 9),
                    ("grp", ["s_cmp_ge_u32 s18, 3", "s_cselect_b32 s57, 2, 1", "s_cmp_lt_u32 s100, 1296", "s_cselect_b32 s57, s57, 0"])]
        def prog_wt():
            ops = ["v_and_b32 v%d, 15, v0" % (T + 4), "v_mul_u32_u24 v%d, 80, v%d" % (T + 5, T + 4), "v_and_b32 v%d, 1, v0" % (T + 6),
                   "v_lshl_add_u32 v%d, v%d, 1, v%d" % (T + 5, T + 6, T + 5), "v_lshrrev_b32 v%d, 4, v0" % (T + 6),
                   "v_lshl_add_u32 v%d, v%d, 1, v%d" % (T + 5, T + 6, T + 5), "v_add_u32 v%d, %d, v%d" % (T + 5, WTS, T + 5),
                   "v_lshlrev_b32 v%d, 4, v%d" % (T + 4, T + 4), "v_lshl_add_u32 v%d, v%d, 13, v%d" % (T + 4, T + 6, T + 4),
                   ("grp", ["v_cmp_gt_u32 vcc, 80, v0", "v_add_u32 v%d, %d, v%d" % (T + 6, 32 * 8192, T + 4), "s_nop 0", "v_cndmask_b32 v%d, v15, v%d, vcc" % (T + 6, T + 6)])]
            for rd_ in range(2):
                for r in range(4):
                    ops.append(("ds", "ds_read_u16 v%d, v%d offset:%d" % (EX + 4 * rd_ + r, T + 5, r * 1280 + 64 * rd_), "wtr"))
                    ops.append(("ds", "ds_read_u16 v%d, v%d offset:%d" % (T + 8 + 4 * rd_ + r, T + 5, 5120 + r * 1280 + 64 * rd_), "wtr"))
            ops.append(("lwait", "wtr"))
            for e in range(8): ops.append("v_lshl_or_b32 v%d, v%d, 16, v%d" % (EX + e, T + 8 + e, EX + e))
            return ops
        def prog_st2():
            ops = [("vm", "buffer_store_dwordx4 %s, v%d, s[4:7], s56 offen%s" % (v(EX, 4), T + 4, SC), "side"),
                   ("cond", "s_cmp_lt_u32 s18, 2", ["buffer_store_dwordx4 %s, v%d, s[4:7], s56 offen%s" % (v(EX + 4, 4), T + 6, SC)], None)]
            return ops
        def cs_flag():
            pub = a.newlabel("noflag")
            a("s_cmp_eq_u32 s18, 7")
            a("s_cbranch_scc0 %s" % pub)
            a("v_mov_b32 v%d, s59" % (T + 2))
            a("v_mov_b32 v%d, 0" % (T + 1))
            a("s_waitcnt vmcnt(%d)" % min(63, len(a.vmq) - csmark))
            a("s_mov_b64 exec, 1")
            a("buffer_store_dword v%d, v%d, s[4:7], s101 offen sc1" % (T + 2, T + 1))
            a("s_mov_b64 exec, -1")
            a.label(pub)
        def cs_chk():
            a("v_cmp_eq_u32 vcc, s59, v254")
            a("s_nop 1")
            a("s_cmp_eq_u64 vcc, -1")
        def cs_fetch():
            skip = a.newlabel("csskip"); lp = a.newlabel("cspoll"); ok = a.newlabel("csok")
            a("s_cmp_lt_u32 s18, 5")
            a("s_cbranch_scc0 %s" % skip)
            a.vm_wait_mark("cspl")
            cs_chk()
            a("s_cbranch_scc1 %s" % ok)
            a("s_mov_b32 s33, 0")
            a.label(lp)
            a("s_sleep 4")
            a("buffer_load_dword v254, v253, s[4:7], 0 offen sc1")
            a("s_waitcnt vmcnt(0)")
            cs_chk()
            a("s_cbranch_scc1 %s" % ok)
            a("s_add_u32 s33, s33, 1")
            a("s_cmp_lt_u32 s33, 0x40000")
            a("s_cbranch_scc1 %s" % lp)
            a.label(ok)
            a("s_mul_i32 s28, s17, %d" % (16 * 1152))
            a("s_add_u32 s28, s28, 0x%x" % CS_OFF)
            a("s_mul_i32 s29, s17, 576")
            a("v_lshlrev_b32 v253, 3, v251")
            a("buffer_load_dwordx2 v[254:255], v253, s[12:15], s29 offen")
            for kk in range(4):
                a("buffer_load_dwordx4 %s, v252, s[4:7], s28 offen offset:%d sc1" % (v(T + 4 * kk, 4), kk * 1152))
            a.label(skip)
            a.vm_mark("csl")
        def prog_dft():
            acc = ACCS[0]
            ops = ["s_lshl_b32 s28, s19, 7", "v_lshlrev_b32 v%d, 4, v14" % T, "v_add_u32 v%d, s28, v%d" % (T, T), "v_add_u32 v%d, %d, v%d" % (T, ROWP_LDS, T)]
            RP = [EX, EX + 4, T + 4, T + 12]
            for i in range(4): ops.append(("ds", "ds_read_b128 %s, v%d offset:%d" % (v(RP[i], 4), T, 32 * i), "rowp"))
            ops.append(("lwait", "rowp"))
            for i in range(16):
                sc = RP[i >> 2] + (i & 3)
                ops.append("v_mul_f32 v%d, v%d, v%d" % (acc + i, acc + i, sc))
            for i in range(8): ops.append("v_cvt_pk_f16_f32 v%d, v%d, v%d" % (T + 8 + i, acc + 2 * i, acc + 2 * i + 1))
            ops += ["s_nop 0", "s_nop 0"]
            for i in (0, 2):
                ops += ["v_permlane32_swap_b32 v%d, v%d" % (T + 8 + 2 * i, T + 10 + 2 * i), "v_permlane32_swap_b32 v%d, v%d" % (T + 9 + 2 * i, T + 11 + 2 * i)]
            for i in range(2):
                ops.append(("vm", "buffer_store_dwordx4 %s, v12, s[4:7], 0 offen offset:%d%s" % (v(T + 8 + 4 * i, 4), 32 * i, SC), "side"))
            return ops
        def prog_cs0():
            return [("grp", ["s_and_b32 s28, s2, 0xc3", "v_and_b32 v253, 15, v1", "v_lshlrev_b32 v253, 2, v253",
                             "v_or_b32 v253, s28, v253", "v_lshlrev_b32 v253, 4, v253", "v_add_u32 v253, 0x%x, v253" % FLAG_OFF]),
                    ("cond", "s_cmp_lt_u32 s18, 5", ["buffer_load_dword v254, v253, s[4:7], 0 offen sc1"], "cspl"),
                    ("grp", ["s_lshl_b32 s28, s18, 4", "v_and_b32 v251, 15, v1", "v_add_u32 v251, s28, v251"]), "v_lshrrev_b32 v252, 4, v1", "v_mul_u32_u24 v252, %d, v252" % (4 * 1152),
                    "v_lshl_add_u32 v252, v251, 4, v252",
                    ("grp", ["v_cmp_gt_u32 vcc, 72, v251", "s_nop 1", "v_cndmask_b32 v252, v15, v252, vcc"])]
        def prog_cs2():
            ops = [("mwait", "csl")]
            for kk in range(1, 4):
                for i in range(4): ops.append("v_add_f32 v%d, v%d, v%d" % (T + i, T + i, T + 4 * kk + i))
            for sw in ("32", "16"):
                for i in range(4): ops.append("v_mov_b32 v%d, v%d" % (T + 4 + i, T + i))
                ops.append("s_nop 0")
                for i in range(4): ops.append("v_permlane%s_swap_b32 v%d, v%d" % (sw, T + i, T + 4 + i))
                for i in range(4): ops.append("v_add_f32 v%d, v%d, v%d" % (T + i, T + i, T + 4 + i))
            ops += ["v_lshlrev_b32 v%d, 16, v254" % (T + 4), "v_and_b32 v%d, 0xffff0000, v254" % (T + 5), "v_lshlrev_b32 v%d, 16, v255" % (T + 6), "v_and_b32 v%d, 0xffff0000, v255" % (T + 7)]
            for i in range(4): ops += split3(T + i, 253, T + 8 + 2 * i, T + 9 + 2 * i, "v%d" % (T + 4 + i))
            ops += ["v_lshlrev_b32 v253, 5, v251", "v_add_u32 v253, %d, v253" % AUG_LDS, "v_and_b32 v252, 48, v1", "v_lshl_add_u32 v252, v252, 3, v251",
                    ("grp", ["v_cmp_gt_u32 vcc, 72, v252", "s_and_saveexec_b64 s[28:29], vcc", ("ds", "ds_write_b128 v253, %s" % v(T + 8, 4), "augw"),
                             ("ds", "ds_write_b128 v253, %s offset:16" % v(T + 12, 4), "augw"), "s_mov_b64 exec, -1"])]
            return ops
        def aug_read(p):
            sk = 36 + (p & 1); pi = p - 1
            ops = ["s_add_u32 s%d, s96, %d" % (sk, pi), "s_and_b32 s%d, s%d, 3" % (sk, sk), "s_lshl_b32 s%d, s%d, 1" % (sk, sk),
                   "s_add_u32 s%d, s%d, s27" % (sk, sk), "s_add_u32 s%d, s%d, %d" % (sk, sk, g)]
            if pi == 4:
                ops += ["s_cmp_eq_u32 s27, 1", "s_cselect_b32 s%d, 0, 8" % sk]
            ops += ["s_lshl_b32 s28, s%d, 8" % sk, "v_mov_b32 v15, s28",
                    "v_cndmask_b32 v15, v15, 0, s[24:25]", "v_add_u32 v15, v15, v8",
                    ("ds", "ds_read_b64 %s, v15" % v(AUGR, 2), "aug")]
            return [("grp", ops)]
        def gelu_ops(p):
            ops = []
            for h2 in range(2):
                acc = ACCS[p & 1] + 8 * h2
                for i in range(8): ops.append("v_mul_f32 v%d, v%d, v%d" % (T + i, acc + i, acc + i))
                for i in range(8): ops.append("v_fma_f32 v%d, v%d, v10, v9" % (T + i, T + i))
                for i in range(8): ops.append("v_mul_f32 v%d, v%d, v%d" % (T + i, acc + i, T + i))
                for i in range(8): ops.append("v_exp_f32 v%d, v%d" % (T + i, T + i))
                for i in range(8): ops.append("v_fma_f32 v%d, v%d, v11, v11" % (T + i, T + i))
                for i in range(8): ops.append("v_rcp_f32 v%d, v%d" % (T + i, T + i))
                for i in range(8): ops.append("v_mul_f32 v%d, v%d, v%d" % (T + i, acc + i, T + i))
                for i in range(4): ops.append("v_cvt_pk_bf16_f32 v%d, v%d, v%d" % (T + 8 + 4 * h2 + i, T + 2 * i, T + 2 * i + 1))
                ops.append(("grp", ["s_add_u32 s28, s39, s%d" % (36 + (p & 1)), "s_lshl_b32 s28, s28, 10",
                                    ("vm", "buffer_store_dwordx4 %s, v7, s[4:7], s28 offen offset:%d%s" % (v(T + 8 + 4 * h2, 4), 512 * h2, SC), "h%d" % p)]))
            return ops

        ntile = 6 if g == 0 else 5
        nsteps = 36 * ntile
        LA = NFR - 1
        def rd(i):
            phi, st = divmod(i, 18)
            b = FR + 4 * (i % NFR)
            if phi < 2:
                if i == 18: a("v_add_u32 v13, %d, v13" % UNIT)
                a.ds("ds_read_b128 %s, v13 offset:%d" % (v(b, 4), st * 2048), "f%d" % i)
            else:
                if i == 180:
                    a("s_lshl_b32 s29, s27, 9")
                    for r_ in (4, 5, 6): a("v_add_u32 v%d, s29, v%d" % (r_, r_))
                for h in range(2):
                    addr = (phi % 4) * UNIT + st * 2048 + 256 * h
                    k = addr // 49152
                    a.ds("ds_read_b64_tr_b16 %s, v%d offset:%d" % (v(b + 2 * h, 2), 4 + k, addr - k * 49152), "f%d" % i)
        pri = []
        def barrier(phi):
            if phi + 1 >= 2: a.vm_wait("u%d" % (phi + 1))
            if 1 <= phi <= 2 and not hooks: a.stamp()
            if phi == 1: a.vm_wait_mark("wt")
            if phi == 10 and hooks: a.vm_wait("h3")
            a.lg_wait("augw"); a.lg_wait("xtw")
            a("s_barrier")
            if hooks: hooks.after_barrier(a, g, phi)
            if phi in (3, 8): a.stamp()
            u = phi + 3
            if u is not None and u <= 11: pri.extend(dma_list(u))
        for i in range(LA): rd(i)
        if g == 1: cs_flag()
        for tau in range(ntile):
            if tau == 0:
                wt = prog_wt()
                progs = [(0, 24, prog_side()), (26, 29, wt[:10]), (31, 35, wt[10:] + prog_st2())]
            elif tau == 1:
                ld, fin = prog_w2(0)
                progs = [(0, 3, prog_w2addr()), (4, 11, prog_dft()), (13, 14, ld), (8, 11, prog_cs0()), (25, 25, [("call", cs_fetch)]), (29, 34, fin)]
            elif tau == 2:
                ld, fin = prog_w2(1)
                late_aug = aug_read(1) + [("lwait", "aug"), "v_mfma_f32_32x32x16_bf16 %s, %s, %s, %s" % (v(ACCS[1], 16), v(AUGR, 4), v(XA, 4), v(ACCS[1], 16))]
                progs = [(3, 11, prog_cs2()), (13, 14, late_aug), (13, 14, ld), (17, 35, gelu_ops(1)), (26, 30, fin), (32, 33, aug_read(2))]
            else: progs = [(3, 31, gelu_ops(tau - 1)), (32, 33, aug_read(tau))]
            sched = [[] for _ in range(36)]
            for s0, s1, ops in progs:
                n = s1 - s0 + 1
                for k, o in enumerate(ops):
                    sched[s0 + (k * n) // len(ops)].append(o)
            acc = ACCS[tau & 1]
            for st in range(36):
                i = 36 * tau + st
                j = i + LA
                if j < nsteps:
                    if j % 18 == 0:
                        barrier(j // 18 - 1)
                    rd(j)
                if pri and (st % 2 == 0 or len(pri) > ndma): emit_op(a, pri.pop(0))
                a.lg_wait("f%d" % i)
                b = FR + 4 * (i % NFR)
                x = XN + 4 * st
                c = "0" if st == 0 else v(acc, 16)
                if tau == 0:
                    a("v_mfma_f32_32x32x16_bf16 %s, %s, %s, %s" % (v(acc, 16), v(x, 4), v(b, 4), c))
                else:
                    a("v_mfma_f32_32x32x16_bf16 %s, %s, %s, %s" % (v(acc, 16), v(b, 4), v(x, 4), c))
                for o in sched[st]: emit_op(a, o)
            if tau == 0:
                a("v_mfma_f32_32x32x16_bf16 %s, %s, %s, %s" % (v(acc, 16), v(XA, 4), v(AUGR, 4), v(acc, 16)))
            elif tau != 1:
                a.lg_wait("aug")
                a("v_mfma_f32_32x32x16_bf16 %s, %s, %s, %s" % (v(acc, 16), v(AUGR, 4), v(XA, 4), v(acc, 16)))
        a("s_nop 7"); a("s_nop 4")
        last = gelu_ops(ntile - 1)
        if g == 1 and hooks:
            hooks.g1_end(a, last, barrier)
        elif g == 1:
            barrier(9)
            assert not pri
            for k, o in enumerate(last):
                if k == len(last) // 2: barrier(10)
                emit_op(a, o)
        else:
            for o in last: emit_op(a, o)
        if hooks:
            if g == 0: hooks.tail(a, g)
        elif g == 1:
            a("s_lshl_b32 s36, s19, 8")
            a("s_add_u32 s36, s36, s2")
            k0.job_finv(a, XN, 36, 4, 37)
        a.stamp()
        a.stamp(True)
        a.stamp_flush(4, STAMP_OFF, 18, T)
        a("s_endpgm")

    group(0)
    a.label("L_k1_g1")
    group(1)
    a.label("L_k1_end")
    a("s_endpgm")
    return (name, 256, 512, 163840 if hooks else K1_LDS, NV)
```

```python
from asmlib import *
from layout import *
import os
import k0, k1d
PF2 = int(os.environ.get('PF2', '0'))
from k1d import SP, FLG_LDS, UNIT
from k2 import T_M32F, T_TW1, T_M64, T_TW2, T_M32I

KS = 17408
NSLOT = 8
OWN_LDS = 143360
DBG_ALL, DBG_LATE, DBG_ALL2 = 128, 132, 64
OOB = 0x7ff00000
ZR = [SP + 4096, SP + 12288]
ZI = [SP + 8192, 69632]
SW_LDS = k1d.ZERO_LDS + 16
RC_LDS = FLG_LDS + 32
def slot_addr(n):
    s_ = n % NSLOT
    return s_ * KS + (4096 if s_ >= 4 else 0)
def red_addr(f): return 143360 + f * 1024 if f < 4 else (69632 + (f - 4) * 1024 if f < 8 else SP + 4096 + (f - 8) * 1024)
NK = 41
LCNT_LDS = FLG_LDS + 60

def spin_begin(a, name):
    lp = a.newlabel(name)
    a("s_mov_b32 s33, 0")
    a.label(lp)
    return lp
def spin_end(a, lp, sleep=4):
    out = a.newlabel("spinout")
    a("s_cbranch_scc1 %s" % out)
    if sleep: a("s_sleep %d" % sleep)
    a("s_add_u32 s33, s33, 1")
    a("s_cmp_lt_u32 s33, 0x40000")
    a("s_cbranch_scc1 %s" % lp)
    a.label(out)

def one_lane(a, lines):
    a("s_mov_b64 exec, 1")
    for l in lines: a(l)
    a("s_mov_b64 exec, -1")

XF_OFF = FLAG_OFF + 16384
def flag_store(a, val, s_off, woff=0):
    a("s_add_u32 s28, s59, %d" % val)
    a("v_mov_b32 v253, %d" % woff)
    a("v_mov_b32 v254, s28")
    one_lane(a, ["buffer_store_dword v254, v253, s[4:7], s%d offen sc1" % s_off])
def chk_range(a, R, n, lo, hi=4):
    a("s_add_u32 s28, s59, %d" % lo)
    for i in range(n): a("v_subrev_u32 v%d, s28, v%d" % (R + i, R + i))
    for i in range(1, n): a("v_max_u32 v%d, v%d, v%d" % (R, R, R + i))
    a("v_cmp_ge_u32 vcc, %d, v%d" % (hi - lo, R))
    a("s_nop 1")
    a("s_cmp_eq_u64 vcc, -1")
def all_load(a, R, stage, wave, tag=None):
    lines = ["s_mov_b32 s29, 0x%x" % (FLAG_OFF + (stage - 1) * 4096)]
    lines += ["buffer_load_dword v%d, v3, s[4:7], s29 offen offset:%d sc1" % (R + i, 1024 * i) for i in range(4)]
    if tag: k1d.emit_op(a, ("cond", "s_cmp_eq_u32 s18, %d" % wave, lines, tag))
    else:
        for l in lines: a(l)
def all_check(a, R, stage, wave, tag):
    ok = a.newlabel("aok")
    a("s_cmp_eq_u32 s18, %d" % wave)
    a("s_cbranch_scc0 %s" % ok)
    a.vm_wait_mark(tag)
    chk_range(a, R, 4, 0, 0)
    a("s_cbranch_scc1 %s" % ok)
    lp = spin_begin(a, "aspin")
    all_load(a, R, stage, wave)
    a("s_waitcnt vmcnt(0)")
    chk_range(a, R, 4, 0, 0)
    spin_end(a, lp, 8)
    a.label(ok)

class Hooks:
    def after_barrier(self, a, g, phi):
        if g == 0 and phi in (5, 7):
            lab = a.newlabel("noall")
            a("s_cmp_eq_u32 s18, 0"); a("s_cbranch_scc0 %s" % lab)
            flag_store(a, 0, 101, 4096 if phi == 5 else 8192)
            a.label(lab)
        if g == 1 and phi == 8:
            all_load(a, 248, 2, 4, "allp")
    def ids2(self, a):
        a("s_lshr_b32 s26, s17, 2")
        a("s_and_b32 s27, s17, 3")
        a("s_mul_i32 s24, s26, 9")
        a("s_add_u32 s24, s24, 1")
        a("s_lshr_b32 s24, s24, 1")
        a("s_and_b32 s25, s26, 1")
    def tail(self, a, g):
        a.stamp()
        self.ids2(a)
        consumer(a)
        final(a)
    def g1_end(self, a, last, barrier):
        all_check(a, 248, 2, 4, "allp")
        all_load(a, 232, 3, 5, "allp3")
        nofft = a.newlabel("nofft"); done = a.newlabel("latedone")
        a("s_cmp_lt_u32 s2, 145")
        a("s_cbranch_scc0 %s" % nofft)
        vm0, ns0 = list(a.vmq), a.nstamp
        for isfft in (True, False):
            if not isfft: a.label(nofft)
            a.vmq, a.nstamp = list(vm0), ns0
            extra = []
            if isfft:
                a("s_and_b32 s52, s19, 1")
                a("s_lshr_b32 s53, s19, 1")
                a("s_lshl_b32 s54, s2, 1")
                a("s_add_u32 s54, s54, s53")
                extra = fft_preload(54, 52, 53)
            barrier(9)
            for kk, o in enumerate(last):
                if kk == len(last) // 2:
                    all_check(a, 232, 3, 5, "allp3")
                    barrier(10)
                    if isfft:
                        for z in fft_zload(): k1d.emit_op(a, z)
                if extra: k1d.emit_op(a, extra.pop(0))
                k1d.emit_op(a, o)
            for o in extra: k1d.emit_op(a, o)
            a.stamp()
            self.ids2(a)
            L = Loader(a)
            if isfft:
                fft(a, 52, L)
            else:
                a.vm_wait("pg1")
                hdone(a, 8, 9)
                L.prefetch()
                a("s_sub_u32 s52, s2, 145")
                a("s_lshl_b32 s52, s52, 2")
                a("s_add_u32 s52, s52, s19")
                k0.job_finv(a, 16, 52, 4, 44)
                a("s_add_u32 s52, s52, 444")
                k0.job_finv(a, 40, 52, 4, 44)
                a.vm_mark("late")
            a.stamp()
            L.run()
            if isfft:
                a.stamp(); a.stamp(True)
                a.stamp_flush(4, STAMP_OFF, 18, 72)
                a("s_endpgm")

def hdone(a, vt, va):
    a("v_mov_b32 v%d, %d" % (va, RC_LDS + 4))
    a("v_mov_b32 v%d, 1" % vt)
    one_lane(a, ["ds_add_rtn_u32 v%d, v%d, v%d" % (vt, va, vt), "s_waitcnt lgkmcnt(0)"])
    a("v_readfirstlane_b32 s28, v%d" % vt)
    lab = a.newlabel("hnl")
    a("s_cmp_eq_u32 s28, 7"); a("s_cbranch_scc0 %s" % lab)
    if "sc1" not in k1d.SCH:
        a("buffer_wbl2 sc1")
        a("s_waitcnt vmcnt(0)")
    flag_store(a, 3, 101, 4)
    a.label(lab)

def dma_bases(a):
    for o in ["s_lshl_b32 s38, s19, 10",
              "s_mul_i32 s34, s26, %d" % (36 * 36 * 1024), "s_mul_i32 s28, s27, 9216", "s_add_u32 s28, s28, s38", "s_add_u32 s34, s34, s28",
              "s_add_u32 s34, s34, 0x%x" % W2P_OFF, "s_add_u32 s35, s28, 0x%x" % (W2P_OFF + 144 * 36 * 1024),
              "s_lshl_b32 s36, s16, 3", "s_add_u32 s36, s36, s19", "s_mul_i32 s36, s36, 144", "s_mul_i32 s28, s26, 36", "s_add_u32 s36, s36, s28",
              "s_lshl_b32 s36, s36, 10", "s_add_u32 s36, s36, 0x%x" % H_OFF, "s_lshl_b32 s96, s96, 1"]:
        a(o)
    for s_ in range(4):
        a("s_add_u32 s28, s27, %d" % s_)
        a("s_and_b32 s28, s28, 3")
        a("s_mul_i32 s%d, s28, 9" % (12 + s_))
        a("s_and_b32 s28, s28, 1")
        a("s_add_u32 s%d, s%d, s28" % (92 + s_, 12 + s_))
        a("s_cmp_eq_u32 s28, 0")
        a("s_cselect_b32 s28, 8, 0")
        a("s_add_u32 s%d, s%d, s28" % (12 + s_, 12 + s_))
def dma_ops(n, vl):
    slot = slot_addr(n)
    if n < 36:
        s_, i = divmod(n, 9)
        pre = ["s_add_u32 s32, s96, %d" % i, "s_and_b32 s32, s32, 7", "s_add_u32 s32, s32, s%d" % (92 + s_)] if i < 8 else ["s_mov_b32 s32, s%d" % (12 + s_)]
        pre += ["s_mul_i32 s31, s32, %d" % (36 * 1024), "s_add_u32 s31, s31, s34", "s_lshl_b32 s32, s32, 10", "s_add_u32 s32, s32, s36"]
    else:
        pre = ["s_add_u32 s31, s35, %d" % ((n - 36) * 36 * 1024)]
    ops = [("grp", pre),
           ("cond", "s_cmp_eq_u32 s19, 0", ["s_add_u32 m0, s38, %d" % (slot + 8192), "s_add_u32 s30, s31, 8192",
                                            "buffer_load_dwordx4 v%d, s[4:7], s30 offen sc1 lds" % vl], None)]
    for t in (0, 4):
        ops.append(("grp", ["s_add_u32 m0, s38, %d" % (slot + t * 1024), "s_add_u32 s30, s31, %d" % (t * 1024),
                            ("vm", "buffer_load_dwordx4 v%d, s[4:7], s30 offen sc1 lds" % vl, "k%d" % n)]))
    if n < 36:
        for u in range(2):
            ops.append(("grp", ["s_add_u32 m0, s38, %d" % (slot + 9216 + u * 4096), "s_add_u32 s30, s32, %d" % (u * 4 * 144 * 1024),
                                ("vm", "buffer_load_dwordx4 v%d, s[4:7], s30 offen sc1 lds" % vl, "k%d" % n)]))
    else:
        for u in range(2):
            ops.append(("grp", ["s_add_u32 m0, s38, %d" % (slot + 9216 + u * 4096), "s_add_u32 s30, s37, %d" % (((n - 36) * 32 + u * 16) * 4096),
                                ("vm", "buffer_load_dwordx4 v4, s[4:7], s30 offen sc1 lds", "k%d" % n)]))
    return ops
def peer_addr(a, vd):
    for o in ["s_and_b32 s28, s2, 63", "v_and_b32 v%d, 3, v1" % vd, "v_lshlrev_b32 v%d, 6, v%d" % (vd, vd), "v_add_u32 v%d, s28, v%d" % (vd, vd),
              "v_lshlrev_b32 v%d, 4, v%d" % (vd, vd), "v_add_u32 v%d, 0x%x, v%d" % (vd, FLAG_OFF + 4, vd)]:
        a(o)

def kmap(kk):
    n, cc = divmod(kk, 4)
    return 9 * cc + (n + (cc & 1)) % 9

M64, TW, MF, WV, ZA, AC, PK, T0 = 88, 152, 184, 196, 212, 16, 48, 72
MI = 244
M32Q = [196, 200, 204, 208, 184, 188, 192, 252]
vLO, vFq, vFP, vSG = 12, 13, 14, 15
sRE, sIM, sT, sU, sZR, sZI, sROW, sZO = 44, 45, 46, 47, 48, 49, 50, 51
def m64r(t, u, ci): return M64 + ((2 * t + u) * 2 + ci) * 4
def fft_preload(s_col, s_hw, s_cs):
    ops = []
    X0, X1_ = 48, 49
    def ld(dst, pre, off, tag):
        ops.append(("grp", pre + [("vm", "buffer_load_dwordx4 %s, v3, s[4:7], s55 offen offset:%d sc1" % (v(dst, 4), off), tag)]))
    pre = ["s_min_u32 s55, s%d, 288" % s_col, "s_lshl_b32 s55, s55, 13", "s_lshl_b32 s56, s%d, 12" % s_hw, "s_add_u32 s55, s55, s56", "s_add_u32 s55, s55, 0x%x" % WT_OFF]
    for t in range(4): ld(WV + 4 * t, pre if t == 0 else [], t * 1024, "w")
    ld(m64r(0, 0, 0), ["s_mov_b32 s55, 0x%x" % (TAB_OFF + T_M64 * 1024)], 0, "m64")
    ld(m64r(0, 0, 1), [], 1024, "m64")
    ld(MF, ["s_mul_i32 s55, s%d, 3072" % s_hw, "s_add_u32 s55, s55, 0x%x" % (TAB_OFF + T_M32F * 1024)], 0, "mf")
    ld(MF + 4, [], 1024, "mf")
    ld(MI, ["s_mov_b32 s55, 0x%x" % (TAB_OFF + T_M32I * 1024)], 0, "m32i")
    ld(MI + 4, [], 1024, "m32i")
    ops.append(("grp", ["s_lshl_b32 s%d, s%d, 13" % (sRE, s_col), "s_add_u32 s%d, s%d, 4096" % (sIM, sRE),
                        "s_cmp_eq_u32 s%d, 0" % s_col, "s_cselect_b32 s%d, 0x%x, s%d" % (sIM, OOB, sIM),
                        "s_cmp_eq_u32 s%d, 288" % s_col, "s_cselect_b32 s%d, 0x%x, s%d" % (sIM, OOB, sIM), "s_cselect_b32 s%d, 4096, s%d" % (sRE, sRE),
                        "s_cmp_gt_u32 s%d, 288" % s_col, "s_cselect_b32 s%d, 0x%x, s%d" % (sRE, OOB, sRE), "s_cselect_b32 s%d, 0x%x, s%d" % (sIM, OOB, sIM),
                        "s_cmp_eq_u32 s%d, 0" % s_cs, "s_mov_b32 s%d, %d" % (sZR, ZR[1]), "s_mov_b32 s%d, %d" % (sZI, ZI[1]),
                        "s_cselect_b32 s%d, %d, s%d" % (sZR, ZR[0], sZR), "s_cselect_b32 s%d, %d, s%d" % (sZI, ZI[0], sZI),
                        "s_cmp_eq_u32 s%d, 0" % s_hw, "s_cselect_b32 s%d, s%d, s%d" % (sROW, sRE, sIM), "s_cselect_b32 s%d, s%d, s%d" % (sZO, sZR, sZI),
                        "s_lshl_b32 s%d, s%d, 3" % (sT, s_cs), "s_lshl_b32 s%d, s%d, 2" % (sU, s_hw), "s_add_u32 s%d, s%d, %d" % (sT, sT, FLG_LDS),
                        "s_add_u32 s%d, s%d, s%d" % (sU, sU, sT), "v_mov_b32 v%d, s%d" % (vFq, sU), "s_xor_b32 s%d, s%d, 4" % (sU, sU), "v_mov_b32 v%d, s%d" % (vFP, sU),
                        "s_lshl_b32 s%d, s%d, 2" % (sT, s_cs), "s_add_u32 s%d, s%d, %d" % (sT, sT, FLG_LDS + 16), "v_mov_b32 v%d, s%d" % (vSG, sT)]))
    ops += ["v_and_b32 v50, 15, v1", "s_lshl_b32 s56, s%d, 4" % s_hw, "v_add_u32 v50, s56, v50", "v_cvt_f32_u32 v50, v50",
            "v_mul_f32 v50, 0x%x, v50" % f32bits(-1.0 / 2048),
            "v_lshrrev_b32 v51, 4, v1", "v_lshlrev_b32 v51, 2, v51", "v_cvt_f32_u32 v51, v51", "v_mul_f32 v51, v51, v50"]
    for t in range(4):
        for r in range(4): ops.append("v_fmamk_f32 v%d, v50, 0x%x, v51" % (TW + 8 * t + 4 + r, f32bits(16.0 * t + r)))
        for r in range(4): ops.append("v_cos_f32 v%d, v%d" % (TW + 8 * t + r, TW + 8 * t + 4 + r))
        for r in range(4): ops.append("v_sin_f32 v%d, v%d" % (TW + 8 * t + 4 + r, TW + 8 * t + 4 + r))
    mid = len(ops)
    ops += [("vwait", "w"), "v_mov_b32 v52, 0x7fff7fff", "v_and_b32 v%d, v%d, v52" % (X0, WV)]
    for i in range(1, 16):
        ops += ["v_and_b32 v%d, v%d, v52" % (X1_, WV + i), "v_pk_max_u16 v%d, v%d, v%d" % (X0, X0, X1_)]
    ops += ["v_lshrrev_b32 v%d, 16, v%d" % (X1_, X0), "v_and_b32 v%d, 0xffff, v%d" % (X0, X0), "v_max_u32 v%d, v%d, v%d" % (X0, X0, X1_),
            "ds_max_u32 v%d, v%d" % (vSG, X0), "v_mov_b32 v%d, 1" % X1_, "ds_write_b32 v%d, v%d" % (vFq, X1_)]
    ops += [("vwait", "mf"), "v_and_b32 v%d, 1, v1" % vLO, "v_mov_b32 v52, 0xffff", "v_mul_u32_u24 v%d, 0x8000, v%d" % (vLO, vLO),
            "v_lshl_or_b32 v%d, v%d, 16, v%d" % (vLO, vLO, vLO)]
    for k in range(4):
        cr, ci = m64r(0, 0, 0) + k, m64r(0, 0, 1) + k
        c1, i1 = m64r(1, 0, 0) + k, m64r(1, 0, 1) + k
        ops += ["v_bfi_b32 v%d, v52, v%d, v%d" % (c1, cr, ci), "v_bfi_b32 v%d, v52, v%d, v%d" % (i1, ci, cr)]
        if k & 1: ops.append("v_xor_b32 v%d, 0x80008000, v%d" % (c1, c1))
        ops += ["v_xor_b32 v%d, 0x%x, v%d" % (i1, 0x8000 if k & 1 else 0x80000000, i1), "v_xor_b32 v%d, 0x80008000, v%d" % (MF + 8 + k, MF + 4 + k)]
    for t in (2, 3):
        for k in range(8): ops.append("v_xor_b32 v%d, 0x80000000, v%d" % (m64r(t, 0, 0) + k, m64r(t - 2, 0, 0) + k))
    for t in range(4):
        for k in range(8): ops.append("v_xor_b32 v%d, v%d, v%d" % (m64r(t, 1, 0) + k, vLO, m64r(t, 0, 0) + k))
    return ops
def fft_zload():
    ops = [("grp", ["v_add_u32 v53, s%d, v3" % sROW, "s_mov_b32 s%d, 0x%x" % (sT, X1_OFF), "s_mov_b32 m0, s%d" % sZO, "s_nop 0"] +
                   [("vm", "buffer_load_dwordx4 v53, s[4:7], s%d offen offset:%d sc1 lds" % (sT, n * 1024), "z") for n in range(4)])]
    return ops

def weave(a, mf, va):
    va = list(va)
    for i, x in enumerate(mf):
        a(x)
        n = (len(va) + len(mf) - i - 1) // (len(mf) - i)
        for _ in range(n): a(va.pop(0))

def fft(a, s_hw, L):
    vTR, vTI, vSC, vX, vY, vONE = T0 + 8, T0 + 9, T0 + 12, T0 + 13, T0 + 14, T0 + 15
    vL16 = 3
    R = "s[4:7]"
    WS = ZA
    a("v_lshrrev_b32 v%d, 4, v1" % vX)
    a("v_bfe_u32 v%d, v1, 2, 2" % vY)
    a("v_lshl_add_u32 v%d, v%d, 3, v%d" % (vY, vX, vY))
    a("v_lshlrev_b32 v%d, 7, v%d" % (vTR, vY))
    a("v_and_b32 v%d, 3, v1" % vY)
    a("v_lshl_add_u32 v%d, v%d, 3, v%d" % (vTR, vY, vTR))
    a("v_add_u32 v%d, s%d, v%d" % (vTI, sZI, vTR))
    a("v_add_u32 v%d, s%d, v%d" % (vTR, sZR, vTR))
    def signal(k):
        a("v_mov_b32 v%d, %d" % (vONE, k))
        a("ds_write_b32 v%d, v%d" % (vFq, vONE))
    def wait(k):
        lp = spin_begin(a, "pw")
        a("ds_read_b32 v%d, v%d" % (vONE, vFP))
        a("s_waitcnt lgkmcnt(0)")
        a("v_readfirstlane_b32 s28, v%d" % vONE)
        a("s_cmp_ge_u32 s28, %d" % k)
        spin_end(a, lp, 0)
    a.vm_wait("z")
    signal(2); wait(2)
    a("ds_read_b32 v%d, v%d" % (vX, vSG))
    for t in range(4):
        for p in range(2):
            for h in range(2):
                a("ds_read_b64_tr_b16 %s, v%d offset:%d" % (v(ZA + (2 * t + p) * 4 + 2 * h, 2), vTI if p else vTR, t * 32 + h * 512))
    CR, CI, NCI = MF, MF + 4, MF + 8
    mf = "v_mfma_f32_16x16x32_f16"
    a("s_waitcnt lgkmcnt(0)")
    signal(3)
    sa = []
    for t in range(4):
        zr, zi = ZA + 8 * t, ZA + 8 * t + 4
        sa += ["%s %s, %s, %s, 0" % (mf, v(AC + 8 * t, 4), v(zr, 4), v(CR, 4)), "%s %s, %s, %s, 0" % (mf, v(AC + 8 * t + 4, 4), v(zr, 4), v(CI, 4)),
               "%s %s, %s, %s, %s" % (mf, v(AC + 8 * t, 4), v(zi, 4), v(NCI, 4), v(AC + 8 * t, 4)),
               "%s %s, %s, %s, %s" % (mf, v(AC + 8 * t + 4, 4), v(zi, 4), v(CR, 4), v(AC + 8 * t + 4, 4))]
    weave(a, sa, ["v_lshrrev_b32 v%d, 7, v%d" % (vX, vX), "v_sub_u32 v%d, 247, v%d" % (vSG, vX), "v_max_i32 v%d, 1, v%d" % (vSG, vSG),
                  "v_lshlrev_b32 v%d, 23, v%d" % (vSG, vSG), "v_subrev_u32 v%d, 126, v%d" % (vX, vX), "v_mov_b32 v%d, 0x%x" % (vSC, f32bits(1.0 / 96)),
                  "v_ldexp_f32 v%d, v%d, v%d" % (vSC, vSC, vX)])
    def cmul(xr, xi, wr, wi, t0, t1):
        a("v_mul_f32 v%d, v%d, v%d" % (t0, xi, wi))
        a("v_mul_f32 v%d, v%d, v%d" % (t1, xr, wi))
        a("v_fma_f32 v%d, v%d, v%d, -v%d" % (xr, xr, wr, t0))
        a("v_fma_f32 v%d, v%d, v%d, v%d" % (xi, xi, wr, t1))
    def call(W):
        for t in range(4):
            for r in range(4):
                cmul(AC + 8 * t + r, AC + 8 * t + 4 + r, W + 8 * t + r, W + 8 * t + 4 + r, T0 + (2 * r) % 8, T0 + (2 * r + 1) % 8)
    def packs(neg_first):
        for u in range(2):
            for tt in range(2):
                t = 2 * u + tt
                for hh in range(2):
                    re0, im0 = AC + 8 * t + 2 * hh, AC + 8 * t + 4 + 2 * hh
                    d = 4 * u + 2 * tt + hh
                    a("v_cvt_pk_f16_f32 v%d, v%d, v%d" % (PK + d, re0, re0 + 1))
                    a("v_cvt_pk_f16_f32 v%d, v%d, v%d" % (PK + 8 + d, im0, im0 + 1))
                    n0 = re0 if neg_first else im0
                    a("v_cvt_pk_f16_f32 v%d, -v%d, -v%d" % (PK + 16 + d, n0, n0 + 1))
    call(TW)
    packs(False)
    m64 = m64r
    def stage64(data_is_b):
        out = []
        for u in range(2):
            for half in range(2):
                for t in range(4):
                    for part in range(2):
                        acc = AC + 8 * t + 4 * part
                        c = "0" if (u == 0 and half == 0) else v(acc, 4)
                        if data_is_b:
                            mat = m64(t, u, (part if half == 0 else 1 - part))
                            dat = PK + 4 * u if half == 0 else (PK + 16 + 4 * u if part == 0 else PK + 8 + 4 * u)
                            out.append("%s %s, %s, %s, %s" % (mf, v(acc, 4), v(mat, 4), v(dat, 4), c))
                        else:
                            mat = m64(t, u, half)
                            dat = (PK + 4 * u if part == 0 else PK + 8 + 4 * u) if half == 0 else (PK + 8 + 4 * u if part == 0 else PK + 16 + 4 * u)
                            out.append("%s %s, %s, %s, %s" % (mf, v(acc, 4), v(dat, 4), v(mat, 4), c))
        return out
    va = []
    for t in range(4):
        for r in range(4):
            w = WV + 4 * t + r
            va += ["v_lshlrev_b32 v%d, 16, v%d" % (WS + 8 * t + r, w), "v_and_b32 v%d, 0xffff0000, v%d" % (WS + 8 * t + 4 + r, w)]
        for r in range(8): va.append("v_mul_f32 v%d, v%d, v%d" % (WS + 8 * t + r, WS + 8 * t + r, vSG))
    a("s_nop 0")
    weave(a, stage64(True), va)
    a.vm_wait("pg1")
    hdone(a, 8, 9)
    L.prefetch()
    call(WS)
    packs(True)
    va = ["v_and_b32 v%d, 15, v1" % vX, "v_cvt_f32_u32 v%d, v%d" % (vX, vX), "v_mul_f32 v%d, 0x%x, v%d" % (vX, f32bits(1.0 / 2048), vX),
          "v_lshrrev_b32 v%d, 4, v1" % vY, "v_lshlrev_b32 v%d, 2, v%d" % (vY, vY), "s_lshl_b32 s%d, s%d, 4" % (sT, s_hw), "v_add_u32 v%d, s%d, v%d" % (vY, sT, vY),
          "v_cvt_f32_u32 v%d, v%d" % (vY, vY)]
    for t in range(4):
        if t: va.append("v_add_f32 v%d, 0x%x, v%d" % (vX, f32bits(16.0 / 2048), vX))
        va.append("v_mul_f32 v%d, v%d, v%d" % (TW + 8 * t + 4, vX, vY))
        for r in range(1, 4): va.append("v_fmamk_f32 v%d, v%d, 0x%x, v%d" % (TW + 8 * t + 4 + r, vX, f32bits(float(r)), TW + 8 * t + 4))
        for r in range(4): va.append("v_cos_f32 v%d, v%d" % (TW + 8 * t + r, TW + 8 * t + 4 + r))
        for r in range(4): va.append("v_sin_f32 v%d, v%d" % (TW + 8 * t + 4 + r, TW + 8 * t + 4 + r))
    a("s_nop 0")
    weave(a, stage64(False), va)
    a("v_mul_lo_u32 v%d, v%d, s%d" % (vX, vLO, s_hw))
    a("v_xor_b32 v%d, v%d, v%d" % (vY, vX, vLO))
    for nt in range(2):
        for oo in range(2):
            mk = vX if oo == 0 else vY
            if nt: a("v_xor_b32 v%d, 0x80000000, v%d" % (mk, mk))
            for p in range(2):
                for kq in range(4):
                    a("v_xor_b32 v%d, v%d, v%d" % (M32Q[(2 * nt + oo) * 2 + p] + kq, mk, MI + 4 * p + kq))
    call(TW)
    for t in range(4):
        for k in range(4):
            a("v_cvt_pk_f16_f32 v%d, v%d, v%d" % (PK + 4 * t + k, AC + 8 * t + 2 * k, AC + 8 * t + 2 * k + 1))
    a("s_xor_b32 s%d, s%d, 1" % (sT, s_hw))
    a("s_lshl_b32 s%d, s%d, 11" % (sT, sT))
    a("s_add_u32 s%d, s%d, s%d" % (sT, sT, sZR))
    a("v_add_u32 v%d, s%d, v%d" % (vX, sT, vL16))
    a("s_lshl_b32 s%d, s%d, 11" % (sT, s_hw))
    a("s_add_u32 s%d, s%d, s%d" % (sT, sT, sZR))
    a("v_add_u32 v%d, s%d, v%d" % (vTR, sT, vL16))
    wait(3)
    lab = a.newlabel("fft_hw1"); lab2 = a.newlabel("fft_j")
    a("s_cmp_eq_u32 s%d, 1" % s_hw)
    a("s_cbranch_scc1 %s" % lab)
    a("ds_write_b128 v%d, %s" % (vX, v(PK + 8, 4)))
    a("ds_write_b128 v%d, %s offset:1024" % (vX, v(PK + 12, 4)))
    a("s_branch %s" % lab2)
    a.label(lab)
    a("ds_write_b128 v%d, %s" % (vX, v(PK, 4)))
    a("ds_write_b128 v%d, %s offset:1024" % (vX, v(PK + 4, 4)))
    a("s_waitcnt lgkmcnt(0)")
    for i in range(8):
        a("v_mov_b32 v%d, v%d" % (PK + i, PK + 8 + i))
    a.label(lab2)
    signal(4)
    def accy(bt, nt, p): return AC + ((2 * bt + nt) * 2 + p) * 4
    def sA(oo):
        return ["%s %s, %s, %s, %s" % (mf, v(accy(bt, nt, p), 4), v(PK + 8 * oo + 4 * bt, 4), v(M32Q[(2 * nt + oo) * 2 + p], 4), "0" if oo == 0 else v(accy(bt, nt, p), 4))
                for bt in range(2) for nt in range(2) for p in range(2)]
    for x in sA(0): a(x)
    wait(4)
    a("ds_read_b128 %s, v%d" % (v(PK + 16, 4), vTR))
    a("ds_read_b128 %s, v%d offset:1024" % (v(PK + 20, 4), vTR))
    va = ["v_and_b32 v%d, 15, v1" % vY, "v_lshlrev_b32 v%d, 7, v%d" % (vY, vY), "v_lshrrev_b32 v%d, 4, v1" % vX, "v_lshl_add_u32 v%d, v%d, 3, v%d" % (vY, vX, vY),
          "s_lshl_b32 s%d, s%d, 6" % (sT, s_hw), "v_add_u32 v%d, s%d, v%d" % (vY, sT, vY), "v_bfe_u32 v%d, v1, 1, 3" % T0, "v_lshlrev_b32 v%d, 4, v%d" % (T0, T0),
          "v_xor_b32 v%d, v%d, v%d" % (vY, vY, T0), "v_xor_b32 v%d, 32, v%d" % (T0, vY), "v_add_u32 v%d, s%d, v%d" % (T0 + 4, sZR, vY),
          "v_add_u32 v%d, s%d, v%d" % (vTI, sZI, vY), "v_add_u32 v%d, s%d, v%d" % (T0 + 1, sZR, T0), "v_add_u32 v%d, s%d, v%d" % (T0 + 2, sZI, T0),
          "v_lshlrev_b32 v%d, 4, v%d" % (vX, vX), "v_xor_b32 v%d, v%d, v%d" % (vX, vX, vL16), "v_xor_b32 v%d, 64, v%d" % (T0 + 3, vX),
          "v_add_u32 v%d, s%d, v%d" % (vX, sZO, vX), "v_add_u32 v%d, s%d, v%d" % (T0 + 3, sZO, T0 + 3), "v_add_u32 v%d, s%d, v%d" % (vY, sROW, vL16)]
    for o in va: a(o)
    a("s_waitcnt lgkmcnt(0)")
    signal(5)
    for bt in range(2):
        for nt in range(2):
            for p in range(2):
                a("%s %s, %s, %s, %s" % (mf, v(accy(bt, nt, p), 4), v(PK + 16 + 4 * bt, 4), v(M32Q[(2 * nt + 1) * 2 + p], 4), v(accy(bt, nt, p), 4)))
    wait(5)
    for i in range(32):
        a("v_mul_f32 v%d, v%d, v%d" % (AC + i, AC + i, vSC))
        if i & 1: a("v_cvt_pk_bf16_f32 v%d, v%d, v%d" % (ZA + i // 2, AC + i - 1, AC + i))
    for bt in range(2):
        for nt in range(2):
            for p in range(2):
                k = (2 * bt + nt) * 2 + p
                a("ds_write_b64 v%d, %s offset:%d" % ([[T0 + 4, vTI], [T0 + 1, T0 + 2]][bt][p], v(ZA + 2 * k, 2), nt * 2048))
    signal(6); wait(6)
    for n in range(4):
        a("ds_read_b128 %s, v%d offset:%d" % (v(AC + 4 * n, 4), T0 + 3 if n & 1 else vX, n * 1024))
    a("s_mov_b32 s%d, 0x%x" % (sT, Y1_OFF))
    for n in range(4):
        a("s_waitcnt lgkmcnt(%d)" % (3 - n))
        a.vm("buffer_store_dwordx4 %s, v%d, %s, s%d offen offset:%d sc1" % (v(AC + 4 * n, 4), vY, R, sT, n * 1024), "y")
    a.vm_mark("late")

class Loader:
    def __init__(self, a):
        self.a = a
        for o in ["v_lshrrev_b32 v6, 4, v1", "s_and_b32 s28, s19, 1", "s_lshl_b32 s28, s28, 2", "v_add_u32 v5, s28, v6", "v_lshlrev_b32 v5, 1, v5",
                  "v_and_b32 v7, 15, v1", "v_xor_b32 v5, v5, v7", "v_lshlrev_b32 v5, 4, v5", "v_lshl_add_u32 v4, v6, 12, v5", "v_mov_b32 v6, 0",
                  "s_lshl_b32 s37, s24, 5", "s_lshl_b32 s28, s19, 2", "s_add_u32 s37, s37, s28", "s_lshl_b32 s37, s37, 12", "s_lshl_b32 s28, s16, 8",
                  "s_add_u32 s37, s37, s28", "s_add_u32 s37, s37, 0x%x" % Y1_OFF]:
            a(o)
        peer_addr(a, 5)
        dma_bases(a)
        a("s_mul_i32 s28, s24, %d" % (36 * 1024))
        a("s_add_u32 s35, s35, s28")
        self.prog_load(1)
        self.u = 0
        self.issued = 0
    def prog_load(self, t): self.a.vm("buffer_load_dword v2, v5, s[4:7], 0 offen sc1", "pg%d" % t)
    def prog_check(self, t):
        a = self.a
        ok = a.newlabel("pok")
        a.vm_wait("pg%d" % t)
        chk_range(a, 2, 1, t, 3)
        a("s_cbranch_scc1 %s" % ok)
        lp = spin_begin(a, "pgw")
        a("buffer_load_dword v2, v5, s[4:7], 0 offen sc1")
        a("s_waitcnt vmcnt(0)")
        chk_range(a, 2, 1, t, 3)
        spin_end(a, lp)
        a.label(ok)
    def issue(self, n):
        if n == 5: self.prog_load(3)
        if n == 9: self.prog_check(3)
        for o in dma_ops(n, 3): k1d.emit_op(self.a, o)
        self.issued = n + 1
    def prefetch(self):
        for n in range(4): self.issue(n)
    def svc(self):
        a = self.a; u = self.u
        a.vm_wait("k%d" % min(2 * u + 2, 40))
        if u == 2: a.vm_wait_mark("late")
        if u == 14: all_check(a, 8, 4, 6, "g4")
        if u % 4 == 0: a.stamp()
        a("s_barrier")
        if u == 2:
            lab = a.newlabel("svc"); a("s_cmp_eq_u32 s19, 3"); a("s_cbranch_scc0 %s" % lab)
            flag_store(a, 0, 101, 12288)
            a.label(lab)
        if u == 11: all_load(a, 8, 4, 6, "g4")
        for n in range(self.issued, min(2 * u + 9 if u else 8, 41)): self.issue(n)
        self.u += 1
    def run(self):
        while self.u < 21: self.svc()
        final(self.a)

def consumer(a):
    ACC = 96
    BUF = [8, 52]
    def lds_ref(addr, b0):
        k = addr // 49152
        return b0 + k, addr - k * 49152
    a("v_mov_b32 v2, v3")
    a("v_add_u32 v3, 49152, v2")
    a("v_add_u32 v4, 98304, v2")
    a("s_lshl_b32 s28, s19, 11")
    a("s_add_u32 s28, s28, 9216")
    a("v_add_u32 v5, s28, v2")
    a("v_add_u32 v6, 49152, v5")
    a("v_add_u32 v7, 98304, v5")
    for o in ["v_lshrrev_b32 v174, 5, v1", "v_lshlrev_b32 v174, 4, v174", "v_bfe_u32 v175, v1, 4, 1", "v_lshl_add_u32 v174, v175, 2, v174",
              "v_bfe_u32 v175, v1, 2, 2", "v_add_u32 v174, v174, v175", "v_bfe_u32 v175, v1, 1, 1", "s_lshl_b32 s28, s19, 2", "v_add_u32 v175, s28, v175",
              "v_and_b32 v176, 7, v174", "v_lshlrev_b32 v176, 1, v176", "v_xor_b32 v175, v175, v176", "v_xor_b32 v176, 2, v175", "v_lshlrev_b32 v174, 8, v174",
              "v_and_b32 v177, 1, v1", "v_lshl_add_u32 v174, v177, 3, v174", "v_add_u32 v174, 9216, v174", "v_lshl_add_u32 v168, v175, 4, v174",
              "v_lshl_add_u32 v171, v176, 4, v174"]:
        a(o)
    for b in (168, 171):
        a("v_add_u32 v%d, 49152, v%d" % (b + 1, b))
        a("v_add_u32 v%d, 98304, v%d" % (b + 2, b))
    def reads(n):
        B = BUF[n & 1]; slot = slot_addr(n); out = []
        if n < 36:
            for mt in range(2):
                br, off = lds_ref(slot + mt * 1024, 5)
                out.append("ds_read_b128 %s, v%d offset:%d" % (v(B + 4 * mt, 4), br, off))
        else:
            for mt in range(2):
                for hh in range(2):
                    br, off = lds_ref(slot + hh * 2048, 168 + 3 * mt)
                    out.append("ds_read_b64_tr_b16 %s, v%d offset:%d" % (v(B + 4 * mt + 2 * hh, 2), br, off))
        for t in range(9):
            br, off = lds_ref(slot + t * 1024, 2)
            out.append("ds_read_b128 %s, v%d offset:%d" % (v(B + 8 + 4 * t, 4), br, off))
        return out
    def kstep(n, rd, late=()):
        B = BUF[n & 1]
        rd = list(rd); late = list(late)
        per = [[] for _ in range(18)]
        for i, o in enumerate(rd): per[(i * 13) // len(rd)].append(o)
        for i, o in enumerate(late): per[13 + i].append(o)
        k = 0
        for t in range(9):
            for mt in range(2):
                acc = ACC + (2 * t + mt) * 4
                a("v_mfma_f32_16x16x32_bf16 %s, %s, %s, %s" % (v(acc, 4), v(B + 8 + 4 * t, 4), v(B + 4 * mt, 4), "0" if n == 0 else v(acc, 4)))
                for o in per[k]: k1d.emit_op(a, o)
                k += 1
    a("s_waitcnt vmcnt(0)")
    hdone(a, 174, 175)
    a.stamp()
    a("s_barrier")
    a.stamp()
    for r_ in reads(0): a(r_)
    def step(n, last):
        a("s_waitcnt lgkmcnt(0)")
        if n % 2 == 0 and n > 0: a("s_barrier")
        kstep(n, [] if last else reads(n + 1))
    for n in range(39):
        step(n, False)
        if n % 8 == 7: a.stamp()
    l39 = a.newlabel("c39"); epi = a.newlabel("cepi")
    a("s_cmp_eq_u32 s25, 1")
    a("s_cbranch_scc1 %s" % l39)
    step(39, False)
    step(40, True)
    a("s_branch %s" % epi)
    a.label(l39)
    step(39, True)
    a("s_barrier")
    a.label(epi)
    a.stamp()
    own = a.newlabel("own"); j2 = a.newlabel("sent")
    a("s_cmp_eq_u32 s19, s26")
    a("s_cbranch_scc1 %s" % own)
    a("s_andn2_b32 s28, s2, 3")
    a("s_or_b32 s28, s28, s19")
    a("s_lshl_b32 s30, s28, 7")
    a("s_add_u32 s30, s30, 0x%x" % XF_OFF)
    a("s_lshl_b32 s28, s28, 2")
    a("s_add_u32 s28, s28, s26")
    a("s_mul_i32 s28, s28, %d" % (9 * 1024))
    a("s_add_u32 s28, s28, 0x%x" % P_OFF)
    for t in range(9):
        for e in range(4):
            a("v_cvt_pk_bf16_f32 v%d, v%d, v%d" % (28 + 4 * t + e, ACC + 8 * t + 2 * e, ACC + 8 * t + 2 * e + 1))
        if t % 4 == 0 and t > 0: a("s_add_u32 s28, s28, 4096")
        a("buffer_store_dwordx4 %s, v2, s[4:7], s28 offen offset:%d sc1" % (v(28 + 4 * t, 4), (t % 4) * 1024))
    a("s_lshl_b32 s29, s26, 2")
    a("s_add_u32 s30, s30, s29")
    a("s_waitcnt vmcnt(0)")
    flag_store(a, 0, 30)
    a("s_branch %s" % j2)
    a.label(own)
    a("v_add_u32 v3, %d, v2" % OWN_LDS)
    a("s_nop 4")
    for tl in range(18):
        a("ds_write_b128 v3, %s offset:%d" % (v(ACC + 4 * tl, 4), tl * 1024))
    a("s_waitcnt lgkmcnt(0)")
    a.label(j2)
    a("v_mov_b32 v3, v2")

def final(a):
    a.stamp()
    a("s_load_dwordx4 s[52:55], s[0:1], %d" % KA_B2)
    a("v_and_b32 v4, 15, v1")
    a("s_lshl_b32 s28, s16, 7")
    a("s_lshl_b32 s29, s26, 5")
    a("s_add_u32 s28, s28, s29")
    a("v_add_u32 v4, s28, v4")
    a("v_mul_u32_u24 v4, 1152, v4")
    a("v_lshrrev_b32 v5, 4, v1")
    a("v_lshlrev_b32 v5, 3, v5")
    a("s_mul_i32 s28, s27, 288")
    a("s_lshl_b32 s29, s18, 5")
    a("s_add_u32 s28, s28, s29")
    a("v_add_u32 v5, s28, v5")
    a("v_add_u32 v4, v4, v5")
    a("v_add_u32 v6, %d, v4" % (16 * 1152))
    a("s_lshl_b32 s30, s18, 11")
    a("v_add_u32 v7, s30, v3")
    a("v_add_u32 v7, %d, v7" % OWN_LDS)
    a("v_and_b32 v8, 3, v1")
    a("v_min_u32 v8, 2, v8")
    a("s_add_u32 s28, s26, 1")
    a("v_add_u32 v8, s28, v8")
    a("v_and_b32 v8, 3, v8")
    a("v_lshlrev_b32 v8, 2, v8")
    a("s_lshl_b32 s34, s2, 7")
    a("s_add_u32 s34, s34, 0x%x" % XF_OFF)
    a("s_mul_i32 s35, s2, %d" % (4 * 9 * 1024))
    a("s_lshl_b32 s30, s18, 10")
    a("s_add_u32 s35, s35, s30")
    a("s_add_u32 s35, s35, 0x%x" % P_OFF)
    a("s_waitcnt lgkmcnt(0)")
    a.srd(44, 52, D * 2)
    a.srd(48, 54, S * D * 2)
    X, Bv, P, O = 16, 24, 32, 64
    def rnd(k, stage):
        off = 256 * k
        if stage == 0:
            a("buffer_load_dwordx2 %s, v4, s[40:43], 0 offen offset:%d" % (v(X + 4 * k, 2), off))
            a("buffer_load_dwordx2 %s, v6, s[40:43], 0 offen offset:%d" % (v(X + 4 * k + 2, 2), off))
            a("buffer_load_dwordx2 %s, v5, s[44:47], 0 offen offset:%d" % (v(Bv + 2 * k, 2), off))
        if stage == 1:
            for mt in range(2):
                a("ds_read_b128 %s, v7 offset:%d" % (v(O + 8 * k + 4 * mt, 4), 16384 * k + 1024 * mt))
        if stage == 2:
            for i in range(3):
                a("s_add_u32 s29, s26, %d" % (i + 1))
                a("s_and_b32 s29, s29, 3")
                a("s_mul_i32 s29, s29, %d" % (9 * 1024))
                a("s_add_u32 s29, s29, s35")
                if k: a("s_add_u32 s29, s29, 8192")
                a("buffer_load_dwordx4 %s, v3, s[4:7], s29 offen sc1" % v(P + 12 * k + 4 * i, 4))
        if stage == 3:
            def addp(dst, src):
                a("v_lshlrev_b32 v10, 16, v%d" % src)
                a("v_and_b32 v11, 0xffff0000, v%d" % src)
                a("v_add_f32 v%d, v%d, v10" % (dst, dst))
                a("v_add_f32 v%d, v%d, v11" % (dst + 1, dst + 1))
            for e in range(4):
                addp(O + 8 * k + 2 * e, X + 4 * k + e)
                addp(O + 8 * k + 2 * e, Bv + 2 * k + (e & 1))
        if stage == 4:
            for i in range(3):
                for e in range(4):
                    a("v_lshlrev_b32 v10, 16, v%d" % (P + 12 * k + 4 * i + e))
                    a("v_and_b32 v11, 0xffff0000, v%d" % (P + 12 * k + 4 * i + e))
                    a("v_add_f32 v%d, v%d, v10" % (O + 8 * k + 2 * e, O + 8 * k + 2 * e))
                    a("v_add_f32 v%d, v%d, v11" % (O + 8 * k + 2 * e + 1, O + 8 * k + 2 * e + 1))
            for e in range(4):
                a("v_cvt_pk_bf16_f32 v%d, v%d, v%d" % (X + 4 * k + e, O + 8 * k + 2 * e, O + 8 * k + 2 * e + 1))
            a("buffer_store_dwordx2 %s, v4, s[48:51], 0 offen offset:%d" % (v(X + 4 * k, 2), off))
            a("buffer_store_dwordx2 %s, v6, s[48:51], 0 offen offset:%d" % (v(X + 4 * k + 2, 2), off))
    def both(stage):
        rnd(0, stage)
        lab = a.newlabel("f8")
        a("s_cmp_eq_u32 s18, 0"); a("s_cbranch_scc0 %s" % lab)
        rnd(1, stage)
        a.label(lab)
    both(0)
    a("s_barrier")
    both(1)
    lp = spin_begin(a, "xpoll")
    a("buffer_load_dword v9, v8, s[4:7], s34 offen sc1")
    a("s_waitcnt vmcnt(0)")
    chk_range(a, 9, 1, 0, 0)
    spin_end(a, lp, 2)
    a.stamp()
    both(2)
    a("s_waitcnt lgkmcnt(0)")
    both(3)
    a("s_waitcnt vmcnt(0)")
    both(4)

def gen_mega(a):
    return k1d.gen_k1(a, Hooks(), "mega_kernel")

if __name__ == "__main__":
    import gen
    gen.build([gen_mega], "m1.s")
    gen.build([gen_mega], "m1t.s", True)
```

```python
import struct

def f32bits(x):
    return struct.unpack("<I", struct.pack("<f", x))[0]

def v(i, n=1):
    return "v%d" % i if n == 1 else "v[%d:%d]" % (i, i + n - 1)

def s(i, n=1):
    return "s%d" % i if n == 1 else "s[%d:%d]" % (i, i + n - 1)

class Asm:
    def __init__(self):
        self.L = []
        self.uid = 0
    def __call__(self, line):
        self.L.append("  " + line)
    def label(self, name):
        self.L.append(name + ":")
    def raw(self, line):
        self.L.append(line)
    def c(self, text):
        self.L.append("  ; " + text)
    def newlabel(self, base):
        self.uid += 1
        return "L_%s_%d" % (base, self.uid)
    def text(self):
        return "\n".join(self.L) + "\n"
    def srd(self, d, base, nbytes):
        self("s_mov_b32 s%d, s%d" % (d, base))
        self("s_and_b32 s%d, s%d, 0xffff" % (d + 1, base + 1))
        self("s_mov_b32 s%d, 0x%x" % (d + 2, nbytes))
        self("s_mov_b32 s%d, 0x00020000" % (d + 3))
    def vm_reset(self):
        self.vmq = []
    def vm(self, line, tag=None):
        self(line); self.vmq.append(tag)
    def vm_count_after(self, tag):
        idx = max(i for i, t in enumerate(self.vmq) if t == tag)
        return len(self.vmq) - 1 - idx
    def vm_wait(self, tag, extra=""):
        n = self.vm_count_after(tag)
        n = min(n, 63)
        self("s_waitcnt vmcnt(%d)%s" % (n, extra))
    def vm_mark(self, name):
        if not hasattr(self, "marks"): self.marks = {}
        self.marks[name] = len(self.vmq)
    def vm_wait_mark(self, name):
        self("s_waitcnt vmcnt(%d)" % min(63, len(self.vmq) - self.marks[name]))
    def lg_reset(self):
        self.lgq = []
    def ds(self, line, tag=None):
        self(line); self.lgq.append(tag)
    def lg_wait(self, tag):
        idx = [i for i, t in enumerate(self.lgq) if t == tag]
        if not idx: return
        n = min(len(self.lgq) - 1 - max(idx), 15)
        self("s_waitcnt lgkmcnt(%d)" % n)
        self.lgq = self.lgq[len(self.lgq) - n:] if n else []
    def lg_all(self):
        self("s_waitcnt lgkmcnt(0)"); self.lgq = []
    stamps_on = False
    def stamp(self, real=False):
        if not self.stamps_on: return
        i = self.nstamp; self.nstamp += 1
        assert i < 32
        self("%s s[98:99]" % ("s_memrealtime" if real else "s_memtime"))
        self("s_waitcnt lgkmcnt(0)")
        self("s_mov_b32 s%d, s98" % (60 + i))
        self.lgq = []
    def stamp_flush(self, srd, base_off, s_wave, vt=250):
        if not self.stamps_on: return
        import os
        if os.environ.get("DBGSTAMP"):
            lab = self.newlabel("nodbg")
            self("s_cmp_eq_u32 s2, %s" % os.environ["DBGSTAMP"]); self("s_cbranch_scc0 %s" % lab)
            self("s_cmp_eq_u32 s%d, 0" % s_wave); self("s_cbranch_scc0 %s" % lab)
            self("v_mov_b32 v%d, 0" % vt)
            for i in range(2, min(self.nstamp, 16)):
                self("s_sub_u32 s58, s%d, s%d" % (60 + i, 61 if i == min(self.nstamp, 16) - 1 and i == self.nstamp - 1 else 60))
                self("v_mov_b32 v%d, s58" % (vt + 1))
                self("buffer_store_dword v%d, v%d, s[20:23], 0 offen offset:%d" % (vt + 1, vt, 4 * (i - 1)))
                self("s_nop 1")
            self.label(lab)
            return
        self("s_lshl_b32 s58, s2, 4")
        self("s_add_u32 s58, s58, s%d" % s_wave)
        self("s_lshl_b32 s58, s58, 7")
        self("s_add_u32 s58, s58, 0x%x" % base_off)
        self("v_mov_b32 v%d, 0" % vt)
        for i in range(self.nstamp):
            self("v_mov_b32 v%d, s%d" % (vt + 1, 60 + i))
            self("buffer_store_dword v%d, v%d, s[%d:%d], s58 offen offset:%d" % (vt + 1, vt, srd, srd + 3, 4 * i))
            self("s_nop 1")
    def kernel_begin(self, name):
        self.nstamp = 0
        self.raw(".globl %s" % name)
        self.raw(".p2align 8")
        self.raw(".type %s,@function" % name)
        self.label(name)

def kd(name, vgpr, sgpr=102, accum=None):
    if accum is None:
        accum = (vgpr + 3) // 4 * 4
    return "\n".join([
        ".p2align 6",
        ".amdhsa_kernel %s" % name,
        "  .amdhsa_next_free_vgpr %d" % vgpr,
        "  .amdhsa_next_free_sgpr %d" % sgpr,
        "  .amdhsa_accum_offset %d" % accum,
        "  .amdhsa_group_segment_fixed_size 0",
        "  .amdhsa_kernarg_size 88",
        "  .amdhsa_user_sgpr_count 2",
        "  .amdhsa_user_sgpr_kernarg_segment_ptr 1",
        "  .amdhsa_system_sgpr_workgroup_id_x 1",
        ".end_amdhsa_kernel",
    ]) + "\n"
```

```python
import os
from asmlib import *
from layout import *
from k1 import ids
import k0

UNIT = 36864
SP = 4 * UNIT
ROWP_LDS = SP
AUG_LDS = SP + 512
ZERO_LDS = AUG_LDS + 3456
FLG_LDS = ZERO_LDS + 64
STAT_LDS = SP + 4096
CSF_LDS = SP + 14336
K1_LDS = SP + 16384
WTS = STAT_LDS
SCR = STAT_LDS

XN = 88
ACCS = [16, 32]
FR = 48
NFR = 6
T = 72
XA = 232
AUGR = 236
EX = 240
NV = 256
OOB = 0x7ff00000
SC = os.environ.get("K1_SC", " sc1")
PF1 = int(os.environ.get("PF1", "0"))
ROT = int(os.environ.get("ROT", "1"))
SCH = os.environ.get("SCH", SC)
C0 = -2.0 * 1.4426950408889634 * 0.7978845608028654

def emit_op(a, o):
    if isinstance(o, str): a(o)
    elif o[0] == "vm": a.vm(o[1], o[2])
    elif o[0] == "ds": a.ds(o[1], o[2])
    elif o[0] == "vwait": a.vm_wait(o[1])
    elif o[0] == "lwait": a.lg_wait(o[1])
    elif o[0] == "call": o[1]()
    elif o[0] == "cond":
        lab = a.newlabel("skip")
        a(o[1]); a("s_cbranch_scc0 %s" % lab)
        for x in o[2]: a(x)
        a.label(lab)
        if o[3]: a.vm_mark(o[3])
    elif o[0] == "mwait": a.vm_wait_mark(o[1])
    elif o[0] == "grp":
        for x in o[1]: emit_op(a, x)
    else: raise ValueError(o)

def split3(c, t, w0, w1, last):
    return ["v_cvt_pk_bf16_f32 v%d, v%d, v%d" % (t, c, c),
            "v_lshlrev_b32 v%d, 16, v%d" % (t, t),
            "v_sub_f32 v%d, v%d, v%d" % (t, c, t),
            "v_cvt_pk_bf16_f32 v%d, v%d, v%d" % (w0, c, t),
            "v_and_b32 v%d, 0xffff0000, v%d" % (c, w0),
            "v_sub_f32 v%d, v%d, v%d" % (t, t, c),
            "v_cvt_pk_bf16_f32 v%d, v%d, %s" % (w1, t, last)]

def gen_k1(a, hooks=None, name="k1_kernel"):
    a.kernel_begin(name)
    a("s_cmp_ge_u32 s2, 256")
    a("s_cbranch_scc1 L_k1_end")
    a.lg_reset()
    a.stamp()
    a.stamp(True)
    a("s_load_dwordx4 s[20:23], s[0:1], %d" % KA_X)
    a("s_load_dwordx2 s[24:25], s[0:1], %d" % KA_WI)
    a("s_load_dwordx4 s[36:39], s[0:1], %d" % KA_W1)
    a("s_load_dwordx2 s[56:57], s[0:1], %d" % KA_W2)
    a("s_load_dwordx4 s[52:55], s[0:1], %d" % KA_DBG)
    ids(a)
    a("s_lshl_b32 s28, s16, 7")
    a("s_lshl_b32 s29, s19, 5")
    a("s_add_u32 s33, s28, s29")
    a("v_and_b32 v11, 31, v1")
    a("v_lshrrev_b32 v14, 5, v1")
    a("v_lshlrev_b32 v3, 4, v1")
    a("v_mov_b32 v15, 0x%x" % OOB)
    a("s_lshl_b32 s34, s16, 3")
    a("s_add_u32 s34, s34, s18")
    a("s_mul_i32 s34, s34, %d" % (16 * 1152))
    a("s_mul_i32 s3, s18, %d" % (18 * 1024))
    a("v_lshrrev_b32 v4, 3, v1")
    a("v_lshrrev_b32 v5, 1, v4")
    a("v_and_b32 v6, 7, v1")
    a("v_xor_b32 v5, v5, v6")
    a("v_mul_u32_u24 v4, 1152, v4")
    a("v_lshl_add_u32 v8, v5, 4, v4")
    a("v_xor_b32 v9, 64, v8")
    a("s_waitcnt lgkmcnt(0)")
    a.srd(40, 20, S * D * 2)
    a.vm_reset()
    def xdma(i):
        return ["s_add_u32 m0, s3, %d" % (i * 1024), "s_add_u32 s30, s34, %d" % ((i // 9) * 9216 + (i % 9) * 128),
                ("vm", "buffer_load_dwordx4 v%d, s[40:43], s30 offen lds" % (8 + i // 9), "x")]
    a.srd(8, 36, D * F * 2)
    a("s_mul_i32 s35, s17, 576")
    CJ = XN + 40
    nocs = a.newlabel("nocs")
    a("s_cmp_lt_u32 s18, 6")
    a("s_cbranch_scc1 %s" % nocs)
    a("v_subrev_u32 v4, 384, v0")
    a("v_mul_u32_u24 v12, 1821, v4")
    a("v_lshrrev_b32 v12, 16, v12")
    a("v_mul_u32_u24 v13, 36, v12")
    a("v_sub_u32 v13, v4, v13")
    a("v_mul_u32_u24 v%d, 1152, v12" % (CJ + 48))
    a("v_lshl_add_u32 v%d, v13, 5, v%d" % (CJ + 48, CJ + 48))
    a("v_add_u32 v%d, %d, v%d" % (CJ + 48, AUG_LDS, CJ + 48))
    a("s_mov_b32 s29, %d" % (12 * 9216))
    a("v_mul_lo_u32 v12, v12, s29")
    a("v_lshl_add_u32 v12, v13, 4, v12")
    a("v_cmp_gt_u32 vcc, 108, v4")
    a("s_mul_i32 s28, s16, %d" % (36 * 9216))
    a("s_add_u32 s28, s28, s35")
    a("v_cndmask_b32 v12, v15, v12, vcc")
    for i in range(12):
        a("buffer_load_dwordx4 %s, v12, s[8:11], s28 offen" % v(CJ + 4 * i, 4))
        if i < 11: a("s_add_u32 s28, s28, 9216")
    a.label(nocs)
    NX0 = 6
    for i in range(NX0):
        for o in xdma(i): emit_op(a, o)
    a.srd(4, 54, WS_USED)
    a.srd(12, 38, F * 2)
    a.srd(44, 22, S * 289 * 2)
    a.srd(48, 24, S * 289 * 2)
    a("s_mov_b32 s58, s52"); a("s_mov_b32 s59, s53")
    a.srd(52, 56, F * D * 2)
    a.srd(20, 58, 256)
    lab = a.newlabel("nonce")
    a("s_or_b32 s28, s2, s18")
    a("s_cmp_eq_u32 s28, 0")
    a("s_cbranch_scc0 %s" % lab)
    a("s_memrealtime s[28:29]")
    a("s_waitcnt lgkmcnt(0)")
    a("s_lshl_b32 s28, s28, 3")
    a("s_or_b32 s28, s28, 8")
    a("v_mov_b32 v16, s28")
    a("v_mov_b32 v17, 0")
    a("s_mov_b64 exec, 1")
    a("buffer_store_dword v16, v17, s[20:23], 0 offen sc1")
    a("s_mov_b64 exec, -1")
    a.label(lab)
    a("s_lshl_b32 s101, s2, 4")
    a("s_add_u32 s101, s101, 0x%x" % FLAG_OFF)
    if int(os.environ.get("LIN", "0")):
        a("v_lshlrev_b32 v250, 7, v1")
        a("s_mul_i32 s28, s2, 20736")
        a("s_and_b32 s28, s28, 0xffffff80")
        a("s_cmp_ge_u32 s18, 3"); a("s_cselect_b32 s29, 3, 0"); a("s_sub_u32 s29, s18, s29"); a("s_lshl_b32 s29, s29, 13"); a("s_add_u32 s28, s28, s29")
        emit_op(a, ("cond", "s_cmp_lt_u32 s18, 3", ["buffer_load_dword v251, v250, s[8:11], s28 offen"], None))
        a("s_sub_u32 s29, s18, 3")
        emit_op(a, ("cond", "s_cmp_lt_u32 s29, 3", ["buffer_load_dword v251, v250, s[52:55], s28 offen"], None))
    if int(os.environ.get("CPF", "0")):
        a("s_getpc_b64 s[96:97]")
        a.label("L_k1_pc")
        a("s_lshr_b32 s28, s2, 3")
        a("s_lshl_b32 s28, s28, 3")
        a("s_add_u32 s28, s28, s18")
        a("s_lshl_b32 s28, s28, 7")
        for i in range(4):
            a("s_min_u32 s29, s28, L_k1_end - L_k1_pc")
            a("s_load_dword s%d, s[96:97], s29" % (92 + i))
            if i < 3: a("s_add_u32 s28, s28, 32768")
    a("v_bfe_u32 v13, v1, 2, 3")
    a("v_and_b32 v12, 3, v1")
    a("v_lshlrev_b32 v12, 4, v12")
    a("v_lshl_add_u32 v12, v14, 6, v12")
    a("v_mul_u32_u24 v2, 9216, v13")
    a("v_add_u32 v2, v2, v12")
    a("v_cmp_eq_u32 s[24:25], 1, v14")
    a("s_cmp_eq_u32 s26, 1")
    a("s_cbranch_scc1 L_k1_g1")
    ns0 = a.nstamp
    vm0 = list(a.vmq)
    FG = 16

    def group(g):
        a.nstamp = ns0
        a.vmq = list(vm0)
        a.lg_reset()
        a("s_mul_i32 s36, s17, 36")
        a("s_add_u32 s36, s36, %d" % (32 * g))
        a("v_add_u32 v%d, s36, v11" % T)
        a("v_lshrrev_b32 v%d, 1, v%d" % (T + 1, T))
        a("v_and_b32 v%d, 1, v%d" % (T + 2, T))
        a("v_mul_u32_u24 v%d, 144, v%d" % (T + 2, T + 2))
        a("v_cmp_eq_u32 vcc, 1, v%d" % T)
        a("v_mov_b32 v%d, 288" % (T + 3))
        a("s_nop 0")
        a("v_cndmask_b32 v%d, v%d, v%d, vcc" % (T + 1, T + 1, T + 3))
        a("v_cndmask_b32 v%d, v%d, 0, vcc" % (T + 2, T + 2))
        a("s_mul_i32 s37, s19, 144")
        a("v_lshlrev_b32 v%d, 3, v14" % (T + 3))
        a("v_add_u32 v%d, s37, v%d" % (T + 3, T + 3))
        a("v_mad_u32_u24 v%d, v%d, v%d, v%d" % (T + 3, T + 3, T + 1, T + 2))
        def mod576(x, t):
            a("v_cvt_f32_u32 v%d, v%d" % (t, x))
            a("v_mul_f32 v%d, 0x%x, v%d" % (t, f32bits(1.0 / 576), t))
            a("v_cvt_u32_f32 v%d, v%d" % (t, t))
            a("v_mul_u32_u24 v%d, 576, v%d" % (t, t))
            a("v_sub_u32 v%d, v%d, v%d" % (x, x, t))
        mod576(T + 3, T + 4)
        a("v_mul_u32_u24 v%d, 15, v%d" % (T + 5, T + 1))
        mod576(T + 5, T + 4)
        a("v_cvt_f32_u32 v%d, v%d" % (T + 6, T + 1))
        a("v_mul_f32 v%d, 0x%x, v%d" % (T + 6, f32bits(1.0 / 576), T + 6))
        a("v_cos_f32 v%d, v%d" % (T + 6, T + 6))
        a("v_mov_b32 v%d, 0" % (T + 7))
        a("v_add_f32 v%d, v%d, v%d" % (T + 6, T + 6, T + 6))
        a("v_mov_b32 v%d, 0x3f803f80" % (T + 2))
        rN, rJ, rJ15, rC = T + 3, T + 1, T + 5, T + 6
        for i in range(9):
            for j in range(2):
                tv = T + 8 + j
                a("v_cvt_f32_u32 v%d, v%d" % (tv, rN))
                a("v_add_u32 v%d, v%d, v%d" % (rN, rN, rJ if j == 0 else rJ15))
                a("v_mul_f32 v%d, 0x%x, v%d" % (tv, f32bits(1.0 / 576), tv))
                a("v_subrev_u32 v%d, 576, v%d" % (T + 4, rN))
                a("v_cos_f32 v%d, v%d" % (tv, tv))
                a("v_min_u32 v%d, v%d, v%d" % (rN, rN, T + 4))
            for j in range(2, 8):
                a("v_fma_f32 v%d, v%d, v%d, -v%d" % (T + 8 + j, rC, T + 7 + j, T + 6 + j))
                if j % 2 == 1:
                    k = (j - 3) // 2
                    a("v_cvt_pk_bf16_f32 v%d, v%d, v%d" % (FG + 4 * i + k, T + 8 + 2 * k, T + 8 + 2 * k + 1))
            a("v_cvt_pk_bf16_f32 v%d, v%d, v%d" % (FG + 4 * i + 3, T + 14, T + 15))
            for k in range(4):
                a("v_dot2c_f32_bf16 v%d, v%d, v%d" % (T + 7, FG + 4 * i + k, T + 2))
            for xi in range(NX0 + (12 * i) // 9, NX0 + (12 * (i + 1)) // 9):
                for o in xdma(xi): emit_op(a, o)
        a("s_lshl_b32 s36, s19, 8")
        a("s_add_u32 s36, s36, %d" % (CSF_LDS + 1024 * g))
        a("v_lshlrev_b32 v12, 2, v1")
        a("v_add_u32 v12, s36, v12")
        a("ds_write_b32 v12, v%d" % (T + 7))
        a("s_lshl_b32 s36, s18, 8")
        a("s_add_u32 s36, s36, s2")
        if g == 0:
            a("v_lshlrev_b32 v12, 2, v0")
            a("v_add_u32 v12, %d, v12" % ZERO_LDS)
            a("v_mov_b32 v13, 0")
            a("v_cmp_gt_u32 vcc, 32, v0")
            a("s_and_saveexec_b64 s[36:37], vcc")
            a("ds_write_b32 v12, v13")
            a("s_mov_b64 exec, s[36:37]")
        else:
            a("s_sub_u32 s36, s36, 1024")
            k0.job_tab(a, XN + 16, 36, 4, 37)
            nocs = a.newlabel("nocs2")
            a("s_cmp_lt_u32 s18, 6")
            a("s_cbranch_scc1 %s" % nocs)
            a("s_waitcnt vmcnt(%d)" % len(a.vmq))
            for k in range(4):
                a("v_lshlrev_b32 v%d, 16, v%d" % (T + 2 * k, CJ + k))
                a("v_and_b32 v%d, 0xffff0000, v%d" % (T + 2 * k + 1, CJ + k))
            for i in range(1, 12):
                for k in range(4):
                    a("v_lshlrev_b32 v%d, 16, v%d" % (T + 8 + 2 * k, CJ + 4 * i + k))
                    a("v_and_b32 v%d, 0xffff0000, v%d" % (T + 9 + 2 * k, CJ + 4 * i + k))
                for k in range(8):
                    a("v_add_f32 v%d, v%d, v%d" % (T + k, T + k, T + 8 + k))
            a("v_cmp_gt_u32 vcc, 492, v0")
            a("s_and_saveexec_b64 s[36:37], vcc")
            a("ds_write_b128 v%d, %s" % (CJ + 48, v(T, 4)))
            a("ds_write_b128 v%d, %s offset:16" % (CJ + 48, v(T + 4, 4)))
            a("s_mov_b64 exec, s[36:37]")
            a.label(nocs)
        for o in ["s_cmp_ge_u32 s18, 3", "s_cselect_b32 s38, 3, 0", "s_sub_u32 s38, s18, s38", "s_lshl_b32 s38, s38, 12", "s_add_u32 s38, s38, %d" % SCR,
                  "s_lshl_b32 s56, s18, 8", "s_add_u32 s56, s56, s2",
                  "s_mul_hi_u32 s32, s56, 0x%x" % ((2**32 + 8) // 9), "s_mul_i32 s28, s32, 9", "s_sub_u32 s28, s56, s28",
                  "s_mul_i32 s3, s32, %d" % (32 * 1152), "s_lshl_b32 s57, s28, 7", "s_add_u32 s3, s3, s57",
                  "v_lshrrev_b32 v4, 3, v1", "v_mul_u32_u24 v4, 1152, v4", "v_and_b32 v5, 7, v1",
                  "v_lshl_add_u32 v%d, v5, 4, v4" % (EX + 8),
                  "s_mul_i32 s32, s32, 36", "s_lshl_b32 s28, s28, 2", "s_add_u32 s32, s32, s28", "s_lshl_b32 s32, s32, 10",
                  "s_add_u32 s32, s32, 0x%x" % W2P_OFF,
                  "s_mov_b32 s100, s56",
                  "s_and_b32 s56, s2, 31", "s_lshr_b32 s57, s2, 5",
                  "s_lshr_b32 s28, s56, 4", "s_lshl_b32 s28, s28, 4", "s_and_b32 s36, s56, 15", "s_lshl_b32 s36, s36, 7", "s_add_u32 s28, s28, s36",
                  "s_mul_i32 s28, s28, 578", "s_mul_i32 s36, s57, 72", "s_add_u32 s28, s28, s36",
                  "v_mul_u32_u24 v4, 13108, v0", "v_lshrrev_b32 v4, 16, v4",
                  "v_mul_u32_u24 v5, 5, v4", "v_sub_u32 v5, v0, v5",
                  "v_lshrrev_b32 v6, 4, v4", "v_lshlrev_b32 v6, 5, v6", "v_and_b32 v7, 15, v4",
                  "v_add_u32 v6, v6, v7", "v_mul_u32_u24 v6, 578, v6",
                  "v_lshl_add_u32 v6, v5, 4, v6", "v_and_b32 v4, 1, v4", "v_lshlrev_b32 v4, 1, v4",
                  "v_sub_u32 v6, v6, v4", "v_add_u32 v%d, s28, v6" % (EX + 9),
                  "s_mul_i32 s57, s57, %d" % (36 * 8192), "s_lshl_b32 s56, s56, 8",
                  "s_add_u32 s56, s56, s57", "s_add_u32 s56, s56, 0x%x" % WT_OFF]:
            a(o)
        a("s_lshl_b32 s36, s19, 5")
        a("v_add_u32 v13, s36, v11")
        a("v_bfe_u32 v12, v13, 1, 3")
        a("v_lshrrev_b32 v10, 3, v13")
        a("v_mul_u32_u24 v10, 9216, v10")
        a("v_and_b32 v9, 7, v13")
        a("v_lshl_add_u32 v10, v9, 7, v10")
        for q in range(4):
            a("v_add_u32 v%d, %d, v14" % (4 + q, 2 * q))
            a("v_xor_b32 v%d, v%d, v12" % (4 + q, 4 + q))
            a("v_lshl_add_u32 v%d, v%d, 4, v10" % (4 + q, 4 + q))
        a("v_lshlrev_b32 v9, 5, v13")
        a("v_add_u32 v9, %d, v9" % STAT_LDS)
        a("v_lshl_add_u32 v8, v14, 3, v9")
        a.vm_wait("x", " lgkmcnt(0)")
        a("s_barrier")
        a.stamp()
        own = list(range(18 * g, 18 * g + 18)); oth = list(range(18 * (1 - g), 18 * (1 - g) + 18))
        def xrd(s_): a("ds_read_b128 %s, v%d offset:%d" % (v(XN + 4 * s_, 4), 4 + (s_ & 3), (s_ >> 2) * 1024))
        if g == 1:
            pub = a.newlabel("nopub")
            a("s_cmp_eq_u32 s18, 7")
            a("s_cbranch_scc0 %s" % pub)
            a("v_lshlrev_b32 v12, 5, v1")
            a("v_add_u32 v13, %d, v12" % AUG_LDS)
            for kk in range(3):
                for hh in range(2):
                    a("ds_read_b128 %s, v13 offset:%d" % (v(XA + 8 * kk + 4 * hh if kk < 2 else T + 4 * hh, 4), kk * 1152 + hh * 16))
            a("s_lshl_b32 s36, s17, 4")
            a("s_add_u32 s36, s36, s16")
            a("s_mul_i32 s36, s36, 1152")
            a("s_add_u32 s36, s36, 0x%x" % CS_OFF)
            a("v_cmp_gt_u32 vcc, 36, v1")
            a("s_nop 1")
            a("v_cndmask_b32 v12, v15, v12, vcc")
            a("s_waitcnt lgkmcnt(0)")
            for i in range(8):
                a("v_add_f32 v%d, v%d, v%d" % (XA + i, XA + i, XA + 8 + i))
                a("v_add_f32 v%d, v%d, v%d" % (XA + i, XA + i, T + i))
            a("buffer_store_dwordx4 %s, v12, s[4:7], s36 offen sc1" % v(XA, 4))
            a("buffer_store_dwordx4 %s, v12, s[4:7], s36 offen offset:16 sc1" % v(XA + 4, 4))
            a.label(pub)
        csmark = len(a.vmq)
        a("v_mov_b32 v253, 0")
        a.vm("buffer_load_dword v255, v253, s[20:23], 0 offen sc1", "nonce")
        if PF1:
            a("s_and_b32 s28, s35, 0xffffff80")
            a("s_and_b32 s29, s16, 3")
            a("s_mul_i32 s29, s29, %d" % (144 * 9216))
            a("s_add_u32 s28, s28, s29")
            for rd_ in range(2):
                a("v_add_u32 v12, %d, v0" % (512 * rd_))
                a("v_mul_u32_u24 v13, 13108, v12")
                a("v_lshrrev_b32 v13, 16, v13")
                a("v_mul_u32_u24 v250, 5, v13")
                a("v_sub_u32 v250, v12, v250")
                a("v_mul_u32_u24 v13, 9216, v13")
                a("v_lshl_add_u32 v13, v250, 7, v13")
                if rd_ == 0:
                    a.vm("buffer_load_dword v251, v13, s[8:11], s28 offen", "pf")
                else:
                    a("v_cmp_gt_u32 vcc, 720, v12")
                    a("s_nop 1")
                    a("v_cndmask_b32 v13, v15, v13, vcc")
                    if g == 0: a.vm("buffer_load_dword v252, v13, s[8:11], s28 offen", "pf")
        a("v_mul_u32_u24 v12, 1152, v11")
        emit_op(a, ("cond", "s_cmp_lt_u32 s100, 1296", ["buffer_load_dword v254, v12, s[52:55], s3 offen"], None))
        for s_ in own: xrd(s_)
        for i in range(8): a("v_mov_b32 v%d, 0" % (T + 8 + i))
        a("v_mov_b32 v%d, 0x3f803f80" % (T + 7))
        for n in range(18):
            xrd(oth[n])
            a("s_waitcnt lgkmcnt(15)")
            for kk in range(4):
                x = XN + 4 * own[n] + kk
                a("v_dot2c_f32_bf16 v%d, v%d, v%d" % (T + 8 + kk, x, T + 7))
                a("v_dot2c_f32_bf16 v%d, v%d, v%d" % (T + 12 + kk, x, x))
        a("s_nop 2")
        for A in (T + 8, T + 12):
            a("v_add_f32 v%d, v%d, v%d" % (A, A, A + 1))
            a("v_add_f32 v%d, v%d, v%d" % (A + 2, A + 2, A + 3))
        a("v_add_f32 v%d, v%d, v%d" % (T + 8, T + 8, T + 10))
        a("v_add_f32 v%d, v%d, v%d" % (T + 9, T + 12, T + 14))
        a("ds_write_b64 v8, %s offset:%d" % (v(T + 8, 2), 16 * g))
        a("v_bfe_u32 v13, v1, 2, 2")
        a("v_lshlrev_b32 v12, 6, v13")
        a("v_bfe_u32 v13, v1, 4, 1")
        a("v_lshl_add_u32 v12, v13, 5, v12")
        a("v_and_b32 v13, 3, v1")
        a("v_lshl_add_u32 v12, v13, 3, v12")
        a("v_lshl_add_u32 v12, v14, 10, v12")
        a("v_add_u32 v12, %d, v12" % (512 * g))
        a("s_lshr_b32 s36, s19, 1")
        a("s_mul_i32 s36, s36, %d" % UNIT)
        a("s_and_b32 s37, s19, 1")
        a("s_mul_i32 s37, s37, %d" % (9 * 2048))
        a("s_add_u32 s36, s36, s37")
        a("v_add_u32 v13, s36, v3")
        a("s_lshl_b32 s29, s27, 6")
        a("s_add_u32 s35, s35, s29")
        a("s_mul_i32 s34, s18, %d" % (8 * 9216))
        a("s_add_u32 s35, s35, s34")
        a("s_lshl_b32 s34, s18, 10")
        a("s_mul_i32 s29, s27, 640")
        a("s_sub_u32 s31, s35, s29")
        a("s_and_b32 s96, s16, %d" % (3 if ROT else 0))
        for pi in range(4):
            a("s_add_u32 s29, s96, %d" % pi)
            a("s_and_b32 s29, s29, 3")
            a("s_lshl_b32 s29, s29, 7")
            a("s_add_u32 s%d, s35, s29" % (92 + pi))
        a("s_waitcnt lgkmcnt(0)")
        a("s_barrier")
        a("ds_read_b128 %s, v9" % v(T, 4))
        a("ds_read_b128 %s, v9 offset:16" % v(T + 4, 4))
        for i in range(9):
            a("ds_write_b128 v13, %s offset:%d" % (v(FG + 4 * i, 4), i * 2048 + g * 1024))
        a("v_mov_b32 v4, v12")
        a("v_add_u32 v5, 49152, v12")
        a("v_add_u32 v6, 98304, v12")
        ndma = 5 if g == 0 else 4
        def dma_list(u):
            pi, kh = (u - 2) >> 1, u & 1
            out = []
            for n in range(ndma):
                off = (0 if pi < 4 else 512) + (kh * 288 + n * 64) * 9216
                out.append(("grp", ["s_add_u32 m0, s34, %d" % ((u % 4) * UNIT + n * 8192),
                                    "s_add_u32 s30, s%d, %d" % (92 + pi if pi < 4 else 31, off),
                                    ("vm", "buffer_load_dwordx4 v2, s[8:11], s30 offen lds", "u%d" % u)]))
            return out
        a("s_waitcnt lgkmcnt(9)")
        for o in ["v_add_f32 v%d, v%d, v%d" % (T, T, T + 2), "v_add_f32 v%d, v%d, v%d" % (T + 4, T + 4, T + 6),
                  "v_add_f32 v%d, v%d, v%d" % (T + 1, T + 1, T + 3), "v_add_f32 v%d, v%d, v%d" % (T + 5, T + 5, T + 7),
                  "v_add_f32 v%d, v%d, v%d" % (T, T, T + 4), "v_add_f32 v%d, v%d, v%d" % (T + 1, T + 1, T + 5),
                  "v_mul_f32 v%d, 0x%x, v%d" % (T, f32bits(1.0 / 576), T),
                  "v_mul_f32 v%d, 0x%x, v%d" % (T + 1, f32bits(1.0 / 576), T + 1),
                  "v_fma_f32 v%d, -v%d, v%d, v%d" % (T + 1, T, T, T + 1),
                  "v_max_f32 v%d, 0, v%d" % (T + 1, T + 1),
                  "v_cvt_pk_bf16_f32 v%d, -v%d, v%d" % (T + 2, T, T + 1),
                  "v_and_b32 v%d, 0xffff0000, v%d" % (T + 1, T + 2),
                  "v_add_f32 v%d, 0x%x, v%d" % (T + 1, f32bits(1e-5), T + 1),
                  "v_cvt_pk_bf16_f32 v%d, v%d, v%d" % (T + 1, T + 1, T + 1),
                  "v_lshlrev_b32 v%d, 16, v%d" % (T + 1, T + 1),
                  "v_sqrt_f32 v%d, v%d" % (T + 1, T + 1),
                  "v_and_b32 v%d, 0xffff, v%d" % (T + 2, T + 2),
                  "v_cvt_pk_bf16_f32 v%d, v%d, v%d" % (T + 1, T + 1, T + 1),
                  "v_lshl_or_b32 v%d, v%d, 16, v%d" % (XA, T + 2, T + 2),
                  "v_and_b32 v%d, 0xffff0000, v%d" % (T + 3, T + 1),
                  "v_or_b32 v%d, v%d, v%d" % (XA + 1, T + 3, T + 2),
                  "v_rcp_f32 v%d, v%d" % (T, T + 3),
                  "v_lshrrev_b32 v%d, 3, v9" % (T + 4),
                  "v_add_u32 v%d, %d, v%d" % (T + 4, ROWP_LDS - STAT_LDS // 8, T + 4),
                  "v_mul_f32 v%d, 0x%x, v%d" % (T + 1, f32bits(1.0 / 24), T),
                  "ds_write_b32 v%d, v%d" % (T + 4, T + 1),
                  "v_add_u32 v13, %d, v3" % (1024 * g)]:
            a(o)
        a("s_waitcnt lgkmcnt(0)")
        a("s_barrier")
        ok = a.newlabel("nok"); lp = a.newlabel("nlp")
        a.vm_wait("nonce")
        a("v_readfirstlane_b32 s59, v255")
        a("s_cmp_lg_u32 s59, 0")
        a("s_cbranch_scc1 %s" % ok)
        a("s_mov_b32 s28, 0")
        a.label(lp)
        a("s_sleep 8")
        a("buffer_load_dword v255, v253, s[20:23], 0 offen sc1")
        a("s_waitcnt vmcnt(0)")
        a("v_readfirstlane_b32 s59, v255")
        a("s_cmp_lg_u32 s59, 0")
        a("s_cbranch_scc1 %s" % ok)
        a("s_add_u32 s28, s28, 1")
        a("s_cmp_lt_u32 s28, 0x40000")
        a("s_cbranch_scc1 %s" % lp)
        a.label(ok)
        a.lg_reset()
        a.stamp()

        def prog_side():
            wl = []
            for arr in range(2):
                wl += ["s_add_u32 m0, s34, %d" % (WTS + arr * 5120), "s_nop 0",
                       "buffer_load_dwordx4 v%d, s[%d:%d], 0 offen lds" % (EX + 9, 44 + 4 * arr, 47 + 4 * arr)]
            ops = [("cond", "s_cmp_lt_u32 s18, 5", wl, "wt")]
            ops += dma_list(2)
            ops += ["v_mov_b32 v%d, 0" % (XA + 2), "v_mov_b32 v%d, 0" % (XA + 3), "v_mov_b32 v%d, 0" % (AUGR + 2), "v_mov_b32 v%d, 0" % (AUGR + 3),
                   "v_cndmask_b32 v%d, v%d, 0, s[24:25]" % (XA, XA), "v_cndmask_b32 v%d, v%d, 0, s[24:25]" % (XA + 1, XA + 1),
                   "v_mul_f32 v9, 0x%x, v%d" % (f32bits(C0), T),
                   "v_mul_f32 v10, v%d, v%d" % (T, T), "v_mul_f32 v10, v10, v%d" % T, "v_mul_f32 v10, 0x%x, v10" % f32bits(C0 * 0.044715)]
            ops += ["s_lshr_b32 s29, s33, 4", "v_bfe_u32 v%d, v1, 4, 1" % (T + 1), "v_add_u32 v%d, s29, v%d" % (T + 1, T + 1), "s_mov_b32 s29, %d" % (144 * 1024),
                    "v_mul_lo_u32 v7, v%d, s29" % (T + 1), "v_lshl_add_u32 v7, v14, 8, v7", "v_and_b32 v%d, 15, v1" % (T + 1), "v_lshl_add_u32 v7, v%d, 4, v7" % (T + 1),
                    "v_add_u32 v7, 0x%x, v7" % H_OFF,
                    "v_add_u32 v%d, %d, v11" % (T + 1, 32 * g), "s_mul_i32 s29, s17, 36", "v_add_u32 v12, s29, v%d" % (T + 1), "v_lshlrev_b32 v12, 12, v12",
                    "v_lshl_add_u32 v12, v14, 4, v12", "s_lshl_b32 s29, s33, 1", "s_add_u32 s29, s29, 0x%x" % X1_OFF, "v_add_u32 v12, s29, v12",
                    ("grp", ["v_cmp_gt_u32 vcc, 36, v%d" % (T + 1), "s_mul_i32 s39, s17, 9", "s_nop 0", "v_cndmask_b32 v12, v15, v12, vcc"])]
            ops += ["v_lshlrev_b32 v%d, 2, v11" % (T + 1), "v_add_u32 v%d, %d, v%d" % (T + 1, CSF_LDS + 1024 * g, T + 1)]
            for k in range(8): ops.append(("ds", "ds_read_b32 v%d, v%d offset:%d" % (T + 8 + k, T + 1, 128 * k), "csf"))
            ops += ["v_mov_b32 v11, v%d" % (T + 3),
                    "v_and_b32 v8, 31, v1", "v_lshlrev_b32 v8, 3, v8", "v_add_u32 v8, %d, v8" % AUG_LDS, "v_mov_b32 v%d, %d" % (T + 1, ZERO_LDS),
                    "v_cndmask_b32 v8, v8, v%d, s[24:25]" % (T + 1), ("lwait", "csf")]
            for k in range(1, 8): ops.append("v_add_f32 v%d, v%d, v%d" % (T + 8, T + 8, T + 8 + k))
            ops += split3(T + 8, T + 9, AUGR, AUGR + 1, "0")
            ops += ["v_cndmask_b32 v%d, v%d, 0, s[24:25]" % (AUGR, AUGR), "v_cndmask_b32 v%d, v%d, 0, s[24:25]" % (AUGR + 1, AUGR + 1)]
            return ops
        def prog_w2(rnd):
            cmpa = "s_cmp_eq_u32 s57, %d" % (rnd + 1)
            ld = []
            for n2 in range(2):
                wl = []
                for n in (2 * n2, 2 * n2 + 1):
                    wl += ["s_add_u32 m0, s38, %d" % (n * 1024), "s_add_u32 s28, s3, %d" % (n * 8 * 1152),
                           "buffer_load_dwordx4 v%d, s[52:55], s28 offen lds" % (EX + 8)]
                ld.append(("cond", cmpa, wl, "w2p"))
            fin = [("mwait", "w2p")]
            for hf in range(2):
                for nt in (2 * hf, 2 * hf + 1):
                    for h in range(2):
                        fin.append(("ds", "ds_read_b64_tr_b16 %s, v%d offset:%d" % (v(EX + 4 * (nt & 1) + 2 * h, 2), EX + 9, nt * 32 + h * 1024), "w2r"))
                fin.append(("lwait", "w2r"))
                fin.append(("cond", cmpa, ["buffer_store_dwordx4 %s, v3, s[4:7], s32 offen offset:%d%s" % (v(EX + 4 * (nt & 1), 4), nt * 1024, SC) for nt in (2 * hf, 2 * hf + 1)], "w2st"))
                fin.append("s_nop 0")
            return ld, fin
        def prog_w2addr():
            return ["v_lshrrev_b32 v%d, 5, v1" % (EX + 9), "v_lshlrev_b32 v%d, 4, v%d" % (EX + 9, EX + 9), "v_bfe_u32 v%d, v1, 4, 1" % (EX + 10),
                    "v_lshl_add_u32 v%d, v%d, 2, v%d" % (EX + 9, EX + 10, EX + 9), "v_bfe_u32 v%d, v1, 2, 2" % (EX + 10), "v_add_u32 v%d, v%d, v%d" % (EX + 9, EX + 9, EX + 10),
                    "v_lshlrev_b32 v%d, 7, v%d" % (EX + 9, EX + 9), "v_and_b32 v%d, 3, v1" % (EX + 10), "v_lshl_add_u32 v%d, v%d, 3, v%d" % (EX + 9, EX + 10, EX + 9),
                    "v_add_u32 v%d, s38, v%d" % (EX + 9, EX + 9),
                    ("grp", ["s_cmp_ge_u32 s18, 3", "s_cselect_b32 s57, 2, 1", "s_cmp_lt_u32 s100, 1296", "s_cselect_b32 s57, s57, 0"])]
        def prog_wt():
            ops = ["v_and_b32 v%d, 15, v0" % (T + 4), "v_mul_u32_u24 v%d, 80, v%d" % (T + 5, T + 4), "v_and_b32 v%d, 1, v0" % (T + 6),
                   "v_lshl_add_u32 v%d, v%d, 1, v%d" % (T + 5, T + 6, T + 5), "v_lshrrev_b32 v%d, 4, v0" % (T + 6),
                   "v_lshl_add_u32 v%d, v%d, 1, v%d" % (T + 5, T + 6, T + 5), "v_add_u32 v%d, %d, v%d" % (T + 5, WTS, T + 5),
                   "v_lshlrev_b32 v%d, 4, v%d" % (T + 4, T + 4), "v_lshl_add_u32 v%d, v%d, 13, v%d" % (T + 4, T + 6, T + 4),
                   ("grp", ["v_cmp_gt_u32 vcc, 80, v0", "v_add_u32 v%d, %d, v%d" % (T + 6, 32 * 8192, T + 4), "s_nop 0", "v_cndmask_b32 v%d, v15, v%d, vcc" % (T + 6, T + 6)])]
            for rd_ in range(2):
                for r in range(4):
                    ops.append(("ds", "ds_read_u16 v%d, v%d offset:%d" % (EX + 4 * rd_ + r, T + 5, r * 1280 + 64 * rd_), "wtr"))
                    ops.append(("ds", "ds_read_u16 v%d, v%d offset:%d" % (T + 8 + 4 * rd_ + r, T + 5, 5120 + r * 1280 + 64 * rd_), "wtr"))
            ops.append(("lwait", "wtr"))
            for e in range(8): ops.append("v_lshl_or_b32 v%d, v%d, 16, v%d" % (EX + e, T + 8 + e, EX + e))
            return ops
        def prog_st2():
            ops = [("vm", "buffer_store_dwordx4 %s, v%d, s[4:7], s56 offen%s" % (v(EX, 4), T + 4, SC), "side"),
                   ("cond", "s_cmp_lt_u32 s18, 2", ["buffer_store_dwordx4 %s, v%d, s[4:7], s56 offen%s" % (v(EX + 4, 4), T + 6, SC)], None)]
            return ops
        def cs_flag():
            pub = a.newlabel("noflag")
            a("s_cmp_eq_u32 s18, 7")
            a("s_cbranch_scc0 %s" % pub)
            a("v_mov_b32 v%d, s59" % (T + 2))
            a("v_mov_b32 v%d, 0" % (T + 1))
            a("s_waitcnt vmcnt(%d)" % min(63, len(a.vmq) - csmark))
            a("s_mov_b64 exec, 1")
            a("buffer_store_dword v%d, v%d, s[4:7], s101 offen sc1" % (T + 2, T + 1))
            a("s_mov_b64 exec, -1")
            a.label(pub)
        def cs_chk():
            a("v_cmp_eq_u32 vcc, s59, v254")
            a("s_nop 1")
            a("s_cmp_eq_u64 vcc, -1")
        def cs_fetch():
            skip = a.newlabel("csskip"); lp = a.newlabel("cspoll"); ok = a.newlabel("csok")
            a("s_cmp_lt_u32 s18, 5")
            a("s_cbranch_scc0 %s" % skip)
            a.vm_wait_mark("cspl")
            cs_chk()
            a("s_cbranch_scc1 %s" % ok)
            a("s_mov_b32 s33, 0")
            a.label(lp)
            a("s_sleep 4")
            a("buffer_load_dword v254, v253, s[4:7], 0 offen sc1")
            a("s_waitcnt vmcnt(0)")
            cs_chk()
            a("s_cbranch_scc1 %s" % ok)
            a("s_add_u32 s33, s33, 1")
            a("s_cmp_lt_u32 s33, 0x40000")
            a("s_cbranch_scc1 %s" % lp)
            a.label(ok)
            a("s_mul_i32 s28, s17, %d" % (16 * 1152))
            a("s_add_u32 s28, s28, 0x%x" % CS_OFF)
            a("s_mul_i32 s29, s17, 576")
            a("v_lshlrev_b32 v253, 3, v251")
            a("buffer_load_dwordx2 v[254:255], v253, s[12:15], s29 offen")
            for kk in range(4):
                a("buffer_load_dwordx4 %s, v252, s[4:7], s28 offen offset:%d sc1" % (v(T + 4 * kk, 4), kk * 1152))
            a.label(skip)
            a.vm_mark("csl")
        def prog_dft():
            acc = ACCS[0]
            ops = ["s_lshl_b32 s28, s19, 7", "v_lshlrev_b32 v%d, 4, v14" % T, "v_add_u32 v%d, s28, v%d" % (T, T), "v_add_u32 v%d, %d, v%d" % (T, ROWP_LDS, T)]
            RP = [EX, EX + 4, T + 4, T + 12]
            for i in range(4): ops.append(("ds", "ds_read_b128 %s, v%d offset:%d" % (v(RP[i], 4), T, 32 * i), "rowp"))
            ops.append(("lwait", "rowp"))
            for i in range(16):
                sc = RP[i >> 2] + (i & 3)
                ops.append("v_mul_f32 v%d, v%d, v%d" % (acc + i, acc + i, sc))
            for i in range(8): ops.append("v_cvt_pk_f16_f32 v%d, v%d, v%d" % (T + 8 + i, acc + 2 * i, acc + 2 * i + 1))
            ops += ["s_nop 0", "s_nop 0"]
            for i in (0, 2):
                ops += ["v_permlane32_swap_b32 v%d, v%d" % (T + 8 + 2 * i, T + 10 + 2 * i), "v_permlane32_swap_b32 v%d, v%d" % (T + 9 + 2 * i, T + 11 + 2 * i)]
            for i in range(2):
                ops.append(("vm", "buffer_store_dwordx4 %s, v12, s[4:7], 0 offen offset:%d%s" % (v(T + 8 + 4 * i, 4), 32 * i, SC), "side"))
            return ops
        def prog_cs0():
            return [("grp", ["s_and_b32 s28, s2, 0xc3", "v_and_b32 v253, 15, v1", "v_lshlrev_b32 v253, 2, v253",
                             "v_or_b32 v253, s28, v253", "v_lshlrev_b32 v253, 4, v253", "v_add_u32 v253, 0x%x, v253" % FLAG_OFF]),
                    ("cond", "s_cmp_lt_u32 s18, 5", ["buffer_load_dword v254, v253, s[4:7], 0 offen sc1"], "cspl"),
                    ("grp", ["s_lshl_b32 s28, s18, 4", "v_and_b32 v251, 15, v1", "v_add_u32 v251, s28, v251"]), "v_lshrrev_b32 v252, 4, v1", "v_mul_u32_u24 v252, %d, v252" % (4 * 1152),
                    "v_lshl_add_u32 v252, v251, 4, v252",
                    ("grp", ["v_cmp_gt_u32 vcc, 72, v251", "s_nop 1", "v_cndmask_b32 v252, v15, v252, vcc"])]
        def prog_cs2():
            ops = [("mwait", "csl")]
            for kk in range(1, 4):
                for i in range(4): ops.append("v_add_f32 v%d, v%d, v%d" % (T + i, T + i, T + 4 * kk + i))
            for sw in ("32", "16"):
                for i in range(4): ops.append("v_mov_b32 v%d, v%d" % (T + 4 + i, T + i))
                ops.append("s_nop 0")
                for i in range(4): ops.append("v_permlane%s_swap_b32 v%d, v%d" % (sw, T + i, T + 4 + i))
                for i in range(4): ops.append("v_add_f32 v%d, v%d, v%d" % (T + i, T + i, T + 4 + i))
            ops += ["v_lshlrev_b32 v%d, 16, v254" % (T + 4), "v_and_b32 v%d, 0xffff0000, v254" % (T + 5), "v_lshlrev_b32 v%d, 16, v255" % (T + 6), "v_and_b32 v%d, 0xffff0000, v255" % (T + 7)]
            for i in range(4): ops += split3(T + i, 253, T + 8 + 2 * i, T + 9 + 2 * i, "v%d" % (T + 4 + i))
            ops += ["v_lshlrev_b32 v253, 5, v251", "v_add_u32 v253, %d, v253" % AUG_LDS, "v_and_b32 v252, 48, v1", "v_lshl_add_u32 v252, v252, 3, v251",
                    ("grp", ["v_cmp_gt_u32 vcc, 72, v252", "s_and_saveexec_b64 s[28:29], vcc", ("ds", "ds_write_b128 v253, %s" % v(T + 8, 4), "augw"),
                             ("ds", "ds_write_b128 v253, %s offset:16" % v(T + 12, 4), "augw"), "s_mov_b64 exec, -1"])]
            return ops
        def aug_read(p):
            sk = 36 + (p & 1); pi = p - 1
            ops = ["s_add_u32 s%d, s96, %d" % (sk, pi), "s_and_b32 s%d, s%d, 3" % (sk, sk), "s_lshl_b32 s%d, s%d, 1" % (sk, sk),
                   "s_add_u32 s%d, s%d, s27" % (sk, sk), "s_add_u32 s%d, s%d, %d" % (sk, sk, g)]
            if pi == 4:
                ops += ["s_cmp_eq_u32 s27, 1", "s_cselect_b32 s%d, 0, 8" % sk]
            ops += ["s_lshl_b32 s28, s%d, 8" % sk, "v_mov_b32 v15, s28",
                    "v_cndmask_b32 v15, v15, 0, s[24:25]", "v_add_u32 v15, v15, v8",
                    ("ds", "ds_read_b64 %s, v15" % v(AUGR, 2), "aug")]
            return [("grp", ops)]
        def gelu_ops(p):
            ops = []
            for h2 in range(2):
                acc = ACCS[p & 1] + 8 * h2
                for i in range(8): ops.append("v_mul_f32 v%d, v%d, v%d" % (T + i, acc + i, acc + i))
                for i in range(8): ops.append("v_fma_f32 v%d, v%d, v10, v9" % (T + i, T + i))
                for i in range(8): ops.append("v_mul_f32 v%d, v%d, v%d" % (T + i, acc + i, T + i))
                for i in range(8): ops.append("v_exp_f32 v%d, v%d" % (T + i, T + i))
                for i in range(8): ops.append("v_fma_f32 v%d, v%d, v11, v11" % (T + i, T + i))
                for i in range(8): ops.append("v_rcp_f32 v%d, v%d" % (T + i, T + i))
                for i in range(8): ops.append("v_mul_f32 v%d, v%d, v%d" % (T + i, acc + i, T + i))
                for i in range(4): ops.append("v_cvt_pk_bf16_f32 v%d, v%d, v%d" % (T + 8 + 4 * h2 + i, T + 2 * i, T + 2 * i + 1))
                ops.append(("grp", ["s_add_u32 s28, s39, s%d" % (36 + (p & 1)), "s_lshl_b32 s28, s28, 10",
                                    ("vm", "buffer_store_dwordx4 %s, v7, s[4:7], s28 offen offset:%d%s" % (v(T + 8 + 4 * h2, 4), 512 * h2, SCH), "h%d" % p)]))
            return ops

        ntile = 6 if g == 0 else 5
        nsteps = 36 * ntile
        LA = NFR - 1
        def rd(i):
            phi, st = divmod(i, 18)
            b = FR + 4 * (i % NFR)
            if phi < 2:
                if i == 18: a("v_add_u32 v13, %d, v13" % UNIT)
                a.ds("ds_read_b128 %s, v13 offset:%d" % (v(b, 4), st * 2048), "f%d" % i)
            else:
                if i == 180:
                    a("s_lshl_b32 s29, s27, 9")
                    for r_ in (4, 5, 6): a("v_add_u32 v%d, s29, v%d" % (r_, r_))
                for h in range(2):
                    addr = (phi % 4) * UNIT + st * 2048 + 256 * h
                    k = addr // 49152
                    a.ds("ds_read_b64_tr_b16 %s, v%d offset:%d" % (v(b + 2 * h, 2), 4 + k, addr - k * 49152), "f%d" % i)
        pri = []
        def barrier(phi):
            if phi + 1 >= 2: a.vm_wait("u%d" % (phi + 1))
            if 1 <= phi <= 2 and not hooks: a.stamp()
            if phi == 1: a.vm_wait_mark("wt")
            if phi == 10 and hooks: a.vm_wait("h3")
            a.lg_wait("augw"); a.lg_wait("xtw")
            a("s_barrier")
            if hooks: hooks.after_barrier(a, g, phi)
            if phi in (3, 8): a.stamp()
            u = phi + 3
            if u is not None and u <= 11: pri.extend(dma_list(u))
        for i in range(LA): rd(i)
        if g == 1: cs_flag()
        for tau in range(ntile):
            if tau == 0:
                wt = prog_wt()
                progs = [(0, 24, prog_side()), (26, 29, wt[:10]), (31, 35, wt[10:] + prog_st2())]
            elif tau == 1:
                ld, fin = prog_w2(0)
                progs = [(0, 3, prog_w2addr()), (4, 11, prog_dft()), (13, 14, ld), (8, 11, prog_cs0()), (25, 25, [("call", cs_fetch)]), (29, 34, fin)]
            elif tau == 2:
                ld, fin = prog_w2(1)
                late_aug = aug_read(1) + [("lwait", "aug"), "v_mfma_f32_32x32x16_bf16 %s, %s, %s, %s" % (v(ACCS[1], 16), v(AUGR, 4), v(XA, 4), v(ACCS[1], 16))]
                progs = [(3, 11, prog_cs2()), (13, 14, late_aug), (13, 14, ld), (17, 35, gelu_ops(1)), (26, 30, fin), (32, 33, aug_read(2))]
            else: progs = [(3, 31, gelu_ops(tau - 1)), (32, 33, aug_read(tau))]
            sched = [[] for _ in range(36)]
            for s0, s1, ops in progs:
                n = s1 - s0 + 1
                for k, o in enumerate(ops):
                    sched[s0 + (k * n) // len(ops)].append(o)
            acc = ACCS[tau & 1]
            for st in range(36):
                i = 36 * tau + st
                j = i + LA
                if j < nsteps:
                    if j % 18 == 0:
                        barrier(j // 18 - 1)
                    rd(j)
                if pri and (st % 2 == 0 or len(pri) > ndma): emit_op(a, pri.pop(0))
                a.lg_wait("f%d" % i)
                b = FR + 4 * (i % NFR)
                x = XN + 4 * st
                c = "0" if st == 0 else v(acc, 16)
                if tau == 0:
                    a("v_mfma_f32_32x32x16_bf16 %s, %s, %s, %s" % (v(acc, 16), v(x, 4), v(b, 4), c))
                else:
                    a("v_mfma_f32_32x32x16_bf16 %s, %s, %s, %s" % (v(acc, 16), v(b, 4), v(x, 4), c))
                for o in sched[st]: emit_op(a, o)
            if tau == 0:
                a("v_mfma_f32_32x32x16_bf16 %s, %s, %s, %s" % (v(acc, 16), v(XA, 4), v(AUGR, 4), v(acc, 16)))
            elif tau != 1:
                a.lg_wait("aug")
                a("v_mfma_f32_32x32x16_bf16 %s, %s, %s, %s" % (v(acc, 16), v(AUGR, 4), v(XA, 4), v(acc, 16)))
        a("s_nop 7"); a("s_nop 4")
        last = gelu_ops(ntile - 1)
        if g == 1 and hooks:
            hooks.g1_end(a, last, barrier)
        elif g == 1:
            barrier(9)
            assert not pri
            for k, o in enumerate(last):
                if k == len(last) // 2: barrier(10)
                emit_op(a, o)
        else:
            for o in last: emit_op(a, o)
        if hooks:
            if g == 0: hooks.tail(a, g)
        elif g == 1:
            a("s_lshl_b32 s36, s19, 8")
            a("s_add_u32 s36, s36, s2")
            k0.job_finv(a, XN, 36, 4, 37)
        a.stamp()
        a.stamp(True)
        a.stamp_flush(4, STAMP_OFF, 18, T)
        a("s_endpgm")

    group(0)
    a.label("L_k1_g1")
    group(1)
    a.label("L_k1_end")
    a("s_endpgm")
    return (name, 256, 512, 163840 if hooks else K1_LDS, NV)
```

```python
import os
from asmlib import *
from layout import *
from k1 import ids
import k0

UNIT = 36864
SP = 4 * UNIT
ROWP_LDS = SP
AUG_LDS = SP + 512
ZERO_LDS = AUG_LDS + 3456
FLG_LDS = ZERO_LDS + 64
STAT_LDS = SP + 4096
CSF_LDS = SP + 14336
K1_LDS = SP + 16384
WTS = STAT_LDS
SCR = STAT_LDS

XN = 88
ACCS = [16, 32]
FR = 48
NFR = 6
T = 72
XA = 232
AUGR = 236
EX = 240
NV = 256
OOB = 0x7ff00000
SC = os.environ.get("K1_SC", " sc1")
PF1 = int(os.environ.get("PF1", "0"))
ROT = int(os.environ.get("ROT", "1"))
SCH = os.environ.get("SCH", SC)
WS_PHI = [int(x) for x in os.environ.get("WSYNC", "5,6,7,8").split(",") if x]
SIGD = int(os.environ.get("SIGD", "5"))
C0 = -2.0 * 1.4426950408889634 * 0.7978845608028654

def emit_op(a, o):
    if isinstance(o, str): a(o)
    elif o[0] == "vm": a.vm(o[1], o[2])
    elif o[0] == "ds": a.ds(o[1], o[2])
    elif o[0] == "vwait": a.vm_wait(o[1])
    elif o[0] == "lwait": a.lg_wait(o[1])
    elif o[0] == "call": o[1]()
    elif o[0] == "cond":
        lab = a.newlabel("skip")
        a(o[1]); a("s_cbranch_scc0 %s" % lab)
        for x in o[2]: a(x)
        a.label(lab)
        if o[3]: a.vm_mark(o[3])
    elif o[0] == "mwait": a.vm_wait_mark(o[1])
    elif o[0] == "grp":
        for x in o[1]: emit_op(a, x)
    else: raise ValueError(o)

def split3(c, t, w0, w1, last):
    return ["v_cvt_pk_bf16_f32 v%d, v%d, v%d" % (t, c, c),
            "v_lshlrev_b32 v%d, 16, v%d" % (t, t),
            "v_sub_f32 v%d, v%d, v%d" % (t, c, t),
            "v_cvt_pk_bf16_f32 v%d, v%d, v%d" % (w0, c, t),
            "v_and_b32 v%d, 0xffff0000, v%d" % (c, w0),
            "v_sub_f32 v%d, v%d, v%d" % (t, t, c),
            "v_cvt_pk_bf16_f32 v%d, v%d, %s" % (w1, t, last)]

def gen_k1(a, hooks=None, name="k1_kernel"):
    a.kernel_begin(name)
    a("s_cmp_ge_u32 s2, 256")
    a("s_cbranch_scc1 L_k1_end")
    a.lg_reset()
    a.stamp()
    a.stamp(True)
    a("s_load_dwordx4 s[20:23], s[0:1], %d" % KA_X)
    a("s_load_dwordx2 s[24:25], s[0:1], %d" % KA_WI)
    a("s_load_dwordx4 s[36:39], s[0:1], %d" % KA_W1)
    a("s_load_dwordx2 s[56:57], s[0:1], %d" % KA_W2)
    a("s_load_dwordx4 s[52:55], s[0:1], %d" % KA_DBG)
    ids(a)
    a("s_lshl_b32 s28, s16, 7")
    a("s_lshl_b32 s29, s19, 5")
    a("s_add_u32 s33, s28, s29")
    a("v_and_b32 v11, 31, v1")
    a("v_lshrrev_b32 v14, 5, v1")
    a("v_lshlrev_b32 v3, 4, v1")
    a("v_mov_b32 v15, 0x%x" % OOB)
    a("s_lshl_b32 s34, s16, 3")
    a("s_add_u32 s34, s34, s18")
    a("s_mul_i32 s34, s34, %d" % (16 * 1152))
    a("s_mul_i32 s3, s18, %d" % (18 * 1024))
    a("v_lshrrev_b32 v4, 3, v1")
    a("v_lshrrev_b32 v5, 1, v4")
    a("v_and_b32 v6, 7, v1")
    a("v_xor_b32 v5, v5, v6")
    a("v_mul_u32_u24 v4, 1152, v4")
    a("v_lshl_add_u32 v8, v5, 4, v4")
    a("v_xor_b32 v9, 64, v8")
    a("s_waitcnt lgkmcnt(0)")
    a.srd(40, 20, S * D * 2)
    a.vm_reset()
    def xdma(i):
        return ["s_add_u32 m0, s3, %d" % (i * 1024), "s_add_u32 s30, s34, %d" % ((i // 9) * 9216 + (i % 9) * 128),
                ("vm", "buffer_load_dwordx4 v%d, s[40:43], s30 offen lds" % (8 + i // 9), "x")]
    a.srd(8, 36, D * F * 2)
    a("s_mul_i32 s35, s17, 576")
    CJ = XN + 40
    nocs = a.newlabel("nocs")
    a("s_cmp_lt_u32 s18, 6")
    a("s_cbranch_scc1 %s" % nocs)
    a("v_subrev_u32 v4, 384, v0")
    a("v_mul_u32_u24 v12, 1821, v4")
    a("v_lshrrev_b32 v12, 16, v12")
    a("v_mul_u32_u24 v13, 36, v12")
    a("v_sub_u32 v13, v4, v13")
    a("v_mul_u32_u24 v%d, 1152, v12" % (CJ + 48))
    a("v_lshl_add_u32 v%d, v13, 5, v%d" % (CJ + 48, CJ + 48))
    a("v_add_u32 v%d, %d, v%d" % (CJ + 48, AUG_LDS, CJ + 48))
    a("s_mov_b32 s29, %d" % (12 * 9216))
    a("v_mul_lo_u32 v12, v12, s29")
    a("v_lshl_add_u32 v12, v13, 4, v12")
    a("v_cmp_gt_u32 vcc, 108, v4")
    a("s_mul_i32 s28, s16, %d" % (36 * 9216))
    a("s_add_u32 s28, s28, s35")
    a("v_cndmask_b32 v12, v15, v12, vcc")
    for i in range(12):
        a("buffer_load_dwordx4 %s, v12, s[8:11], s28 offen" % v(CJ + 4 * i, 4))
        if i < 11: a("s_add_u32 s28, s28, 9216")
    a.label(nocs)
    NX0 = 6
    for i in range(NX0):
        for o in xdma(i): emit_op(a, o)
    a.srd(4, 54, WS_USED)
    a.srd(12, 38, F * 2)
    a.srd(44, 22, S * 289 * 2)
    a.srd(48, 24, S * 289 * 2)
    a("s_mov_b32 s58, s52"); a("s_mov_b32 s59, s53")
    a.srd(52, 56, F * D * 2)
    a.srd(20, 58, 256)
    lab = a.newlabel("nonce")
    a("s_or_b32 s28, s2, s18")
    a("s_cmp_eq_u32 s28, 0")
    a("s_cbranch_scc0 %s" % lab)
    a("s_memrealtime s[28:29]")
    a("s_waitcnt lgkmcnt(0)")
    a("s_lshl_b32 s28, s28, 3")
    a("s_or_b32 s28, s28, 8")
    a("v_mov_b32 v16, s28")
    a("v_mov_b32 v17, 0")
    a("s_mov_b64 exec, 1")
    a("buffer_store_dword v16, v17, s[20:23], 0 offen sc1")
    a("s_mov_b64 exec, -1")
    a.label(lab)
    a("s_lshl_b32 s101, s2, 4")
    a("s_add_u32 s101, s101, 0x%x" % FLAG_OFF)
    if int(os.environ.get("LIN", "0")):
        a("v_lshlrev_b32 v250, 7, v1")
        a("s_mul_i32 s28, s2, 20736")
        a("s_and_b32 s28, s28, 0xffffff80")
        a("s_cmp_ge_u32 s18, 3"); a("s_cselect_b32 s29, 3, 0"); a("s_sub_u32 s29, s18, s29"); a("s_lshl_b32 s29, s29, 13"); a("s_add_u32 s28, s28, s29")
        emit_op(a, ("cond", "s_cmp_lt_u32 s18, 3", ["buffer_load_dword v251, v250, s[8:11], s28 offen"], None))
        a("s_sub_u32 s29, s18, 3")
        emit_op(a, ("cond", "s_cmp_lt_u32 s29, 3", ["buffer_load_dword v251, v250, s[52:55], s28 offen"], None))
    if int(os.environ.get("CPF", "0")):
        a("s_getpc_b64 s[96:97]")
        a.label("L_k1_pc")
        a("s_lshr_b32 s28, s2, 3")
        a("s_lshl_b32 s28, s28, 3")
        a("s_add_u32 s28, s28, s18")
        a("s_lshl_b32 s28, s28, 7")
        for i in range(4):
            a("s_min_u32 s29, s28, L_k1_end - L_k1_pc")
            a("s_load_dword s%d, s[96:97], s29" % (92 + i))
            if i < 3: a("s_add_u32 s28, s28, 32768")
    a("v_bfe_u32 v13, v1, 2, 3")
    a("v_and_b32 v12, 3, v1")
    a("v_lshlrev_b32 v12, 4, v12")
    a("v_lshl_add_u32 v12, v14, 6, v12")
    a("v_mul_u32_u24 v2, 9216, v13")
    a("v_add_u32 v2, v2, v12")
    a("v_cmp_eq_u32 s[24:25], 1, v14")
    a("s_cmp_eq_u32 s26, 1")
    a("s_cbranch_scc1 L_k1_g1")
    ns0 = a.nstamp
    vm0 = list(a.vmq)
    FG = 16

    def group(g):
        a.nstamp = ns0
        a.vmq = list(vm0)
        a.lg_reset()
        a("s_mul_i32 s36, s17, 36")
        a("s_add_u32 s36, s36, %d" % (32 * g))
        a("v_add_u32 v%d, s36, v11" % T)
        a("v_lshrrev_b32 v%d, 1, v%d" % (T + 1, T))
        a("v_and_b32 v%d, 1, v%d" % (T + 2, T))
        a("v_mul_u32_u24 v%d, 144, v%d" % (T + 2, T + 2))
        a("v_cmp_eq_u32 vcc, 1, v%d" % T)
        a("v_mov_b32 v%d, 288" % (T + 3))
        a("s_nop 0")
        a("v_cndmask_b32 v%d, v%d, v%d, vcc" % (T + 1, T + 1, T + 3))
        a("v_cndmask_b32 v%d, v%d, 0, vcc" % (T + 2, T + 2))
        a("s_mul_i32 s37, s19, 144")
        a("v_lshlrev_b32 v%d, 3, v14" % (T + 3))
        a("v_add_u32 v%d, s37, v%d" % (T + 3, T + 3))
        a("v_mad_u32_u24 v%d, v%d, v%d, v%d" % (T + 3, T + 3, T + 1, T + 2))
        def mod576(x, t):
            a("v_cvt_f32_u32 v%d, v%d" % (t, x))
            a("v_mul_f32 v%d, 0x%x, v%d" % (t, f32bits(1.0 / 576), t))
            a("v_cvt_u32_f32 v%d, v%d" % (t, t))
            a("v_mul_u32_u24 v%d, 576, v%d" % (t, t))
            a("v_sub_u32 v%d, v%d, v%d" % (x, x, t))
        mod576(T + 3, T + 4)
        a("v_mul_u32_u24 v%d, 15, v%d" % (T + 5, T + 1))
        mod576(T + 5, T + 4)
        a("v_cvt_f32_u32 v%d, v%d" % (T + 6, T + 1))
        a("v_mul_f32 v%d, 0x%x, v%d" % (T + 6, f32bits(1.0 / 576), T + 6))
        a("v_cos_f32 v%d, v%d" % (T + 6, T + 6))
        a("v_mov_b32 v%d, 0" % (T + 7))
        a("v_add_f32 v%d, v%d, v%d" % (T + 6, T + 6, T + 6))
        a("v_mov_b32 v%d, 0x3f803f80" % (T + 2))
        rN, rJ, rJ15, rC = T + 3, T + 1, T + 5, T + 6
        for i in range(9):
            for j in range(2):
                tv = T + 8 + j
                a("v_cvt_f32_u32 v%d, v%d" % (tv, rN))
                a("v_add_u32 v%d, v%d, v%d" % (rN, rN, rJ if j == 0 else rJ15))
                a("v_mul_f32 v%d, 0x%x, v%d" % (tv, f32bits(1.0 / 576), tv))
                a("v_subrev_u32 v%d, 576, v%d" % (T + 4, rN))
                a("v_cos_f32 v%d, v%d" % (tv, tv))
                a("v_min_u32 v%d, v%d, v%d" % (rN, rN, T + 4))
            for j in range(2, 8):
                a("v_fma_f32 v%d, v%d, v%d, -v%d" % (T + 8 + j, rC, T + 7 + j, T + 6 + j))
                if j % 2 == 1:
                    k = (j - 3) // 2
                    a("v_cvt_pk_bf16_f32 v%d, v%d, v%d" % (FG + 4 * i + k, T + 8 + 2 * k, T + 8 + 2 * k + 1))
            a("v_cvt_pk_bf16_f32 v%d, v%d, v%d" % (FG + 4 * i + 3, T + 14, T + 15))
            for k in range(4):
                a("v_dot2c_f32_bf16 v%d, v%d, v%d" % (T + 7, FG + 4 * i + k, T + 2))
            for xi in range(NX0 + (12 * i) // 9, NX0 + (12 * (i + 1)) // 9):
                for o in xdma(xi): emit_op(a, o)
        a("s_lshl_b32 s36, s19, 8")
        a("s_add_u32 s36, s36, %d" % (CSF_LDS + 1024 * g))
        a("v_lshlrev_b32 v12, 2, v1")
        a("v_add_u32 v12, s36, v12")
        a("ds_write_b32 v12, v%d" % (T + 7))
        a("s_lshl_b32 s36, s18, 8")
        a("s_add_u32 s36, s36, s2")
        if g == 0:
            a("v_lshlrev_b32 v12, 2, v0")
            a("v_add_u32 v12, %d, v12" % ZERO_LDS)
            a("v_mov_b32 v13, 0")
            a("v_cmp_gt_u32 vcc, 32, v0")
            a("s_and_saveexec_b64 s[36:37], vcc")
            a("ds_write_b32 v12, v13")
            a("s_mov_b64 exec, s[36:37]")
        else:
            a("s_sub_u32 s36, s36, 1024")
            k0.job_tab(a, XN + 16, 36, 4, 37)
            nocs = a.newlabel("nocs2")
            a("s_cmp_lt_u32 s18, 6")
            a("s_cbranch_scc1 %s" % nocs)
            a("s_waitcnt vmcnt(%d)" % len(a.vmq))
            for k in range(4):
                a("v_lshlrev_b32 v%d, 16, v%d" % (T + 2 * k, CJ + k))
                a("v_and_b32 v%d, 0xffff0000, v%d" % (T + 2 * k + 1, CJ + k))
            for i in range(1, 12):
                for k in range(4):
                    a("v_lshlrev_b32 v%d, 16, v%d" % (T + 8 + 2 * k, CJ + 4 * i + k))
                    a("v_and_b32 v%d, 0xffff0000, v%d" % (T + 9 + 2 * k, CJ + 4 * i + k))
                for k in range(8):
                    a("v_add_f32 v%d, v%d, v%d" % (T + k, T + k, T + 8 + k))
            a("v_cmp_gt_u32 vcc, 492, v0")
            a("s_and_saveexec_b64 s[36:37], vcc")
            a("ds_write_b128 v%d, %s" % (CJ + 48, v(T, 4)))
            a("ds_write_b128 v%d, %s offset:16" % (CJ + 48, v(T + 4, 4)))
            a("s_mov_b64 exec, s[36:37]")
            a.label(nocs)
        for o in ["s_cmp_ge_u32 s18, 3", "s_cselect_b32 s38, 3, 0", "s_sub_u32 s38, s18, s38", "s_lshl_b32 s38, s38, 12", "s_add_u32 s38, s38, %d" % SCR,
                  "s_lshl_b32 s56, s18, 8", "s_add_u32 s56, s56, s2",
                  "s_mul_hi_u32 s32, s56, 0x%x" % ((2**32 + 8) // 9), "s_mul_i32 s28, s32, 9", "s_sub_u32 s28, s56, s28",
                  "s_mul_i32 s3, s32, %d" % (32 * 1152), "s_lshl_b32 s57, s28, 7", "s_add_u32 s3, s3, s57",
                  "v_lshrrev_b32 v4, 3, v1", "v_mul_u32_u24 v4, 1152, v4", "v_and_b32 v5, 7, v1",
                  "v_lshl_add_u32 v%d, v5, 4, v4" % (EX + 8),
                  "s_mul_i32 s32, s32, 36", "s_lshl_b32 s28, s28, 2", "s_add_u32 s32, s32, s28", "s_lshl_b32 s32, s32, 10",
                  "s_add_u32 s32, s32, 0x%x" % W2P_OFF,
                  "s_mov_b32 s100, s56",
                  "s_and_b32 s56, s2, 31", "s_lshr_b32 s57, s2, 5",
                  "s_lshr_b32 s28, s56, 4", "s_lshl_b32 s28, s28, 4", "s_and_b32 s36, s56, 15", "s_lshl_b32 s36, s36, 7", "s_add_u32 s28, s28, s36",
                  "s_mul_i32 s28, s28, 578", "s_mul_i32 s36, s57, 72", "s_add_u32 s28, s28, s36",
                  "v_mul_u32_u24 v4, 13108, v0", "v_lshrrev_b32 v4, 16, v4",
                  "v_mul_u32_u24 v5, 5, v4", "v_sub_u32 v5, v0, v5",
                  "v_lshrrev_b32 v6, 4, v4", "v_lshlrev_b32 v6, 5, v6", "v_and_b32 v7, 15, v4",
                  "v_add_u32 v6, v6, v7", "v_mul_u32_u24 v6, 578, v6",
                  "v_lshl_add_u32 v6, v5, 4, v6", "v_and_b32 v4, 1, v4", "v_lshlrev_b32 v4, 1, v4",
                  "v_sub_u32 v6, v6, v4", "v_add_u32 v%d, s28, v6" % (EX + 9),
                  "s_mul_i32 s57, s57, %d" % (36 * 8192), "s_lshl_b32 s56, s56, 8",
                  "s_add_u32 s56, s56, s57", "s_add_u32 s56, s56, 0x%x" % WT_OFF]:
            a(o)
        a("s_lshl_b32 s36, s19, 5")
        a("v_add_u32 v13, s36, v11")
        a("v_bfe_u32 v12, v13, 1, 3")
        a("v_lshrrev_b32 v10, 3, v13")
        a("v_mul_u32_u24 v10, 9216, v10")
        a("v_and_b32 v9, 7, v13")
        a("v_lshl_add_u32 v10, v9, 7, v10")
        for q in range(4):
            a("v_add_u32 v%d, %d, v14" % (4 + q, 2 * q))
            a("v_xor_b32 v%d, v%d, v12" % (4 + q, 4 + q))
            a("v_lshl_add_u32 v%d, v%d, 4, v10" % (4 + q, 4 + q))
        a("v_lshlrev_b32 v9, 5, v13")
        a("v_add_u32 v9, %d, v9" % STAT_LDS)
        a("v_lshl_add_u32 v8, v14, 3, v9")
        a.vm_wait("x", " lgkmcnt(0)")
        a("s_barrier")
        a.stamp()
        own = list(range(18 * g, 18 * g + 18)); oth = list(range(18 * (1 - g), 18 * (1 - g) + 18))
        def xrd(s_): a("ds_read_b128 %s, v%d offset:%d" % (v(XN + 4 * s_, 4), 4 + (s_ & 3), (s_ >> 2) * 1024))
        if g == 1:
            pub = a.newlabel("nopub")
            a("s_cmp_eq_u32 s18, 7")
            a("s_cbranch_scc0 %s" % pub)
            a("v_lshlrev_b32 v12, 5, v1")
            a("v_add_u32 v13, %d, v12" % AUG_LDS)
            for kk in range(3):
                for hh in range(2):
                    a("ds_read_b128 %s, v13 offset:%d" % (v(XA + 8 * kk + 4 * hh if kk < 2 else T + 4 * hh, 4), kk * 1152 + hh * 16))
            a("s_lshl_b32 s36, s17, 4")
            a("s_add_u32 s36, s36, s16")
            a("s_mul_i32 s36, s36, 1152")
            a("s_add_u32 s36, s36, 0x%x" % CS_OFF)
            a("v_cmp_gt_u32 vcc, 36, v1")
            a("s_nop 1")
            a("v_cndmask_b32 v12, v15, v12, vcc")
            a("s_waitcnt lgkmcnt(0)")
            for i in range(8):
                a("v_add_f32 v%d, v%d, v%d" % (XA + i, XA + i, XA + 8 + i))
                a("v_add_f32 v%d, v%d, v%d" % (XA + i, XA + i, T + i))
            a("buffer_store_dwordx4 %s, v12, s[4:7], s36 offen sc1" % v(XA, 4))
            a("buffer_store_dwordx4 %s, v12, s[4:7], s36 offen offset:16 sc1" % v(XA + 4, 4))
            a.label(pub)
        csmark = len(a.vmq)
        a("v_mov_b32 v253, 0")
        a.vm("buffer_load_dword v255, v253, s[20:23], 0 offen sc1", "nonce")
        if PF1:
            a("s_and_b32 s28, s35, 0xffffff80")
            a("s_and_b32 s29, s16, 3")
            a("s_mul_i32 s29, s29, %d" % (144 * 9216))
            a("s_add_u32 s28, s28, s29")
            for rd_ in range(2):
                a("v_add_u32 v12, %d, v0" % (512 * rd_))
                a("v_mul_u32_u24 v13, 13108, v12")
                a("v_lshrrev_b32 v13, 16, v13")
                a("v_mul_u32_u24 v250, 5, v13")
                a("v_sub_u32 v250, v12, v250")
                a("v_mul_u32_u24 v13, 9216, v13")
                a("v_lshl_add_u32 v13, v250, 7, v13")
                if rd_ == 0:
                    a.vm("buffer_load_dword v251, v13, s[8:11], s28 offen", "pf")
                else:
                    a("v_cmp_gt_u32 vcc, 720, v12")
                    a("s_nop 1")
                    a("v_cndmask_b32 v13, v15, v13, vcc")
                    if g == 0: a.vm("buffer_load_dword v252, v13, s[8:11], s28 offen", "pf")
        a("v_mul_u32_u24 v12, 1152, v11")
        emit_op(a, ("cond", "s_cmp_lt_u32 s100, 1296", ["buffer_load_dword v254, v12, s[52:55], s3 offen"], None))
        for s_ in own: xrd(s_)
        for i in range(8): a("v_mov_b32 v%d, 0" % (T + 8 + i))
        a("v_mov_b32 v%d, 0x3f803f80" % (T + 7))
        for n in range(18):
            xrd(oth[n])
            a("s_waitcnt lgkmcnt(15)")
            for kk in range(4):
                x = XN + 4 * own[n] + kk
                a("v_dot2c_f32_bf16 v%d, v%d, v%d" % (T + 8 + kk, x, T + 7))
                a("v_dot2c_f32_bf16 v%d, v%d, v%d" % (T + 12 + kk, x, x))
        a("s_nop 2")
        for A in (T + 8, T + 12):
            a("v_add_f32 v%d, v%d, v%d" % (A, A, A + 1))
            a("v_add_f32 v%d, v%d, v%d" % (A + 2, A + 2, A + 3))
        a("v_add_f32 v%d, v%d, v%d" % (T + 8, T + 8, T + 10))
        a("v_add_f32 v%d, v%d, v%d" % (T + 9, T + 12, T + 14))
        a("ds_write_b64 v8, %s offset:%d" % (v(T + 8, 2), 16 * g))
        a("v_bfe_u32 v13, v1, 2, 2")
        a("v_lshlrev_b32 v12, 6, v13")
        a("v_bfe_u32 v13, v1, 4, 1")
        a("v_lshl_add_u32 v12, v13, 5, v12")
        a("v_and_b32 v13, 3, v1")
        a("v_lshl_add_u32 v12, v13, 3, v12")
        a("v_lshl_add_u32 v12, v14, 10, v12")
        a("v_add_u32 v12, %d, v12" % (512 * g))
        a("s_lshr_b32 s36, s19, 1")
        a("s_mul_i32 s36, s36, %d" % UNIT)
        a("s_and_b32 s37, s19, 1")
        a("s_mul_i32 s37, s37, %d" % (9 * 2048))
        a("s_add_u32 s36, s36, s37")
        a("v_add_u32 v13, s36, v3")
        a("s_lshl_b32 s29, s27, 6")
        a("s_add_u32 s35, s35, s29")
        a("s_mul_i32 s34, s18, %d" % (8 * 9216))
        a("s_add_u32 s35, s35, s34")
        a("s_lshl_b32 s34, s18, 10")
        a("s_mul_i32 s29, s27, 640")
        a("s_sub_u32 s31, s35, s29")
        a("s_and_b32 s96, s16, %d" % (3 if ROT else 0))
        for pi in range(4):
            a("s_add_u32 s29, s96, %d" % pi)
            a("s_and_b32 s29, s29, 3")
            a("s_lshl_b32 s29, s29, 7")
            a("s_add_u32 s%d, s35, s29" % (92 + pi))
        a("s_waitcnt lgkmcnt(0)")
        a("s_barrier")
        a("ds_read_b128 %s, v9" % v(T, 4))
        a("ds_read_b128 %s, v9 offset:16" % v(T + 4, 4))
        for i in range(9):
            a("ds_write_b128 v13, %s offset:%d" % (v(FG + 4 * i, 4), i * 2048 + g * 1024))
        a("v_mov_b32 v4, v12")
        a("v_add_u32 v5, 49152, v12")
        a("v_add_u32 v6, 98304, v12")
        ndma = 5 if g == 0 else 4
        def dma_list(u):
            pi, kh = (u - 2) >> 1, u & 1
            out = []
            for n in range(ndma):
                off = (0 if pi < 4 else 512) + (kh * 288 + n * 64) * 9216
                out.append(("grp", ["s_add_u32 m0, s34, %d" % ((u % 4) * UNIT + n * 8192),
                                    "s_add_u32 s30, s%d, %d" % (92 + pi if pi < 4 else 31, off),
                                    ("vm", "buffer_load_dwordx4 v2, s[8:11], s30 offen lds", "u%d" % u)]))
            return out
        a("s_waitcnt lgkmcnt(9)")
        for o in ["v_add_f32 v%d, v%d, v%d" % (T, T, T + 2), "v_add_f32 v%d, v%d, v%d" % (T + 4, T + 4, T + 6),
                  "v_add_f32 v%d, v%d, v%d" % (T + 1, T + 1, T + 3), "v_add_f32 v%d, v%d, v%d" % (T + 5, T + 5, T + 7),
                  "v_add_f32 v%d, v%d, v%d" % (T, T, T + 4), "v_add_f32 v%d, v%d, v%d" % (T + 1, T + 1, T + 5),
                  "v_mul_f32 v%d, 0x%x, v%d" % (T, f32bits(1.0 / 576), T),
                  "v_mul_f32 v%d, 0x%x, v%d" % (T + 1, f32bits(1.0 / 576), T + 1),
                  "v_fma_f32 v%d, -v%d, v%d, v%d" % (T + 1, T, T, T + 1),
                  "v_max_f32 v%d, 0, v%d" % (T + 1, T + 1),
                  "v_cvt_pk_bf16_f32 v%d, -v%d, v%d" % (T + 2, T, T + 1),
                  "v_and_b32 v%d, 0xffff0000, v%d" % (T + 1, T + 2),
                  "v_add_f32 v%d, 0x%x, v%d" % (T + 1, f32bits(1e-5), T + 1),
                  "v_cvt_pk_bf16_f32 v%d, v%d, v%d" % (T + 1, T + 1, T + 1),
                  "v_lshlrev_b32 v%d, 16, v%d" % (T + 1, T + 1),
                  "v_sqrt_f32 v%d, v%d" % (T + 1, T + 1),
                  "v_and_b32 v%d, 0xffff, v%d" % (T + 2, T + 2),
                  "v_cvt_pk_bf16_f32 v%d, v%d, v%d" % (T + 1, T + 1, T + 1),
                  "v_lshl_or_b32 v%d, v%d, 16, v%d" % (XA, T + 2, T + 2),
                  "v_and_b32 v%d, 0xffff0000, v%d" % (T + 3, T + 1),
                  "v_or_b32 v%d, v%d, v%d" % (XA + 1, T + 3, T + 2),
                  "v_rcp_f32 v%d, v%d" % (T, T + 3),
                  "v_lshrrev_b32 v%d, 3, v9" % (T + 4),
                  "v_add_u32 v%d, %d, v%d" % (T + 4, ROWP_LDS - STAT_LDS // 8, T + 4),
                  "v_mul_f32 v%d, 0x%x, v%d" % (T + 1, f32bits(1.0 / 24), T),
                  "ds_write_b32 v%d, v%d" % (T + 4, T + 1),
                  "v_add_u32 v13, %d, v3" % (1024 * g)]:
            a(o)
        a("s_waitcnt lgkmcnt(0)")
        a("s_barrier")
        ok = a.newlabel("nok"); lp = a.newlabel("nlp")
        a.vm_wait("nonce")
        a("v_readfirstlane_b32 s59, v255")
        a("s_cmp_lg_u32 s59, 0")
        a("s_cbranch_scc1 %s" % ok)
        a("s_mov_b32 s28, 0")
        a.label(lp)
        a("s_sleep 8")
        a("buffer_load_dword v255, v253, s[20:23], 0 offen sc1")
        a("s_waitcnt vmcnt(0)")
        a("v_readfirstlane_b32 s59, v255")
        a("s_cmp_lg_u32 s59, 0")
        a("s_cbranch_scc1 %s" % ok)
        a("s_add_u32 s28, s28, 1")
        a("s_cmp_lt_u32 s28, 0x40000")
        a("s_cbranch_scc1 %s" % lp)
        a.label(ok)
        a.lg_reset()
        a.stamp()

        def prog_side():
            wl = []
            for arr in range(2):
                wl += ["s_add_u32 m0, s34, %d" % (WTS + arr * 5120), "s_nop 0",
                       "buffer_load_dwordx4 v%d, s[%d:%d], 0 offen lds" % (EX + 9, 44 + 4 * arr, 47 + 4 * arr)]
            ops = [("cond", "s_cmp_lt_u32 s18, 5", wl, "wt")]
            ops += dma_list(2)
            ops += ["v_mov_b32 v%d, 0" % (XA + 2), "v_mov_b32 v%d, 0" % (XA + 3), "v_mov_b32 v%d, 0" % (AUGR + 2), "v_mov_b32 v%d, 0" % (AUGR + 3),
                   "v_cndmask_b32 v%d, v%d, 0, s[24:25]" % (XA, XA), "v_cndmask_b32 v%d, v%d, 0, s[24:25]" % (XA + 1, XA + 1),
                   "v_mul_f32 v9, 0x%x, v%d" % (f32bits(C0), T),
                   "v_mul_f32 v10, v%d, v%d" % (T, T), "v_mul_f32 v10, v10, v%d" % T, "v_mul_f32 v10, 0x%x, v10" % f32bits(C0 * 0.044715)]
            ops += ["s_lshr_b32 s29, s33, 4", "v_bfe_u32 v%d, v1, 4, 1" % (T + 1), "v_add_u32 v%d, s29, v%d" % (T + 1, T + 1), "s_mov_b32 s29, %d" % (144 * 1024),
                    "v_mul_lo_u32 v7, v%d, s29" % (T + 1), "v_lshl_add_u32 v7, v14, 8, v7", "v_and_b32 v%d, 15, v1" % (T + 1), "v_lshl_add_u32 v7, v%d, 4, v7" % (T + 1),
                    "v_add_u32 v7, 0x%x, v7" % H_OFF,
                    "v_add_u32 v%d, %d, v11" % (T + 1, 32 * g), "s_mul_i32 s29, s17, 36", "v_add_u32 v12, s29, v%d" % (T + 1), "v_lshlrev_b32 v12, 12, v12",
                    "v_lshl_add_u32 v12, v14, 4, v12", "s_lshl_b32 s29, s33, 1", "s_add_u32 s29, s29, 0x%x" % X1_OFF, "v_add_u32 v12, s29, v12",
                    ("grp", ["v_cmp_gt_u32 vcc, 36, v%d" % (T + 1), "s_mul_i32 s39, s17, 9", "s_nop 0", "v_cndmask_b32 v12, v15, v12, vcc"])]
            ops += ["v_lshlrev_b32 v%d, 2, v11" % (T + 1), "v_add_u32 v%d, %d, v%d" % (T + 1, CSF_LDS + 1024 * g, T + 1)]
            for k in range(8): ops.append(("ds", "ds_read_b32 v%d, v%d offset:%d" % (T + 8 + k, T + 1, 128 * k), "csf"))
            ops += ["v_mov_b32 v11, v%d" % (T + 3),
                    "v_and_b32 v8, 31, v1", "v_lshlrev_b32 v8, 3, v8", "v_add_u32 v8, %d, v8" % AUG_LDS, "v_mov_b32 v%d, %d" % (T + 1, ZERO_LDS),
                    "v_cndmask_b32 v8, v8, v%d, s[24:25]" % (T + 1), ("lwait", "csf")]
            for k in range(1, 8): ops.append("v_add_f32 v%d, v%d, v%d" % (T + 8, T + 8, T + 8 + k))
            ops += split3(T + 8, T + 9, AUGR, AUGR + 1, "0")
            ops += ["v_cndmask_b32 v%d, v%d, 0, s[24:25]" % (AUGR, AUGR), "v_cndmask_b32 v%d, v%d, 0, s[24:25]" % (AUGR + 1, AUGR + 1)]
            return ops
        def prog_w2(rnd):
            cmpa = "s_cmp_eq_u32 s57, %d" % (rnd + 1)
            ld = []
            for n2 in range(2):
                wl = []
                for n in (2 * n2, 2 * n2 + 1):
                    wl += ["s_add_u32 m0, s38, %d" % (n * 1024), "s_add_u32 s28, s3, %d" % (n * 8 * 1152),
                           "buffer_load_dwordx4 v%d, s[52:55], s28 offen lds" % (EX + 8)]
                ld.append(("cond", cmpa, wl, "w2p"))
            fin = [("mwait", "w2p")]
            for hf in range(2):
                for nt in (2 * hf, 2 * hf + 1):
                    for h in range(2):
                        fin.append(("ds", "ds_read_b64_tr_b16 %s, v%d offset:%d" % (v(EX + 4 * (nt & 1) + 2 * h, 2), EX + 9, nt * 32 + h * 1024), "w2r"))
                fin.append(("lwait", "w2r"))
                fin.append(("cond", cmpa, ["buffer_store_dwordx4 %s, v3, s[4:7], s32 offen offset:%d%s" % (v(EX + 4 * (nt & 1), 4), nt * 1024, SC) for nt in (2 * hf, 2 * hf + 1)], "w2st"))
                fin.append("s_nop 0")
            return ld, fin
        def prog_w2addr():
            return ["v_lshrrev_b32 v%d, 5, v1" % (EX + 9), "v_lshlrev_b32 v%d, 4, v%d" % (EX + 9, EX + 9), "v_bfe_u32 v%d, v1, 4, 1" % (EX + 10),
                    "v_lshl_add_u32 v%d, v%d, 2, v%d" % (EX + 9, EX + 10, EX + 9), "v_bfe_u32 v%d, v1, 2, 2" % (EX + 10), "v_add_u32 v%d, v%d, v%d" % (EX + 9, EX + 9, EX + 10),
                    "v_lshlrev_b32 v%d, 7, v%d" % (EX + 9, EX + 9), "v_and_b32 v%d, 3, v1" % (EX + 10), "v_lshl_add_u32 v%d, v%d, 3, v%d" % (EX + 9, EX + 10, EX + 9),
                    "v_add_u32 v%d, s38, v%d" % (EX + 9, EX + 9),
                    ("grp", ["s_cmp_ge_u32 s18, 3", "s_cselect_b32 s57, 2, 1", "s_cmp_lt_u32 s100, 1296", "s_cselect_b32 s57, s57, 0"])]
        def prog_wt():
            ops = ["v_and_b32 v%d, 15, v0" % (T + 4), "v_mul_u32_u24 v%d, 80, v%d" % (T + 5, T + 4), "v_and_b32 v%d, 1, v0" % (T + 6),
                   "v_lshl_add_u32 v%d, v%d, 1, v%d" % (T + 5, T + 6, T + 5), "v_lshrrev_b32 v%d, 4, v0" % (T + 6),
                   "v_lshl_add_u32 v%d, v%d, 1, v%d" % (T + 5, T + 6, T + 5), "v_add_u32 v%d, %d, v%d" % (T + 5, WTS, T + 5),
                   "v_lshlrev_b32 v%d, 4, v%d" % (T + 4, T + 4), "v_lshl_add_u32 v%d, v%d, 13, v%d" % (T + 4, T + 6, T + 4),
                   ("grp", ["v_cmp_gt_u32 vcc, 80, v0", "v_add_u32 v%d, %d, v%d" % (T + 6, 32 * 8192, T + 4), "s_nop 0", "v_cndmask_b32 v%d, v15, v%d, vcc" % (T + 6, T + 6)])]
            for rd_ in range(2):
                for r in range(4):
                    ops.append(("ds", "ds_read_u16 v%d, v%d offset:%d" % (EX + 4 * rd_ + r, T + 5, r * 1280 + 64 * rd_), "wtr"))
                    ops.append(("ds", "ds_read_u16 v%d, v%d offset:%d" % (T + 8 + 4 * rd_ + r, T + 5, 5120 + r * 1280 + 64 * rd_), "wtr"))
            ops.append(("lwait", "wtr"))
            for e in range(8): ops.append("v_lshl_or_b32 v%d, v%d, 16, v%d" % (EX + e, T + 8 + e, EX + e))
            return ops
        def prog_st2():
            ops = [("vm", "buffer_store_dwordx4 %s, v%d, s[4:7], s56 offen%s" % (v(EX, 4), T + 4, SC), "side"),
                   ("cond", "s_cmp_lt_u32 s18, 2", ["buffer_store_dwordx4 %s, v%d, s[4:7], s56 offen%s" % (v(EX + 4, 4), T + 6, SC)], None)]
            return ops
        def cs_flag():
            pub = a.newlabel("noflag")
            a("s_cmp_eq_u32 s18, 7")
            a("s_cbranch_scc0 %s" % pub)
            a("v_mov_b32 v%d, s59" % (T + 2))
            a("v_mov_b32 v%d, 0" % (T + 1))
            a("s_waitcnt vmcnt(%d)" % min(63, len(a.vmq) - csmark))
            a("s_mov_b64 exec, 1")
            a("buffer_store_dword v%d, v%d, s[4:7], s101 offen sc1" % (T + 2, T + 1))
            a("s_mov_b64 exec, -1")
            a.label(pub)
        def cs_chk():
            a("v_cmp_eq_u32 vcc, s59, v254")
            a("s_nop 1")
            a("s_cmp_eq_u64 vcc, -1")
        def cs_fetch():
            skip = a.newlabel("csskip"); lp = a.newlabel("cspoll"); ok = a.newlabel("csok")
            a("s_cmp_lt_u32 s18, 5")
            a("s_cbranch_scc0 %s" % skip)
            a.vm_wait_mark("cspl")
            cs_chk()
            a("s_cbranch_scc1 %s" % ok)
            a("s_mov_b32 s33, 0")
            a.label(lp)
            a("s_sleep 4")
            a("buffer_load_dword v254, v253, s[4:7], 0 offen sc1")
            a("s_waitcnt vmcnt(0)")
            cs_chk()
            a("s_cbranch_scc1 %s" % ok)
            a("s_add_u32 s33, s33, 1")
            a("s_cmp_lt_u32 s33, 0x40000")
            a("s_cbranch_scc1 %s" % lp)
            a.label(ok)
            a("s_mul_i32 s28, s17, %d" % (16 * 1152))
            a("s_add_u32 s28, s28, 0x%x" % CS_OFF)
            a("s_mul_i32 s29, s17, 576")
            a("v_lshlrev_b32 v253, 3, v251")
            a("buffer_load_dwordx2 v[254:255], v253, s[12:15], s29 offen")
            for kk in range(4):
                a("buffer_load_dwordx4 %s, v252, s[4:7], s28 offen offset:%d sc1" % (v(T + 4 * kk, 4), kk * 1152))
            a.label(skip)
            a.vm_mark("csl")
        def prog_dft():
            acc = ACCS[0]
            ops = ["s_lshl_b32 s28, s19, 7", "v_lshlrev_b32 v%d, 4, v14" % T, "v_add_u32 v%d, s28, v%d" % (T, T), "v_add_u32 v%d, %d, v%d" % (T, ROWP_LDS, T)]
            RP = [EX, EX + 4, T + 4, T + 12]
            for i in range(4): ops.append(("ds", "ds_read_b128 %s, v%d offset:%d" % (v(RP[i], 4), T, 32 * i), "rowp"))
            ops.append(("lwait", "rowp"))
            for i in range(16):
                sc = RP[i >> 2] + (i & 3)
                ops.append("v_mul_f32 v%d, v%d, v%d" % (acc + i, acc + i, sc))
            for i in range(8): ops.append("v_cvt_pk_f16_f32 v%d, v%d, v%d" % (T + 8 + i, acc + 2 * i, acc + 2 * i + 1))
            ops += ["s_nop 0", "s_nop 0"]
            for i in (0, 2):
                ops += ["v_permlane32_swap_b32 v%d, v%d" % (T + 8 + 2 * i, T + 10 + 2 * i), "v_permlane32_swap_b32 v%d, v%d" % (T + 9 + 2 * i, T + 11 + 2 * i)]
            for i in range(2):
                ops.append(("vm", "buffer_store_dwordx4 %s, v12, s[4:7], 0 offen offset:%d%s" % (v(T + 8 + 4 * i, 4), 32 * i, SC), "side"))
            return ops
        def prog_cs0():
            return [("grp", ["s_and_b32 s28, s2, 0xc3", "v_and_b32 v253, 15, v1", "v_lshlrev_b32 v253, 2, v253",
                             "v_or_b32 v253, s28, v253", "v_lshlrev_b32 v253, 4, v253", "v_add_u32 v253, 0x%x, v253" % FLAG_OFF]),
                    ("cond", "s_cmp_lt_u32 s18, 5", ["buffer_load_dword v254, v253, s[4:7], 0 offen sc1"], "cspl"),
                    ("grp", ["s_lshl_b32 s28, s18, 4", "v_and_b32 v251, 15, v1", "v_add_u32 v251, s28, v251"]), "v_lshrrev_b32 v252, 4, v1", "v_mul_u32_u24 v252, %d, v252" % (4 * 1152),
                    "v_lshl_add_u32 v252, v251, 4, v252",
                    ("grp", ["v_cmp_gt_u32 vcc, 72, v251", "s_nop 1", "v_cndmask_b32 v252, v15, v252, vcc"])]
        def prog_cs2():
            ops = [("mwait", "csl")]
            for kk in range(1, 4):
                for i in range(4): ops.append("v_add_f32 v%d, v%d, v%d" % (T + i, T + i, T + 4 * kk + i))
            for sw in ("32", "16"):
                for i in range(4): ops.append("v_mov_b32 v%d, v%d" % (T + 4 + i, T + i))
                ops.append("s_nop 0")
                for i in range(4): ops.append("v_permlane%s_swap_b32 v%d, v%d" % (sw, T + i, T + 4 + i))
                for i in range(4): ops.append("v_add_f32 v%d, v%d, v%d" % (T + i, T + i, T + 4 + i))
            ops += ["v_lshlrev_b32 v%d, 16, v254" % (T + 4), "v_and_b32 v%d, 0xffff0000, v254" % (T + 5), "v_lshlrev_b32 v%d, 16, v255" % (T + 6), "v_and_b32 v%d, 0xffff0000, v255" % (T + 7)]
            for i in range(4): ops += split3(T + i, 253, T + 8 + 2 * i, T + 9 + 2 * i, "v%d" % (T + 4 + i))
            ops += ["v_lshlrev_b32 v253, 5, v251", "v_add_u32 v253, %d, v253" % AUG_LDS, "v_and_b32 v252, 48, v1", "v_lshl_add_u32 v252, v252, 3, v251",
                    ("grp", ["v_cmp_gt_u32 vcc, 72, v252", "s_and_saveexec_b64 s[28:29], vcc", ("ds", "ds_write_b128 v253, %s" % v(T + 8, 4), "augw"),
                             ("ds", "ds_write_b128 v253, %s offset:16" % v(T + 12, 4), "augw"), "s_mov_b64 exec, -1"])]
            return ops
        def aug_read(p):
            sk = 36 + (p & 1); pi = p - 1
            ops = ["s_add_u32 s%d, s96, %d" % (sk, pi), "s_and_b32 s%d, s%d, 3" % (sk, sk), "s_lshl_b32 s%d, s%d, 1" % (sk, sk),
                   "s_add_u32 s%d, s%d, s27" % (sk, sk), "s_add_u32 s%d, s%d, %d" % (sk, sk, g)]
            if pi == 4:
                ops += ["s_cmp_eq_u32 s27, 1", "s_cselect_b32 s%d, 0, 8" % sk]
            ops += ["s_lshl_b32 s28, s%d, 8" % sk, "v_mov_b32 v15, s28",
                    "v_cndmask_b32 v15, v15, 0, s[24:25]", "v_add_u32 v15, v15, v8",
                    ("ds", "ds_read_b64 %s, v15" % v(AUGR, 2), "aug")]
            return [("grp", ops)]
        def gelu_ops(p):
            ops = []
            for h2 in range(2):
                acc = ACCS[p & 1] + 8 * h2
                for i in range(8): ops.append("v_mul_f32 v%d, v%d, v%d" % (T + i, acc + i, acc + i))
                for i in range(8): ops.append("v_fma_f32 v%d, v%d, v10, v9" % (T + i, T + i))
                for i in range(8): ops.append("v_mul_f32 v%d, v%d, v%d" % (T + i, acc + i, T + i))
                for i in range(8): ops.append("v_exp_f32 v%d, v%d" % (T + i, T + i))
                for i in range(8): ops.append("v_fma_f32 v%d, v%d, v11, v11" % (T + i, T + i))
                for i in range(8): ops.append("v_rcp_f32 v%d, v%d" % (T + i, T + i))
                for i in range(8): ops.append("v_mul_f32 v%d, v%d, v%d" % (T + i, acc + i, T + i))
                for i in range(4): ops.append("v_cvt_pk_bf16_f32 v%d, v%d, v%d" % (T + 8 + 4 * h2 + i, T + 2 * i, T + 2 * i + 1))
                ops.append(("grp", ["s_add_u32 s28, s39, s%d" % (36 + (p & 1)), "s_lshl_b32 s28, s28, 10",
                                    ("vm", "buffer_store_dwordx4 %s, v7, s[4:7], s28 offen offset:%d%s" % (v(T + 8 + 4 * h2, 4), 512 * h2, SCH), "h%d" % p)]))
            return ops

        ntile = 6 if g == 0 else 5
        nsteps = 36 * ntile
        LA = NFR - 1
        def rd(i):
            phi, st = divmod(i, 18)
            b = FR + 4 * (i % NFR)
            if phi < 2:
                if i == 18: a("v_add_u32 v13, %d, v13" % UNIT)
                a.ds("ds_read_b128 %s, v13 offset:%d" % (v(b, 4), st * 2048), "f%d" % i)
            else:
                if i == 180:
                    a("s_lshl_b32 s29, s27, 9")
                    for r_ in (4, 5, 6): a("v_add_u32 v%d, s29, v%d" % (r_, r_))
                for h in range(2):
                    addr = (phi % 4) * UNIT + st * 2048 + 256 * h
                    k = addr // 49152
                    a.ds("ds_read_b64_tr_b16 %s, v%d offset:%d" % (v(b + 2 * h, 2), 4 + k, addr - k * 49152), "f%d" % i)
        pri = []
        def cnt_off(phi): return 40 + 4 * WS_PHI.index(phi)
        def signal(phi):
            a.vm_wait("u%d" % (phi + 1))
            a("s_mov_b64 exec, 1")
            a.ds("ds_add_u32 v12, v13 offset:%d" % cnt_off(phi), "sig")
            a("s_mov_b64 exec, -1")
        def barrier(phi):
            if phi in WS_PHI:
                ok = a.newlabel("wok"); lp = a.newlabel("wlp")
                a.lg_wait("cnt")
                a("v_readfirstlane_b32 s28, v255")
                a("s_cmp_eq_u32 s28, 8")
                a("s_cbranch_scc1 %s" % ok)
                a("s_mov_b32 s33, 0")
                a.label(lp)
                a("ds_read_b32 v255, v12 offset:%d" % cnt_off(phi))
                a("s_waitcnt lgkmcnt(0)")
                a("v_readfirstlane_b32 s28, v255")
                a("s_cmp_eq_u32 s28, 8")
                a("s_cbranch_scc1 %s" % ok)
                a("s_add_u32 s33, s33, 1")
                a("s_cmp_lt_u32 s33, 0x100000")
                a("s_cbranch_scc1 %s" % lp)
                a.label(ok)
                if hooks: hooks.after_barrier(a, g, phi)
                if phi + 3 <= 11: pri.extend(dma_list(phi + 3))
                return
            if phi + 1 >= 2: a.vm_wait("u%d" % (phi + 1))
            if 1 <= phi <= 2 and not hooks: a.stamp()
            if phi == 1: a.vm_wait_mark("wt")
            if phi == 10 and hooks: a.vm_wait("h3")
            a.lg_wait("augw"); a.lg_wait("xtw")
            a("s_barrier")
            if hooks: hooks.after_barrier(a, g, phi)
            if phi in (3, 8): a.stamp()
            u = phi + 3
            if u is not None and u <= 11: pri.extend(dma_list(u))
        for i in range(LA): rd(i)
        if g == 1: cs_flag()
        for tau in range(ntile):
            if tau == 0:
                wt = prog_wt()
                progs = [(0, 24, prog_side()), (26, 29, wt[:10]), (31, 35, wt[10:] + prog_st2())]
            elif tau == 1:
                ld, fin = prog_w2(0)
                progs = [(0, 3, prog_w2addr()), (4, 11, prog_dft()), (13, 14, ld), (8, 11, prog_cs0()), (25, 25, [("call", cs_fetch)]), (29, 34, fin)]
            elif tau == 2:
                ld, fin = prog_w2(1)
                late_aug = aug_read(1) + [("lwait", "aug"), "v_mfma_f32_32x32x16_bf16 %s, %s, %s, %s" % (v(ACCS[1], 16), v(AUGR, 4), v(XA, 4), v(ACCS[1], 16))]
                progs = [(3, 11, prog_cs2()), (13, 14, late_aug), (13, 14, ld), (17, 35, gelu_ops(1)), (26, 30, fin), (32, 33, aug_read(2))]
            else: progs = [(3, 31, gelu_ops(tau - 1)), (32, 33, aug_read(tau))]
            sched = [[] for _ in range(36)]
            for s0, s1, ops in progs:
                n = s1 - s0 + 1
                for k, o in enumerate(ops):
                    sched[s0 + (k * n) // len(ops)].append(o)
            acc = ACCS[tau & 1]
            for st in range(36):
                i = 36 * tau + st
                j = i + LA
                if (j + SIGD) % 18 == 0 and (j + SIGD) // 18 - 1 in WS_PHI:
                    if (j + SIGD) // 18 - 1 == WS_PHI[0]:
                        a("v_mov_b32 v12, %d" % FLG_LDS); a("v_mov_b32 v13, 1")
                    signal((j + SIGD) // 18 - 1)
                if (j + 2) % 18 == 0 and (j + 2) // 18 - 1 in WS_PHI:
                    a.ds("ds_read_b32 v255, v12 offset:%d" % cnt_off((j + 2) // 18 - 1), "cnt")
                if j < nsteps:
                    if j % 18 == 0:
                        barrier(j // 18 - 1)
                    rd(j)
                if pri and (st % 2 == 0 or len(pri) > ndma): emit_op(a, pri.pop(0))
                a.lg_wait("f%d" % i)
                b = FR + 4 * (i % NFR)
                x = XN + 4 * st
                c = "0" if st == 0 else v(acc, 16)
                if tau == 0:
                    a("v_mfma_f32_32x32x16_bf16 %s, %s, %s, %s" % (v(acc, 16), v(x, 4), v(b, 4), c))
                else:
                    a("v_mfma_f32_32x32x16_bf16 %s, %s, %s, %s" % (v(acc, 16), v(b, 4), v(x, 4), c))
                for o in sched[st]: emit_op(a, o)
            if tau == 0:
                a("v_mfma_f32_32x32x16_bf16 %s, %s, %s, %s" % (v(acc, 16), v(XA, 4), v(AUGR, 4), v(acc, 16)))
            elif tau != 1:
                a.lg_wait("aug")
                a("v_mfma_f32_32x32x16_bf16 %s, %s, %s, %s" % (v(acc, 16), v(AUGR, 4), v(XA, 4), v(acc, 16)))
        a("s_nop 7"); a("s_nop 4")
        last = gelu_ops(ntile - 1)
        if g == 1 and hooks:
            hooks.g1_end(a, last, barrier)
        elif g == 1:
            barrier(9)
            assert not pri
            for k, o in enumerate(last):
                if k == len(last) // 2: barrier(10)
                emit_op(a, o)
        else:
            for o in last: emit_op(a, o)
        if hooks:
            if g == 0: hooks.tail(a, g)
        elif g == 1:
            a("s_lshl_b32 s36, s19, 8")
            a("s_add_u32 s36, s36, s2")
            k0.job_finv(a, XN, 36, 4, 37)
        a.stamp()
        a.stamp(True)
        a.stamp_flush(4, STAMP_OFF, 18, T)
        a("s_endpgm")

    group(0)
    a.label("L_k1_g1")
    group(1)
    a.label("L_k1_end")
    a("s_endpgm")
    return (name, 256, 512, 163840 if hooks else K1_LDS, NV)
```

```python
from asmlib import *
from layout import *
from k2 import T_M32F, T_TW1, T_M64, T_TW2, T_M32I

def job_wt(a, V, s_wg, srd_ws, srd_wr, srd_wi, st):
    Rw = "s[%d:%d]" % (srd_ws, srd_ws + 3)
    sc, su, sx, sy = st, st + 1, st + 2, st + 3
    a("s_and_b32 s%d, s%d, 31" % (sc, s_wg))
    a("s_lshr_b32 s%d, s%d, 5" % (su, s_wg))
    a("s_lshl_b32 s%d, s%d, 8" % (sx, su))
    a("s_add_u32 s%d, s%d, s%d" % (sx, sx, sc))
    a("s_mul_i32 s%d, s%d, 578" % (sx, sx))
    a("v_lshlrev_b32 v%d, 1, v0" % (V + 8))
    a("v_mov_b32 v%d, 0x7ff00000" % (V + 9))
    a("v_cmp_gt_u32 vcc, 289, v0")
    a("s_nop 1")
    a("v_cndmask_b32 v%d, v%d, v%d, vcc" % (V + 8, V + 9, V + 8))
    for e in range(8):
        a.vm("buffer_load_ushort v%d, v%d, s[%d:%d], s%d offen" % (V + e, V + 8, srd_wr, srd_wr + 3, sx), "wt")
        a.vm("buffer_load_ushort v%d, v%d, s[%d:%d], s%d offen" % (V + 12 + e, V + 8, srd_wi, srd_wi + 3, sx), "wt")
        if e < 7: a("s_add_u32 s%d, s%d, %d" % (sx, sx, 32 * 578))
    a("s_lshr_b32 s%d, s%d, 4" % (sx, sc))
    a("s_lshl_b32 s%d, s%d, 12" % (sx, sx))
    a("s_lshr_b32 s%d, s%d, 1" % (sy, su))
    a("s_lshl_b32 s%d, s%d, 10" % (sy, sy))
    a("s_add_u32 s%d, s%d, s%d" % (sx, sx, sy))
    a("s_and_b32 s%d, s%d, 1" % (sy, su))
    a("s_lshl_b32 s%d, s%d, 9" % (sy, sy))
    a("s_add_u32 s%d, s%d, s%d" % (sx, sx, sy))
    a("s_and_b32 s%d, s%d, 15" % (sy, sc))
    a("s_lshl_b32 s%d, s%d, 4" % (sy, sy))
    a("s_add_u32 s%d, s%d, s%d" % (sx, sx, sy))
    a("s_add_u32 s%d, s%d, 0x%x" % (sx, sx, WT_OFF))
    a("v_lshlrev_b32 v%d, 13, v0" % (V + 10))
    a("v_cndmask_b32 v%d, v%d, v%d, vcc" % (V + 10, V + 9, V + 10))
    def finish():
        a.vm_wait("wt")
        for e in range(8):
            a("v_lshl_or_b32 v%d, v%d, 16, v%d" % (V + e, V + 12 + e, V + e))
        a.vm("buffer_store_dwordx4 %s, v%d, %s, s%d offen" % (v(V, 4), V + 10, Rw, sx))
        a.vm("buffer_store_dwordx4 %s, v%d, %s, s%d offen offset:256" % (v(V + 4, 4), V + 10, Rw, sx))
    return finish

def job_w2p(a, V, s_wg, s_wave, srd_ws, srd_w2, ldsbase, st):
    su, sk, sg, sx, sl = st, st + 1, st + 2, st + 3, st + 4
    Rw = "s[%d:%d]" % (srd_ws, srd_ws + 3)
    a("s_lshl_b32 s%d, s%d, 8" % (su, s_wave))
    a("s_add_u32 s%d, s%d, s%d" % (su, su, s_wg))
    a("s_min_u32 s%d, s%d, 1295" % (sx, su))
    a("s_mul_hi_u32 s%d, s%d, 0x%x" % (sk, sx, (2**32 + 8) // 9))
    a("s_mul_i32 s%d, s%d, 9" % (sg, sk))
    a("s_sub_u32 s%d, s%d, s%d" % (sg, sx, sg))
    a("s_mul_i32 s%d, s%d, %d" % (sx, sk, 32 * 1152))
    a("s_lshl_b32 s%d, s%d, 7" % (sl, sg))
    a("s_add_u32 s%d, s%d, s%d" % (sx, sx, sl))
    a("v_lshrrev_b32 v%d, 3, v1" % (V + 16))
    a("v_mul_u32_u24 v%d, 1152, v%d" % (V + 16, V + 16))
    a("v_and_b32 v%d, 7, v1" % (V + 17))
    a("v_lshl_add_u32 v%d, v%d, 4, v%d" % (V + 16, V + 17, V + 16))
    a("s_lshl_b32 s%d, s%d, 12" % (sl, s_wave))
    a("s_add_u32 s%d, s%d, %d" % (sl, sl, ldsbase))
    for n in range(4):
        a("s_add_u32 m0, s%d, %d" % (sl, n * 1024))
        a("s_nop 0")
        a.vm("buffer_load_dwordx4 v%d, s[%d:%d], s%d offen lds" % (V + 16, srd_w2, srd_w2 + 3, sx), "w2p")
        if n < 3: a("s_add_u32 s%d, s%d, %d" % (sx, sx, 8 * 1152))
    a("v_lshrrev_b32 v%d, 5, v1" % (V + 17))
    a("v_lshlrev_b32 v%d, 4, v%d" % (V + 17, V + 17))
    a("v_bfe_u32 v%d, v1, 4, 1" % (V + 18))
    a("v_lshl_add_u32 v%d, v%d, 2, v%d" % (V + 17, V + 18, V + 17))
    a("v_bfe_u32 v%d, v1, 2, 2" % (V + 18))
    a("v_add_u32 v%d, v%d, v%d" % (V + 17, V + 17, V + 18))
    a("v_lshlrev_b32 v%d, 7, v%d" % (V + 17, V + 17))
    a("v_and_b32 v%d, 3, v1" % (V + 18))
    a("v_lshl_add_u32 v%d, v%d, 3, v%d" % (V + 17, V + 18, V + 17))
    a("v_add_u32 v%d, s%d, v%d" % (V + 17, sl, V + 17))
    a("s_mul_i32 s%d, s%d, 36" % (sx, sk))
    a("s_lshl_b32 s%d, s%d, 2" % (sg, sg))
    a("s_add_u32 s%d, s%d, s%d" % (sx, sx, sg))
    a("s_lshl_b32 s%d, s%d, 10" % (sx, sx))
    a("s_add_u32 s%d, s%d, 0x%x" % (sx, sx, W2P_OFF))
    a("s_cmp_lt_u32 s%d, 1296" % su)
    a("s_cselect_b32 s%d, 0, 0x7ff00000" % sg)
    a("v_lshlrev_b32 v%d, 4, v1" % (V + 18))
    a("v_add_u32 v%d, s%d, v%d" % (V + 18, sg, V + 18))
    def finish():
        a.vm_wait("w2p")
        for nt in range(4):
            for h in range(2):
                a("ds_read_b64_tr_b16 %s, v%d offset:%d" % (v(V + 4 * nt + 2 * h, 2), V + 17, nt * 32 + h * 1024))
        a("s_waitcnt lgkmcnt(0)")
        for nt in range(4):
            a.vm("buffer_store_dwordx4 %s, v%d, %s, s%d offen offset:%d" % (v(V + 4 * nt, 4), V + 18, Rw, sx, nt * 1024))
    return finish

def cos576(a, dst, n, t0, t1):
    a("v_cvt_f32_u32 v%d, v%d" % (t0, n))
    a("v_mul_f32 v%d, 0x%x, v%d" % (t0, f32bits(1.0 / 576), t0))
    a("v_cvt_u32_f32 v%d, v%d" % (t0, t0))
    a("v_mul_u32_u24 v%d, 576, v%d" % (t0, t0))
    a("v_sub_u32 v%d, v%d, v%d" % (t0, n, t0))
    a("v_cvt_f32_i32 v%d, v%d" % (t0, t0))
    a("v_mul_f32 v%d, 0x%x, v%d" % (t0, f32bits(1.0 / 576), t0))
    a("v_cos_f32 v%d, v%d" % (dst, t0))

def job_finv(a, V, s_gw, srd_ws, st):
    sk, sn, sx = st, st + 1, st + 2
    Rw = "s[%d:%d]" % (srd_ws, srd_ws + 3)
    skip = a.newlabel("finv_skip")
    a("s_cmp_ge_u32 s%d, 648" % s_gw)
    a("s_cbranch_scc1 %s" % skip)
    a("s_mul_hi_u32 s%d, s%d, 0x%x" % (sk, s_gw, (2**32 + 35) // 36))
    a("s_mul_i32 s%d, s%d, 36" % (sn, sk))
    a("s_sub_u32 s%d, s%d, s%d" % (sn, s_gw, sn))
    a("s_lshl_b32 s%d, s%d, 4" % (sn, sn))
    a("v_and_b32 v%d, 15, v1" % (V + 8))
    a("v_add_u32 v%d, s%d, v%d" % (V + 8, sn, V + 8))
    a("v_lshrrev_b32 v%d, 5, v1" % (V + 9))
    a("v_lshlrev_b32 v%d, 3, v%d" % (V + 9, V + 9))
    a("v_bfe_u32 v%d, v1, 4, 1" % (V + 10))
    a("v_lshl_add_u32 v%d, v%d, 1, v%d" % (V + 9, V + 10, V + 9))
    a("s_lshl_b32 s%d, s%d, 4" % (sx, sk))
    a("v_add_u32 v%d, s%d, v%d" % (V + 9, sx, V + 9))
    for j in range(8):
        koff = (j & 3) + 8 * (j >> 2)
        a("v_add_u32 v%d, %d, v%d" % (V + 10, koff >> 1, V + 9))
        a("v_mul_u32_u24 v%d, v%d, v%d" % (V + 11, V + 10, V + 8))
        if koff & 1:
            a("v_add_u32 v%d, 144, v%d" % (V + 11, V + 11))
            if j == 1:
                a("v_mul_u32_u24 v%d, 288, v%d" % (V + 12, V + 8))
                a("v_cmp_eq_u32 vcc, 0, v%d" % (V + 10))
                a("s_nop 1")
                a("v_cndmask_b32 v%d, v%d, v%d, vcc" % (V + 11, V + 11, V + 12))
        cos576(a, V + j, V + 11, V + 12, V + 13)
        if j < 2:
            a("v_cmp_eq_u32 vcc, 0, v%d" % (V + 10))
            a("v_add_f32 v%d, v%d, v%d" % (V + 12, V + j, V + j))
            a("s_nop 0")
            a("v_cndmask_b32 v%d, v%d, v%d, vcc" % (V + j, V + 12, V + j))
        else:
            a("s_nop 0")
            a("v_add_f32 v%d, v%d, v%d" % (V + j, V + j, V + j))
    for i in range(4):
        a("v_cvt_pk_bf16_f32 v%d, v%d, v%d" % (V + 16 + i, V + 2 * i, V + 2 * i + 1))
    a("s_add_u32 s%d, s%d, %d" % (sx, s_gw, 144 * 36))
    a("s_lshl_b32 s%d, s%d, 10" % (sx, sx))
    a("s_add_u32 s%d, s%d, 0x%x" % (sx, sx, W2P_OFF))
    a("v_lshlrev_b32 v%d, 4, v1" % (V + 8))
    a("buffer_store_dwordx4 %s, v%d, %s, s%d offen sc1" % (v(V + 16, 4), V + 8, Rw, sx))
    a.label(skip)

def job_tab(a, V, s_f, srd_ws, st):
    Rw = "s[%d:%d]" % (srd_ws, srd_ws + 3)
    sx, sy, sz = st, st + 1, st + 2
    end = a.newlabel("tab_end"); st16 = a.newlabel("tab_s16"); st32 = a.newlabel("tab_s32")
    vg, vi, vA, vB, vt = V + 8, V + 9, V + 10, V + 11, V + 12
    a("s_cmp_ge_u32 s%d, 62" % s_f)
    a("s_cbranch_scc1 %s" % end)
    a("v_lshrrev_b32 v%d, 4, v1" % vg)
    a("v_and_b32 v%d, 15, v1" % vi)
    def entry(dst, ph_s=None, ph_c=0):
        if ph_s is not None: a("v_add_u32 v%d, s%d, v%d" % (vt, ph_s, vt))
        if ph_c: a("v_add_u32 v%d, %d, v%d" % (vt, ph_c, vt))
        a("v_and_b32 v%d, 2047, v%d" % (vt, vt))
        a("v_cvt_f32_u32 v%d, v%d" % (vt, vt))
        a("v_mul_f32 v%d, 0x%x, v%d" % (vt, f32bits(1.0 / 2048), vt))
        a("v_cos_f32 v%d, v%d" % (dst, vt))
    labs = [a.newlabel("tab_t%d" % i) for i in range(5)]
    for i, lim in enumerate([T_TW1, T_M64, T_TW2, T_M32I]):
        a("s_cmp_lt_u32 s%d, %d" % (s_f, lim))
        a("s_cbranch_scc1 %s" % labs[i])
    a("s_branch %s" % labs[4])
    a.label(labs[0])
    a("s_cmp_ge_u32 s%d, 3" % s_f)
    a("s_cselect_b32 s%d, 1, 0" % sx)
    a("s_mul_i32 s%d, s%d, 3" % (sy, sx))
    a("s_sub_u32 s%d, s%d, s%d" % (sy, s_f, sy))
    a("s_lshl_b32 s%d, s%d, 9" % (sz, sy))
    a("s_cmp_eq_u32 s%d, 2" % sy)
    a("s_cselect_b32 s%d, 1536, s%d" % (sz, sz))
    a("s_lshl_b32 s%d, s%d, 4" % (sx, sx))
    a("v_add_u32 v%d, s%d, v%d" % (vB, sx, vi))
    a("v_lshlrev_b32 v%d, 6, v%d" % (vB, vB))
    a("v_lshlrev_b32 v%d, 3, v%d" % (vA, vg))
    for j in range(8):
        a("v_add_u32 v%d, %d, v%d" % (vt, j, vA))
        a("v_mul_u32_u24 v%d, v%d, v%d" % (vt, vt, vB))
        entry(V + j, sz)
    a("s_nop 0")
    for j in range(8):
        a("v_mul_f32 v%d, 0x%x, v%d" % (V + j, f32bits(0.125), V + j))
    a("s_branch %s" % st16)
    a.label(labs[1])
    a("s_sub_u32 s%d, s%d, %d" % (sx, s_f, T_TW1))
    a("s_and_b32 s%d, s%d, 1" % (sz, sx))
    a("s_lshl_b32 s%d, s%d, 9" % (sz, sz))
    a("s_lshr_b32 s%d, s%d, 3" % (sy, sx))
    a("s_lshl_b32 s%d, s%d, 4" % (sy, sy))
    a("v_add_u32 v%d, s%d, v%d" % (vB, sy, vi))
    a("s_bfe_u32 s%d, s%d, 0x20001" % (sy, sx))
    a("s_lshl_b32 s%d, s%d, 4" % (sy, sy))
    a("v_lshlrev_b32 v%d, 2, v%d" % (vA, vg))
    a("v_add_u32 v%d, s%d, v%d" % (vA, sy, vA))
    a("s_branch %s" % st32)
    a.label(labs[2])
    a("s_sub_u32 s%d, s%d, %d" % (sx, s_f, T_M64))
    a("s_and_b32 s%d, s%d, 1" % (sz, sx))
    a("s_lshl_b32 s%d, s%d, 9" % (sz, sz))
    a("s_lshr_b32 s%d, s%d, 2" % (sy, sx))
    a("s_lshl_b32 s%d, s%d, 4" % (sy, sy))
    a("v_add_u32 v%d, s%d, v%d" % (vB, sy, vi))
    a("v_lshlrev_b32 v%d, 5, v%d" % (vB, vB))
    a("s_bfe_u32 s%d, s%d, 0x10001" % (sy, sx))
    a("s_lshl_b32 s%d, s%d, 5" % (sy, sy))
    a("v_lshlrev_b32 v%d, 2, v%d" % (vA, vg))
    a("v_add_u32 v%d, s%d, v%d" % (vA, sy, vA))
    for j in range(8):
        a("v_add_u32 v%d, %d, v%d" % (vt, 16 * (j >> 2) + (j & 3), vA))
        a("v_mul_u32_u24 v%d, v%d, v%d" % (vt, vt, vB))
        entry(V + j, sz)
    a("s_branch %s" % st16)
    a.label(labs[3])
    a("s_sub_u32 s%d, s%d, %d" % (sx, s_f, T_TW2))
    a("s_and_b32 s%d, s%d, 1" % (sz, sx))
    a("s_mul_i32 s%d, s%d, 1536" % (sz, sz))
    a("s_bfe_u32 s%d, s%d, 0x20001" % (sy, sx))
    a("s_lshl_b32 s%d, s%d, 4" % (sy, sy))
    a("v_add_u32 v%d, s%d, v%d" % (vB, sy, vi))
    a("s_lshr_b32 s%d, s%d, 3" % (sy, sx))
    a("s_lshl_b32 s%d, s%d, 4" % (sy, sy))
    a("v_lshlrev_b32 v%d, 2, v%d" % (vA, vg))
    a("v_add_u32 v%d, s%d, v%d" % (vA, sy, vA))
    a.label(st32)
    for r in range(4):
        a("v_add_u32 v%d, %d, v%d" % (vt, r, vA))
        a("v_mul_u32_u24 v%d, v%d, v%d" % (vt, vt, vB))
        entry(V + 16 + r, sz)
    a("s_nop 0")
    for r in range(4):
        a("v_mul_f32 v%d, 0x%x, v%d" % (V + 16 + r, f32bits(0.125), V + 16 + r))
    fin = a.newlabel("tab_fin")
    a("s_branch %s" % fin)
    a.label(labs[4])
    a("s_sub_u32 s%d, s%d, %d" % (sx, s_f, T_M32I))
    a("s_and_b32 s%d, s%d, 1" % (sz, sx))
    a("s_mul_i32 s%d, s%d, 1536" % (sz, sz))
    a("s_lshr_b32 s%d, s%d, 2" % (sy, sx))
    a("s_lshl_b32 s%d, s%d, 4" % (sy, sy))
    a("v_add_u32 v%d, s%d, v%d" % (vB, sy, vi))
    a("v_lshlrev_b32 v%d, 6, v%d" % (vB, vB))
    a("s_bfe_u32 s%d, s%d, 0x10001" % (sy, sx))
    a("s_lshl_b32 s%d, s%d, 4" % (sy, sy))
    a("v_lshlrev_b32 v%d, 2, v%d" % (vA, vg))
    a("v_add_u32 v%d, s%d, v%d" % (vA, sy, vA))
    for j in range(8):
        a("v_add_u32 v%d, %d, v%d" % (vt, j & 3, vA))
        a("v_mul_u32_u24 v%d, v%d, v%d" % (vt, vt, vB))
        entry(V + j, sz, 512 if j >= 4 else 0)
    a.label(st16)
    a("s_nop 0")
    for i in range(4):
        a("v_cvt_pk_f16_f32 v%d, v%d, v%d" % (V + 16 + i, V + 2 * i, V + 2 * i + 1))
    a.label(fin)
    a("s_lshl_b32 s%d, s%d, 10" % (sx, s_f))
    a("s_add_u32 s%d, s%d, 0x%x" % (sx, sx, TAB_OFF))
    a("v_lshlrev_b32 v%d, 4, v1" % (V + 8))
    a("buffer_store_dwordx4 %s, v%d, %s, s%d offen sc1" % (v(V + 16, 4), V + 8, Rw, sx))
    a.label(end)

def gen_k0(a):
    a.kernel_begin("k0_kernel")
    a.vm_reset()
    a("s_cmp_ge_u32 s2, 256")
    a("s_cbranch_scc1 L_k0_end")
    a("s_load_dwordx4 s[20:23], s[0:1], %d" % KA_WR)
    a("s_load_dwordx2 s[24:25], s[0:1], %d" % KA_WS)
    a("s_load_dwordx2 s[26:27], s[0:1], %d" % KA_W2)
    a("v_lshrrev_b32 v1, 6, v0")
    a("s_nop 0")
    a("v_readfirstlane_b32 s18, v1")
    a("v_and_b32 v1, 63, v0")
    a("s_waitcnt lgkmcnt(0)")
    a.srd(4, 24, WS_USED)
    a.srd(8, 20, S * 289 * 2)
    a.srd(12, 22, S * 289 * 2)
    a.srd(28, 26, F * D * 2)
    f1 = job_wt(a, 4, 2, 4, 8, 12, 40)
    f2 = job_w2p(a, 24, 2, 18, 4, 28, 0, 44)
    f1(); f2()
    a("s_lshl_b32 s50, s18, 8")
    a("s_add_u32 s50, s50, s2")
    job_finv(a, 44, 50, 4, 52)
    a("s_sub_u32 s50, s50, 1024")
    job_tab(a, 44, 50, 4, 52)
    a.label("L_k0_end")
    a("s_endpgm")
    return ("k0_kernel", 256, 512, 32768, 64)


def job_finv_rm(a, V, s_gw, srd_ws, st):
    Rw = "s[%d:%d]" % (srd_ws, srd_ws + 3)
    skip = a.newlabel("finv_skip")
    a("s_cmp_ge_u32 s%d, 648" % s_gw)
    a("s_cbranch_scc1 %s" % skip)
    a("s_lshl_b32 s%d, s%d, 6" % (st, s_gw))
    for o in ["v_add_u32 v%d, s%d, v1" % (V + 8, st), "v_lshrrev_b32 v%d, 3, v%d" % (V + 9, V + 8), "v_mul_u32_u24 v%d, 7282, v%d" % (V + 9, V + 9),
              "v_lshrrev_b32 v%d, 16, v%d" % (V + 9, V + 9),
              "v_mul_u32_u24 v%d, 72, v%d" % (V + 10, V + 9), "v_sub_u32 v%d, v%d, v%d" % (V + 10, V + 8, V + 10), "v_lshlrev_b32 v%d, 3, v%d" % (V + 10, V + 10),
              "v_lshrrev_b32 v%d, 1, v%d" % (V + 11, V + 9), "v_and_b32 v%d, 1, v%d" % (V + 12, V + 9), "v_mul_u32_u24 v%d, 144, v%d" % (V + 12, V + 12),
              "v_cmp_eq_u32 vcc, 1, v%d" % (V + 9), "v_mov_b32 v%d, 288" % (V + 13), "s_nop 0",
              "v_cndmask_b32 v%d, v%d, v%d, vcc" % (V + 11, V + 11, V + 13), "v_cndmask_b32 v%d, v%d, 0, vcc" % (V + 12, V + 12),
              "v_mad_u32_u24 v%d, v%d, v%d, v%d" % (V + 10, V + 10, V + 11, V + 12),
              "v_cmp_gt_u32 vcc, 2, v%d" % (V + 9), "v_mov_b32 v%d, 2.0" % (V + 14), "s_nop 0", "v_cndmask_b32 v%d, v%d, 1.0, vcc" % (V + 14, V + 14)]:
        a(o)
    for j in range(8):
        cos576(a, V + j, V + 10, V + 12, V + 13)
        a("v_add_u32 v%d, v%d, v%d" % (V + 10, V + 10, V + 11))
        a("v_mul_f32 v%d, v%d, v%d" % (V + j, V + j, V + 14))
    for i in range(4):
        a("v_cvt_pk_bf16_f32 v%d, v%d, v%d" % (V + 16 + i, V + 2 * i, V + 2 * i + 1))
    a("v_lshlrev_b32 v%d, 4, v%d" % (V + 8, V + 8))
    a("s_mov_b32 s%d, 0x%x" % (st, W2P_OFF))
    a("buffer_store_dwordx4 %s, v%d, %s, s%d offen sc1" % (v(V + 16, 4), V + 8, Rw, st))
    a.label(skip)
```

```python
import os
from asmlib import *
from layout import *
from k1 import ids
import k0

UNIT = 36864
SP = 4 * UNIT
ROWP_LDS = SP
AUG_LDS = SP + 512
ZERO_LDS = AUG_LDS + 3456
FLG_LDS = ZERO_LDS + 64
STAT_LDS = SP + 4096
CSF_LDS = SP + 14336
K1_LDS = SP + 16384
WTS = STAT_LDS
SCR = STAT_LDS

XN = 88
ACCS = [16, 32]
FR = 48
NFR = 6
T = 72
XA = 232
AUGR = 236
EX = 240
NV = 256
OOB = 0x7ff00000
SC = os.environ.get("K1_SC", " sc1")
PF1 = int(os.environ.get("PF1", "0"))
ROT = int(os.environ.get("ROT", "1"))
SCH = os.environ.get("SCH", SC)
WS_PHI = [int(x) for x in os.environ.get("WSYNC", "5,6,7,8").split(",") if x]
SIGD = int(os.environ.get("SIGD", "5"))
NOW2P = int(os.environ.get("NOW2P", "1"))
C0 = -2.0 * 1.4426950408889634 * 0.7978845608028654

def emit_op(a, o):
    if isinstance(o, str): a(o)
    elif o[0] == "vm": a.vm(o[1], o[2])
    elif o[0] == "ds": a.ds(o[1], o[2])
    elif o[0] == "vwait": a.vm_wait(o[1])
    elif o[0] == "lwait": a.lg_wait(o[1])
    elif o[0] == "call": o[1]()
    elif o[0] == "cond":
        lab = a.newlabel("skip")
        a(o[1]); a("s_cbranch_scc0 %s" % lab)
        for x in o[2]: a(x)
        a.label(lab)
        if o[3]: a.vm_mark(o[3])
    elif o[0] == "mwait": a.vm_wait_mark(o[1])
    elif o[0] == "grp":
        for x in o[1]: emit_op(a, x)
    else: raise ValueError(o)

def split3(c, t, w0, w1, last):
    return ["v_cvt_pk_bf16_f32 v%d, v%d, v%d" % (t, c, c),
            "v_lshlrev_b32 v%d, 16, v%d" % (t, t),
            "v_sub_f32 v%d, v%d, v%d" % (t, c, t),
            "v_cvt_pk_bf16_f32 v%d, v%d, v%d" % (w0, c, t),
            "v_and_b32 v%d, 0xffff0000, v%d" % (c, w0),
            "v_sub_f32 v%d, v%d, v%d" % (t, t, c),
            "v_cvt_pk_bf16_f32 v%d, v%d, %s" % (w1, t, last)]

def gen_k1(a, hooks=None, name="k1_kernel"):
    a.kernel_begin(name)
    a("s_cmp_ge_u32 s2, 256")
    a("s_cbranch_scc1 L_k1_end")
    a.lg_reset()
    a.stamp()
    a.stamp(True)
    a("s_load_dwordx4 s[20:23], s[0:1], %d" % KA_X)
    a("s_load_dwordx2 s[24:25], s[0:1], %d" % KA_WI)
    a("s_load_dwordx4 s[36:39], s[0:1], %d" % KA_W1)
    a("s_load_dwordx2 s[56:57], s[0:1], %d" % KA_W2)
    a("s_load_dwordx4 s[52:55], s[0:1], %d" % KA_DBG)
    ids(a)
    a("s_lshl_b32 s28, s16, 7")
    a("s_lshl_b32 s29, s19, 5")
    a("s_add_u32 s33, s28, s29")
    a("v_and_b32 v11, 31, v1")
    a("v_lshrrev_b32 v14, 5, v1")
    a("v_lshlrev_b32 v3, 4, v1")
    a("v_mov_b32 v15, 0x%x" % OOB)
    a("s_lshl_b32 s34, s16, 3")
    a("s_add_u32 s34, s34, s18")
    a("s_mul_i32 s34, s34, %d" % (16 * 1152))
    a("s_mul_i32 s3, s18, %d" % (18 * 1024))
    a("v_lshrrev_b32 v4, 3, v1")
    a("v_lshrrev_b32 v5, 1, v4")
    a("v_and_b32 v6, 7, v1")
    a("v_xor_b32 v5, v5, v6")
    a("v_mul_u32_u24 v4, 1152, v4")
    a("v_lshl_add_u32 v8, v5, 4, v4")
    a("v_xor_b32 v9, 64, v8")
    a("s_waitcnt lgkmcnt(0)")
    a.srd(40, 20, S * D * 2)
    a.vm_reset()
    def xdma(i):
        return ["s_add_u32 m0, s3, %d" % (i * 1024), "s_add_u32 s30, s34, %d" % ((i // 9) * 9216 + (i % 9) * 128),
                ("vm", "buffer_load_dwordx4 v%d, s[40:43], s30 offen lds" % (8 + i // 9), "x")]
    a.srd(8, 36, D * F * 2)
    a("s_mul_i32 s35, s17, 576")
    CJ = XN + 40
    nocs = a.newlabel("nocs")
    a("s_cmp_lt_u32 s18, 6")
    a("s_cbranch_scc1 %s" % nocs)
    a("v_subrev_u32 v4, 384, v0")
    a("v_mul_u32_u24 v12, 1821, v4")
    a("v_lshrrev_b32 v12, 16, v12")
    a("v_mul_u32_u24 v13, 36, v12")
    a("v_sub_u32 v13, v4, v13")
    a("v_mul_u32_u24 v%d, 1152, v12" % (CJ + 48))
    a("v_lshl_add_u32 v%d, v13, 5, v%d" % (CJ + 48, CJ + 48))
    a("v_add_u32 v%d, %d, v%d" % (CJ + 48, AUG_LDS, CJ + 48))
    a("s_mov_b32 s29, %d" % (12 * 9216))
    a("v_mul_lo_u32 v12, v12, s29")
    a("v_lshl_add_u32 v12, v13, 4, v12")
    a("v_cmp_gt_u32 vcc, 108, v4")
    a("s_mul_i32 s28, s16, %d" % (36 * 9216))
    a("s_add_u32 s28, s28, s35")
    a("v_cndmask_b32 v12, v15, v12, vcc")
    for i in range(12):
        a("buffer_load_dwordx4 %s, v12, s[8:11], s28 offen" % v(CJ + 4 * i, 4))
        if i < 11: a("s_add_u32 s28, s28, 9216")
    a.label(nocs)
    NX0 = 6
    for i in range(NX0):
        for o in xdma(i): emit_op(a, o)
    a.srd(4, 54, WS_USED)
    a.srd(12, 38, F * 2)
    a.srd(44, 22, S * 289 * 2)
    a.srd(48, 24, S * 289 * 2)
    a("s_mov_b32 s58, s52"); a("s_mov_b32 s59, s53")
    a.srd(52, 56, F * D * 2)
    a.srd(20, 58, 256)
    lab = a.newlabel("nonce")
    a("s_or_b32 s28, s2, s18")
    a("s_cmp_eq_u32 s28, 0")
    a("s_cbranch_scc0 %s" % lab)
    a("s_memrealtime s[28:29]")
    a("s_waitcnt lgkmcnt(0)")
    a("s_lshl_b32 s28, s28, 3")
    a("s_or_b32 s28, s28, 8")
    a("v_mov_b32 v16, s28")
    a("v_mov_b32 v17, 0")
    a("s_mov_b64 exec, 1")
    a("buffer_store_dword v16, v17, s[20:23], 0 offen sc1")
    a("s_mov_b64 exec, -1")
    a.label(lab)
    a("s_lshl_b32 s101, s2, 4")
    a("s_add_u32 s101, s101, 0x%x" % FLAG_OFF)
    if int(os.environ.get("LIN", "0")):
        a("v_lshlrev_b32 v250, 7, v1")
        a("s_mul_i32 s28, s2, 20736")
        a("s_and_b32 s28, s28, 0xffffff80")
        a("s_cmp_ge_u32 s18, 3"); a("s_cselect_b32 s29, 3, 0"); a("s_sub_u32 s29, s18, s29"); a("s_lshl_b32 s29, s29, 13"); a("s_add_u32 s28, s28, s29")
        emit_op(a, ("cond", "s_cmp_lt_u32 s18, 3", ["buffer_load_dword v251, v250, s[8:11], s28 offen"], None))
        a("s_sub_u32 s29, s18, 3")
        emit_op(a, ("cond", "s_cmp_lt_u32 s29, 3", ["buffer_load_dword v251, v250, s[52:55], s28 offen"], None))
    if int(os.environ.get("CPF", "0")):
        a("s_getpc_b64 s[96:97]")
        a.label("L_k1_pc")
        a("s_lshr_b32 s28, s2, 3")
        a("s_lshl_b32 s28, s28, 3")
        a("s_add_u32 s28, s28, s18")
        a("s_lshl_b32 s28, s28, 7")
        for i in range(4):
            a("s_min_u32 s29, s28, L_k1_end - L_k1_pc")
            a("s_load_dword s%d, s[96:97], s29" % (92 + i))
            if i < 3: a("s_add_u32 s28, s28, 32768")
    a("v_bfe_u32 v13, v1, 2, 3")
    a("v_and_b32 v12, 3, v1")
    a("v_lshlrev_b32 v12, 4, v12")
    a("v_lshl_add_u32 v12, v14, 6, v12")
    a("v_mul_u32_u24 v2, 9216, v13")
    a("v_add_u32 v2, v2, v12")
    a("v_cmp_eq_u32 s[24:25], 1, v14")
    a("s_cmp_eq_u32 s26, 1")
    a("s_cbranch_scc1 L_k1_g1")
    ns0 = a.nstamp
    vm0 = list(a.vmq)
    FG = 16

    def group(g):
        a.nstamp = ns0
        a.vmq = list(vm0)
        a.lg_reset()
        a("s_mul_i32 s36, s17, 36")
        a("s_add_u32 s36, s36, %d" % (32 * g))
        a("v_add_u32 v%d, s36, v11" % T)
        a("v_lshrrev_b32 v%d, 1, v%d" % (T + 1, T))
        a("v_and_b32 v%d, 1, v%d" % (T + 2, T))
        a("v_mul_u32_u24 v%d, 144, v%d" % (T + 2, T + 2))
        a("v_cmp_eq_u32 vcc, 1, v%d" % T)
        a("v_mov_b32 v%d, 288" % (T + 3))
        a("s_nop 0")
        a("v_cndmask_b32 v%d, v%d, v%d, vcc" % (T + 1, T + 1, T + 3))
        a("v_cndmask_b32 v%d, v%d, 0, vcc" % (T + 2, T + 2))
        a("s_mul_i32 s37, s19, 144")
        a("v_lshlrev_b32 v%d, 3, v14" % (T + 3))
        a("v_add_u32 v%d, s37, v%d" % (T + 3, T + 3))
        a("v_mad_u32_u24 v%d, v%d, v%d, v%d" % (T + 3, T + 3, T + 1, T + 2))
        def mod576(x, t):
            a("v_cvt_f32_u32 v%d, v%d" % (t, x))
            a("v_mul_f32 v%d, 0x%x, v%d" % (t, f32bits(1.0 / 576), t))
            a("v_cvt_u32_f32 v%d, v%d" % (t, t))
            a("v_mul_u32_u24 v%d, 576, v%d" % (t, t))
            a("v_sub_u32 v%d, v%d, v%d" % (x, x, t))
        mod576(T + 3, T + 4)
        a("v_mul_u32_u24 v%d, 15, v%d" % (T + 5, T + 1))
        mod576(T + 5, T + 4)
        a("v_cvt_f32_u32 v%d, v%d" % (T + 6, T + 1))
        a("v_mul_f32 v%d, 0x%x, v%d" % (T + 6, f32bits(1.0 / 576), T + 6))
        a("v_cos_f32 v%d, v%d" % (T + 6, T + 6))
        a("v_mov_b32 v%d, 0" % (T + 7))
        a("v_add_f32 v%d, v%d, v%d" % (T + 6, T + 6, T + 6))
        a("v_mov_b32 v%d, 0x3f803f80" % (T + 2))
        rN, rJ, rJ15, rC = T + 3, T + 1, T + 5, T + 6
        for i in range(9):
            for j in range(2):
                tv = T + 8 + j
                a("v_cvt_f32_u32 v%d, v%d" % (tv, rN))
                a("v_add_u32 v%d, v%d, v%d" % (rN, rN, rJ if j == 0 else rJ15))
                a("v_mul_f32 v%d, 0x%x, v%d" % (tv, f32bits(1.0 / 576), tv))
                a("v_subrev_u32 v%d, 576, v%d" % (T + 4, rN))
                a("v_cos_f32 v%d, v%d" % (tv, tv))
                a("v_min_u32 v%d, v%d, v%d" % (rN, rN, T + 4))
            for j in range(2, 8):
                a("v_fma_f32 v%d, v%d, v%d, -v%d" % (T + 8 + j, rC, T + 7 + j, T + 6 + j))
                if j % 2 == 1:
                    k = (j - 3) // 2
                    a("v_cvt_pk_bf16_f32 v%d, v%d, v%d" % (FG + 4 * i + k, T + 8 + 2 * k, T + 8 + 2 * k + 1))
            a("v_cvt_pk_bf16_f32 v%d, v%d, v%d" % (FG + 4 * i + 3, T + 14, T + 15))
            for k in range(4):
                a("v_dot2c_f32_bf16 v%d, v%d, v%d" % (T + 7, FG + 4 * i + k, T + 2))
            for xi in range(NX0 + (12 * i) // 9, NX0 + (12 * (i + 1)) // 9):
                for o in xdma(xi): emit_op(a, o)
        a("s_lshl_b32 s36, s19, 8")
        a("s_add_u32 s36, s36, %d" % (CSF_LDS + 1024 * g))
        a("v_lshlrev_b32 v12, 2, v1")
        a("v_add_u32 v12, s36, v12")
        a("ds_write_b32 v12, v%d" % (T + 7))
        a("s_lshl_b32 s36, s18, 8")
        a("s_add_u32 s36, s36, s2")
        if g == 0:
            a("v_lshlrev_b32 v12, 2, v0")
            a("v_add_u32 v12, %d, v12" % ZERO_LDS)
            a("v_mov_b32 v13, 0")
            a("v_cmp_gt_u32 vcc, 32, v0")
            a("s_and_saveexec_b64 s[36:37], vcc")
            a("ds_write_b32 v12, v13")
            a("s_mov_b64 exec, s[36:37]")
        else:
            a("s_sub_u32 s36, s36, 1024")
            k0.job_tab(a, XN + 16, 36, 4, 37)
            nocs = a.newlabel("nocs2")
            a("s_cmp_lt_u32 s18, 6")
            a("s_cbranch_scc1 %s" % nocs)
            a("s_waitcnt vmcnt(%d)" % len(a.vmq))
            for k in range(4):
                a("v_lshlrev_b32 v%d, 16, v%d" % (T + 2 * k, CJ + k))
                a("v_and_b32 v%d, 0xffff0000, v%d" % (T + 2 * k + 1, CJ + k))
            for i in range(1, 12):
                for k in range(4):
                    a("v_lshlrev_b32 v%d, 16, v%d" % (T + 8 + 2 * k, CJ + 4 * i + k))
                    a("v_and_b32 v%d, 0xffff0000, v%d" % (T + 9 + 2 * k, CJ + 4 * i + k))
                for k in range(8):
                    a("v_add_f32 v%d, v%d, v%d" % (T + k, T + k, T + 8 + k))
            a("v_cmp_gt_u32 vcc, 492, v0")
            a("s_and_saveexec_b64 s[36:37], vcc")
            a("ds_write_b128 v%d, %s" % (CJ + 48, v(T, 4)))
            a("ds_write_b128 v%d, %s offset:16" % (CJ + 48, v(T + 4, 4)))
            a("s_mov_b64 exec, s[36:37]")
            a.label(nocs)
        for o in ["s_cmp_ge_u32 s18, 3", "s_cselect_b32 s38, 3, 0", "s_sub_u32 s38, s18, s38", "s_lshl_b32 s38, s38, 12", "s_add_u32 s38, s38, %d" % SCR,
                  "s_lshl_b32 s56, s18, 8", "s_add_u32 s56, s56, s2",
                  "s_mul_hi_u32 s32, s56, 0x%x" % ((2**32 + 8) // 9), "s_mul_i32 s28, s32, 9", "s_sub_u32 s28, s56, s28",
                  "s_mul_i32 s3, s32, %d" % (32 * 1152), "s_lshl_b32 s57, s28, 7", "s_add_u32 s3, s3, s57",
                  "v_lshrrev_b32 v4, 3, v1", "v_mul_u32_u24 v4, 1152, v4", "v_and_b32 v5, 7, v1",
                  "v_lshl_add_u32 v%d, v5, 4, v4" % (EX + 8),
                  "s_mul_i32 s32, s32, 36", "s_lshl_b32 s28, s28, 2", "s_add_u32 s32, s32, s28", "s_lshl_b32 s32, s32, 10",
                  "s_add_u32 s32, s32, 0x%x" % W2P_OFF,
                  "s_mov_b32 s100, s56",
                  "s_and_b32 s56, s2, 31", "s_lshr_b32 s57, s2, 5",
                  "s_lshr_b32 s28, s56, 4", "s_lshl_b32 s28, s28, 4", "s_and_b32 s36, s56, 15", "s_lshl_b32 s36, s36, 7", "s_add_u32 s28, s28, s36",
                  "s_mul_i32 s28, s28, 578", "s_mul_i32 s36, s57, 72", "s_add_u32 s28, s28, s36",
                  "v_mul_u32_u24 v4, 13108, v0", "v_lshrrev_b32 v4, 16, v4",
                  "v_mul_u32_u24 v5, 5, v4", "v_sub_u32 v5, v0, v5",
                  "v_lshrrev_b32 v6, 4, v4", "v_lshlrev_b32 v6, 5, v6", "v_and_b32 v7, 15, v4",
                  "v_add_u32 v6, v6, v7", "v_mul_u32_u24 v6, 578, v6",
                  "v_lshl_add_u32 v6, v5, 4, v6", "v_and_b32 v4, 1, v4", "v_lshlrev_b32 v4, 1, v4",
                  "v_sub_u32 v6, v6, v4", "v_add_u32 v%d, s28, v6" % (EX + 9),
                  "s_mul_i32 s57, s57, %d" % (36 * 8192), "s_lshl_b32 s56, s56, 8",
                  "s_add_u32 s56, s56, s57", "s_add_u32 s56, s56, 0x%x" % WT_OFF]:
            a(o)
        a("s_lshl_b32 s36, s19, 5")
        a("v_add_u32 v13, s36, v11")
        a("v_bfe_u32 v12, v13, 1, 3")
        a("v_lshrrev_b32 v10, 3, v13")
        a("v_mul_u32_u24 v10, 9216, v10")
        a("v_and_b32 v9, 7, v13")
        a("v_lshl_add_u32 v10, v9, 7, v10")
        for q in range(4):
            a("v_add_u32 v%d, %d, v14" % (4 + q, 2 * q))
            a("v_xor_b32 v%d, v%d, v12" % (4 + q, 4 + q))
            a("v_lshl_add_u32 v%d, v%d, 4, v10" % (4 + q, 4 + q))
        a("v_lshlrev_b32 v9, 5, v13")
        a("v_add_u32 v9, %d, v9" % STAT_LDS)
        a("v_lshl_add_u32 v8, v14, 3, v9")
        a.vm_wait("x", " lgkmcnt(0)")
        a("s_barrier")
        a.stamp()
        own = list(range(18 * g, 18 * g + 18)); oth = list(range(18 * (1 - g), 18 * (1 - g) + 18))
        def xrd(s_): a("ds_read_b128 %s, v%d offset:%d" % (v(XN + 4 * s_, 4), 4 + (s_ & 3), (s_ >> 2) * 1024))
        if g == 1:
            pub = a.newlabel("nopub")
            a("s_cmp_eq_u32 s18, 7")
            a("s_cbranch_scc0 %s" % pub)
            a("v_lshlrev_b32 v12, 5, v1")
            a("v_add_u32 v13, %d, v12" % AUG_LDS)
            for kk in range(3):
                for hh in range(2):
                    a("ds_read_b128 %s, v13 offset:%d" % (v(XA + 8 * kk + 4 * hh if kk < 2 else T + 4 * hh, 4), kk * 1152 + hh * 16))
            a("s_lshl_b32 s36, s17, 4")
            a("s_add_u32 s36, s36, s16")
            a("s_mul_i32 s36, s36, 1152")
            a("s_add_u32 s36, s36, 0x%x" % CS_OFF)
            a("v_cmp_gt_u32 vcc, 36, v1")
            a("s_nop 1")
            a("v_cndmask_b32 v12, v15, v12, vcc")
            a("s_waitcnt lgkmcnt(0)")
            for i in range(8):
                a("v_add_f32 v%d, v%d, v%d" % (XA + i, XA + i, XA + 8 + i))
                a("v_add_f32 v%d, v%d, v%d" % (XA + i, XA + i, T + i))
            a("buffer_store_dwordx4 %s, v12, s[4:7], s36 offen sc1" % v(XA, 4))
            a("buffer_store_dwordx4 %s, v12, s[4:7], s36 offen offset:16 sc1" % v(XA + 4, 4))
            a.label(pub)
        csmark = len(a.vmq)
        a("v_mov_b32 v253, 0")
        a.vm("buffer_load_dword v255, v253, s[20:23], 0 offen sc1", "nonce")
        if PF1:
            a("s_and_b32 s28, s35, 0xffffff80")
            a("s_and_b32 s29, s16, 3")
            a("s_mul_i32 s29, s29, %d" % (144 * 9216))
            a("s_add_u32 s28, s28, s29")
            for rd_ in range(2):
                a("v_add_u32 v12, %d, v0" % (512 * rd_))
                a("v_mul_u32_u24 v13, 13108, v12")
                a("v_lshrrev_b32 v13, 16, v13")
                a("v_mul_u32_u24 v250, 5, v13")
                a("v_sub_u32 v250, v12, v250")
                a("v_mul_u32_u24 v13, 9216, v13")
                a("v_lshl_add_u32 v13, v250, 7, v13")
                if rd_ == 0:
                    a.vm("buffer_load_dword v251, v13, s[8:11], s28 offen", "pf")
                else:
                    a("v_cmp_gt_u32 vcc, 720, v12")
                    a("s_nop 1")
                    a("v_cndmask_b32 v13, v15, v13, vcc")
                    if g == 0: a.vm("buffer_load_dword v252, v13, s[8:11], s28 offen", "pf")
        a("v_mul_u32_u24 v12, 1152, v11")
        if not NOW2P: emit_op(a, ("cond", "s_cmp_lt_u32 s100, 1296", ["buffer_load_dword v254, v12, s[52:55], s3 offen"], None))
        for s_ in own: xrd(s_)
        for i in range(8): a("v_mov_b32 v%d, 0" % (T + 8 + i))
        a("v_mov_b32 v%d, 0x3f803f80" % (T + 7))
        for n in range(18):
            xrd(oth[n])
            a("s_waitcnt lgkmcnt(15)")
            for kk in range(4):
                x = XN + 4 * own[n] + kk
                a("v_dot2c_f32_bf16 v%d, v%d, v%d" % (T + 8 + kk, x, T + 7))
                a("v_dot2c_f32_bf16 v%d, v%d, v%d" % (T + 12 + kk, x, x))
        a("s_nop 2")
        for A in (T + 8, T + 12):
            a("v_add_f32 v%d, v%d, v%d" % (A, A, A + 1))
            a("v_add_f32 v%d, v%d, v%d" % (A + 2, A + 2, A + 3))
        a("v_add_f32 v%d, v%d, v%d" % (T + 8, T + 8, T + 10))
        a("v_add_f32 v%d, v%d, v%d" % (T + 9, T + 12, T + 14))
        a("ds_write_b64 v8, %s offset:%d" % (v(T + 8, 2), 16 * g))
        a("v_bfe_u32 v13, v1, 2, 2")
        a("v_lshlrev_b32 v12, 6, v13")
        a("v_bfe_u32 v13, v1, 4, 1")
        a("v_lshl_add_u32 v12, v13, 5, v12")
        a("v_and_b32 v13, 3, v1")
        a("v_lshl_add_u32 v12, v13, 3, v12")
        a("v_lshl_add_u32 v12, v14, 10, v12")
        a("v_add_u32 v12, %d, v12" % (512 * g))
        a("s_lshr_b32 s36, s19, 1")
        a("s_mul_i32 s36, s36, %d" % UNIT)
        a("s_and_b32 s37, s19, 1")
        a("s_mul_i32 s37, s37, %d" % (9 * 2048))
        a("s_add_u32 s36, s36, s37")
        a("v_add_u32 v13, s36, v3")
        a("s_lshl_b32 s29, s27, 6")
        a("s_add_u32 s35, s35, s29")
        a("s_mul_i32 s34, s18, %d" % (8 * 9216))
        a("s_add_u32 s35, s35, s34")
        a("s_lshl_b32 s34, s18, 10")
        a("s_mul_i32 s29, s27, 640")
        a("s_sub_u32 s31, s35, s29")
        a("s_and_b32 s96, s16, %d" % (3 if ROT else 0))
        for pi in range(4):
            a("s_add_u32 s29, s96, %d" % pi)
            a("s_and_b32 s29, s29, 3")
            a("s_lshl_b32 s29, s29, 7")
            a("s_add_u32 s%d, s35, s29" % (92 + pi))
        a("s_waitcnt lgkmcnt(0)")
        a("s_barrier")
        a("ds_read_b128 %s, v9" % v(T, 4))
        a("ds_read_b128 %s, v9 offset:16" % v(T + 4, 4))
        for i in range(9):
            a("ds_write_b128 v13, %s offset:%d" % (v(FG + 4 * i, 4), i * 2048 + g * 1024))
        a("v_mov_b32 v4, v12")
        a("v_add_u32 v5, 49152, v12")
        a("v_add_u32 v6, 98304, v12")
        ndma = 5 if g == 0 else 4
        def dma_list(u):
            pi, kh = (u - 2) >> 1, u & 1
            out = []
            for n in range(ndma):
                off = (0 if pi < 4 else 512) + (kh * 288 + n * 64) * 9216
                out.append(("grp", ["s_add_u32 m0, s34, %d" % ((u % 4) * UNIT + n * 8192),
                                    "s_add_u32 s30, s%d, %d" % (92 + pi if pi < 4 else 31, off),
                                    ("vm", "buffer_load_dwordx4 v2, s[8:11], s30 offen lds", "u%d" % u)]))
            return out
        a("s_waitcnt lgkmcnt(9)")
        for o in ["v_add_f32 v%d, v%d, v%d" % (T, T, T + 2), "v_add_f32 v%d, v%d, v%d" % (T + 4, T + 4, T + 6),
                  "v_add_f32 v%d, v%d, v%d" % (T + 1, T + 1, T + 3), "v_add_f32 v%d, v%d, v%d" % (T + 5, T + 5, T + 7),
                  "v_add_f32 v%d, v%d, v%d" % (T, T, T + 4), "v_add_f32 v%d, v%d, v%d" % (T + 1, T + 1, T + 5),
                  "v_mul_f32 v%d, 0x%x, v%d" % (T, f32bits(1.0 / 576), T),
                  "v_mul_f32 v%d, 0x%x, v%d" % (T + 1, f32bits(1.0 / 576), T + 1),
                  "v_fma_f32 v%d, -v%d, v%d, v%d" % (T + 1, T, T, T + 1),
                  "v_max_f32 v%d, 0, v%d" % (T + 1, T + 1),
                  "v_cvt_pk_bf16_f32 v%d, -v%d, v%d" % (T + 2, T, T + 1),
                  "v_and_b32 v%d, 0xffff0000, v%d" % (T + 1, T + 2),
                  "v_add_f32 v%d, 0x%x, v%d" % (T + 1, f32bits(1e-5), T + 1),
                  "v_cvt_pk_bf16_f32 v%d, v%d, v%d" % (T + 1, T + 1, T + 1),
                  "v_lshlrev_b32 v%d, 16, v%d" % (T + 1, T + 1),
                  "v_sqrt_f32 v%d, v%d" % (T + 1, T + 1),
                  "v_and_b32 v%d, 0xffff, v%d" % (T + 2, T + 2),
                  "v_cvt_pk_bf16_f32 v%d, v%d, v%d" % (T + 1, T + 1, T + 1),
                  "v_lshl_or_b32 v%d, v%d, 16, v%d" % (XA, T + 2, T + 2),
                  "v_and_b32 v%d, 0xffff0000, v%d" % (T + 3, T + 1),
                  "v_or_b32 v%d, v%d, v%d" % (XA + 1, T + 3, T + 2),
                  "v_rcp_f32 v%d, v%d" % (T, T + 3),
                  "v_lshrrev_b32 v%d, 3, v9" % (T + 4),
                  "v_add_u32 v%d, %d, v%d" % (T + 4, ROWP_LDS - STAT_LDS // 8, T + 4),
                  "v_mul_f32 v%d, 0x%x, v%d" % (T + 1, f32bits(1.0 / 24), T),
                  "ds_write_b32 v%d, v%d" % (T + 4, T + 1),
                  "v_add_u32 v13, %d, v3" % (1024 * g)]:
            a(o)
        a("s_waitcnt lgkmcnt(0)")
        a("s_barrier")
        ok = a.newlabel("nok"); lp = a.newlabel("nlp")
        a.vm_wait("nonce")
        a("v_readfirstlane_b32 s59, v255")
        a("s_cmp_lg_u32 s59, 0")
        a("s_cbranch_scc1 %s" % ok)
        a("s_mov_b32 s28, 0")
        a.label(lp)
        a("s_sleep 8")
        a("buffer_load_dword v255, v253, s[20:23], 0 offen sc1")
        a("s_waitcnt vmcnt(0)")
        a("v_readfirstlane_b32 s59, v255")
        a("s_cmp_lg_u32 s59, 0")
        a("s_cbranch_scc1 %s" % ok)
        a("s_add_u32 s28, s28, 1")
        a("s_cmp_lt_u32 s28, 0x40000")
        a("s_cbranch_scc1 %s" % lp)
        a.label(ok)
        a.lg_reset()
        a.stamp()

        def prog_side():
            wl = []
            for arr in range(2):
                wl += ["s_add_u32 m0, s34, %d" % (WTS + arr * 5120), "s_nop 0",
                       "buffer_load_dwordx4 v%d, s[%d:%d], 0 offen lds" % (EX + 9, 44 + 4 * arr, 47 + 4 * arr)]
            ops = [("cond", "s_cmp_lt_u32 s18, 5", wl, "wt")]
            ops += dma_list(2)
            ops += ["v_mov_b32 v%d, 0" % (XA + 2), "v_mov_b32 v%d, 0" % (XA + 3), "v_mov_b32 v%d, 0" % (AUGR + 2), "v_mov_b32 v%d, 0" % (AUGR + 3),
                   "v_cndmask_b32 v%d, v%d, 0, s[24:25]" % (XA, XA), "v_cndmask_b32 v%d, v%d, 0, s[24:25]" % (XA + 1, XA + 1),
                   "v_mul_f32 v9, 0x%x, v%d" % (f32bits(C0), T),
                   "v_mul_f32 v10, v%d, v%d" % (T, T), "v_mul_f32 v10, v10, v%d" % T, "v_mul_f32 v10, 0x%x, v10" % f32bits(C0 * 0.044715)]
            ops += ["s_lshr_b32 s29, s33, 4", "v_bfe_u32 v%d, v1, 4, 1" % (T + 1), "v_add_u32 v%d, s29, v%d" % (T + 1, T + 1), "s_mov_b32 s29, %d" % (144 * 1024),
                    "v_mul_lo_u32 v7, v%d, s29" % (T + 1), "v_lshl_add_u32 v7, v14, 8, v7", "v_and_b32 v%d, 15, v1" % (T + 1), "v_lshl_add_u32 v7, v%d, 4, v7" % (T + 1),
                    "v_add_u32 v7, 0x%x, v7" % H_OFF,
                    "v_add_u32 v%d, %d, v11" % (T + 1, 32 * g), "s_mul_i32 s29, s17, 36", "v_add_u32 v12, s29, v%d" % (T + 1), "v_lshlrev_b32 v12, 12, v12",
                    "v_lshl_add_u32 v12, v14, 4, v12", "s_lshl_b32 s29, s33, 1", "s_add_u32 s29, s29, 0x%x" % X1_OFF, "v_add_u32 v12, s29, v12",
                    ("grp", ["v_cmp_gt_u32 vcc, 36, v%d" % (T + 1), "s_mul_i32 s39, s17, 9", "s_nop 0", "v_cndmask_b32 v12, v15, v12, vcc"])]
            ops += ["v_lshlrev_b32 v%d, 2, v11" % (T + 1), "v_add_u32 v%d, %d, v%d" % (T + 1, CSF_LDS + 1024 * g, T + 1)]
            for k in range(8): ops.append(("ds", "ds_read_b32 v%d, v%d offset:%d" % (T + 8 + k, T + 1, 128 * k), "csf"))
            ops += ["v_mov_b32 v11, v%d" % (T + 3),
                    "v_and_b32 v8, 31, v1", "v_lshlrev_b32 v8, 3, v8", "v_add_u32 v8, %d, v8" % AUG_LDS, "v_mov_b32 v%d, %d" % (T + 1, ZERO_LDS),
                    "v_cndmask_b32 v8, v8, v%d, s[24:25]" % (T + 1), ("lwait", "csf")]
            for k in range(1, 8): ops.append("v_add_f32 v%d, v%d, v%d" % (T + 8, T + 8, T + 8 + k))
            ops += split3(T + 8, T + 9, AUGR, AUGR + 1, "0")
            ops += ["v_cndmask_b32 v%d, v%d, 0, s[24:25]" % (AUGR, AUGR), "v_cndmask_b32 v%d, v%d, 0, s[24:25]" % (AUGR + 1, AUGR + 1)]
            return ops
        def prog_w2(rnd):
            cmpa = "s_cmp_eq_u32 s57, %d" % (rnd + 1)
            ld = []
            for n2 in range(2):
                wl = []
                for n in (2 * n2, 2 * n2 + 1):
                    wl += ["s_add_u32 m0, s38, %d" % (n * 1024), "s_add_u32 s28, s3, %d" % (n * 8 * 1152),
                           "buffer_load_dwordx4 v%d, s[52:55], s28 offen lds" % (EX + 8)]
                ld.append(("cond", cmpa, wl, "w2p"))
            fin = [("mwait", "w2p")]
            for hf in range(2):
                for nt in (2 * hf, 2 * hf + 1):
                    for h in range(2):
                        fin.append(("ds", "ds_read_b64_tr_b16 %s, v%d offset:%d" % (v(EX + 4 * (nt & 1) + 2 * h, 2), EX + 9, nt * 32 + h * 1024), "w2r"))
                fin.append(("lwait", "w2r"))
                fin.append(("cond", cmpa, ["buffer_store_dwordx4 %s, v3, s[4:7], s32 offen offset:%d%s" % (v(EX + 4 * (nt & 1), 4), nt * 1024, SC) for nt in (2 * hf, 2 * hf + 1)], "w2st"))
                fin.append("s_nop 0")
            return ld, fin
        def prog_w2addr():
            return ["v_lshrrev_b32 v%d, 5, v1" % (EX + 9), "v_lshlrev_b32 v%d, 4, v%d" % (EX + 9, EX + 9), "v_bfe_u32 v%d, v1, 4, 1" % (EX + 10),
                    "v_lshl_add_u32 v%d, v%d, 2, v%d" % (EX + 9, EX + 10, EX + 9), "v_bfe_u32 v%d, v1, 2, 2" % (EX + 10), "v_add_u32 v%d, v%d, v%d" % (EX + 9, EX + 9, EX + 10),
                    "v_lshlrev_b32 v%d, 7, v%d" % (EX + 9, EX + 9), "v_and_b32 v%d, 3, v1" % (EX + 10), "v_lshl_add_u32 v%d, v%d, 3, v%d" % (EX + 9, EX + 10, EX + 9),
                    "v_add_u32 v%d, s38, v%d" % (EX + 9, EX + 9),
                    ("grp", ["s_cmp_ge_u32 s18, 3", "s_cselect_b32 s57, 2, 1", "s_cmp_lt_u32 s100, 1296", "s_cselect_b32 s57, s57, 0"])]
        def prog_wt():
            ops = ["v_and_b32 v%d, 15, v0" % (T + 4), "v_mul_u32_u24 v%d, 80, v%d" % (T + 5, T + 4), "v_and_b32 v%d, 1, v0" % (T + 6),
                   "v_lshl_add_u32 v%d, v%d, 1, v%d" % (T + 5, T + 6, T + 5), "v_lshrrev_b32 v%d, 4, v0" % (T + 6),
                   "v_lshl_add_u32 v%d, v%d, 1, v%d" % (T + 5, T + 6, T + 5), "v_add_u32 v%d, %d, v%d" % (T + 5, WTS, T + 5),
                   "v_lshlrev_b32 v%d, 4, v%d" % (T + 4, T + 4), "v_lshl_add_u32 v%d, v%d, 13, v%d" % (T + 4, T + 6, T + 4),
                   ("grp", ["v_cmp_gt_u32 vcc, 80, v0", "v_add_u32 v%d, %d, v%d" % (T + 6, 32 * 8192, T + 4), "s_nop 0", "v_cndmask_b32 v%d, v15, v%d, vcc" % (T + 6, T + 6)])]
            for rd_ in range(2):
                for r in range(4):
                    ops.append(("ds", "ds_read_u16 v%d, v%d offset:%d" % (EX + 4 * rd_ + r, T + 5, r * 1280 + 64 * rd_), "wtr"))
                    ops.append(("ds", "ds_read_u16 v%d, v%d offset:%d" % (T + 8 + 4 * rd_ + r, T + 5, 5120 + r * 1280 + 64 * rd_), "wtr"))
            ops.append(("lwait", "wtr"))
            for e in range(8): ops.append("v_lshl_or_b32 v%d, v%d, 16, v%d" % (EX + e, T + 8 + e, EX + e))
            return ops
        def prog_st2():
            ops = [("vm", "buffer_store_dwordx4 %s, v%d, s[4:7], s56 offen%s" % (v(EX, 4), T + 4, SC), "side"),
                   ("cond", "s_cmp_lt_u32 s18, 2", ["buffer_store_dwordx4 %s, v%d, s[4:7], s56 offen%s" % (v(EX + 4, 4), T + 6, SC)], None)]
            return ops
        def cs_flag():
            pub = a.newlabel("noflag")
            a("s_cmp_eq_u32 s18, 7")
            a("s_cbranch_scc0 %s" % pub)
            a("v_mov_b32 v%d, s59" % (T + 2))
            a("v_mov_b32 v%d, 0" % (T + 1))
            a("s_waitcnt vmcnt(%d)" % min(63, len(a.vmq) - csmark))
            a("s_mov_b64 exec, 1")
            a("buffer_store_dword v%d, v%d, s[4:7], s101 offen sc1" % (T + 2, T + 1))
            a("s_mov_b64 exec, -1")
            a.label(pub)
        def cs_chk():
            a("v_cmp_eq_u32 vcc, s59, v254")
            a("s_nop 1")
            a("s_cmp_eq_u64 vcc, -1")
        def cs_fetch():
            skip = a.newlabel("csskip"); lp = a.newlabel("cspoll"); ok = a.newlabel("csok")
            a("s_cmp_lt_u32 s18, 5")
            a("s_cbranch_scc0 %s" % skip)
            a.vm_wait_mark("cspl")
            cs_chk()
            a("s_cbranch_scc1 %s" % ok)
            a("s_mov_b32 s33, 0")
            a.label(lp)
            a("s_sleep 4")
            a("buffer_load_dword v254, v253, s[4:7], 0 offen sc1")
            a("s_waitcnt vmcnt(0)")
            cs_chk()
            a("s_cbranch_scc1 %s" % ok)
            a("s_add_u32 s33, s33, 1")
            a("s_cmp_lt_u32 s33, 0x40000")
            a("s_cbranch_scc1 %s" % lp)
            a.label(ok)
            a("s_mul_i32 s28, s17, %d" % (16 * 1152))
            a("s_add_u32 s28, s28, 0x%x" % CS_OFF)
            a("s_mul_i32 s29, s17, 576")
            a("v_lshlrev_b32 v253, 3, v251")
            a("buffer_load_dwordx2 v[254:255], v253, s[12:15], s29 offen")
            for kk in range(4):
                a("buffer_load_dwordx4 %s, v252, s[4:7], s28 offen offset:%d sc1" % (v(T + 4 * kk, 4), kk * 1152))
            a.label(skip)
            a.vm_mark("csl")
        def prog_dft():
            acc = ACCS[0]
            ops = ["s_lshl_b32 s28, s19, 7", "v_lshlrev_b32 v%d, 4, v14" % T, "v_add_u32 v%d, s28, v%d" % (T, T), "v_add_u32 v%d, %d, v%d" % (T, ROWP_LDS, T)]
            RP = [EX, EX + 4, T + 4, T + 12]
            for i in range(4): ops.append(("ds", "ds_read_b128 %s, v%d offset:%d" % (v(RP[i], 4), T, 32 * i), "rowp"))
            ops.append(("lwait", "rowp"))
            for i in range(16):
                sc = RP[i >> 2] + (i & 3)
                ops.append("v_mul_f32 v%d, v%d, v%d" % (acc + i, acc + i, sc))
            for i in range(8): ops.append("v_cvt_pk_f16_f32 v%d, v%d, v%d" % (T + 8 + i, acc + 2 * i, acc + 2 * i + 1))
            ops += ["s_nop 0", "s_nop 0"]
            for i in (0, 2):
                ops += ["v_permlane32_swap_b32 v%d, v%d" % (T + 8 + 2 * i, T + 10 + 2 * i), "v_permlane32_swap_b32 v%d, v%d" % (T + 9 + 2 * i, T + 11 + 2 * i)]
            for i in range(2):
                ops.append(("vm", "buffer_store_dwordx4 %s, v12, s[4:7], 0 offen offset:%d%s" % (v(T + 8 + 4 * i, 4), 32 * i, SC), "side"))
            return ops
        def prog_cs0():
            return [("grp", ["s_and_b32 s28, s2, 0xc3", "v_and_b32 v253, 15, v1", "v_lshlrev_b32 v253, 2, v253",
                             "v_or_b32 v253, s28, v253", "v_lshlrev_b32 v253, 4, v253", "v_add_u32 v253, 0x%x, v253" % FLAG_OFF]),
                    ("cond", "s_cmp_lt_u32 s18, 5", ["buffer_load_dword v254, v253, s[4:7], 0 offen sc1"], "cspl"),
                    ("grp", ["s_lshl_b32 s28, s18, 4", "v_and_b32 v251, 15, v1", "v_add_u32 v251, s28, v251"]), "v_lshrrev_b32 v252, 4, v1", "v_mul_u32_u24 v252, %d, v252" % (4 * 1152),
                    "v_lshl_add_u32 v252, v251, 4, v252",
                    ("grp", ["v_cmp_gt_u32 vcc, 72, v251", "s_nop 1", "v_cndmask_b32 v252, v15, v252, vcc"])]
        def prog_cs2():
            ops = [("mwait", "csl")]
            for kk in range(1, 4):
                for i in range(4): ops.append("v_add_f32 v%d, v%d, v%d" % (T + i, T + i, T + 4 * kk + i))
            for sw in ("32", "16"):
                for i in range(4): ops.append("v_mov_b32 v%d, v%d" % (T + 4 + i, T + i))
                ops.append("s_nop 0")
                for i in range(4): ops.append("v_permlane%s_swap_b32 v%d, v%d" % (sw, T + i, T + 4 + i))
                for i in range(4): ops.append("v_add_f32 v%d, v%d, v%d" % (T + i, T + i, T + 4 + i))
            ops += ["v_lshlrev_b32 v%d, 16, v254" % (T + 4), "v_and_b32 v%d, 0xffff0000, v254" % (T + 5), "v_lshlrev_b32 v%d, 16, v255" % (T + 6), "v_and_b32 v%d, 0xffff0000, v255" % (T + 7)]
            for i in range(4): ops += split3(T + i, 253, T + 8 + 2 * i, T + 9 + 2 * i, "v%d" % (T + 4 + i))
            ops += ["v_lshlrev_b32 v253, 5, v251", "v_add_u32 v253, %d, v253" % AUG_LDS, "v_and_b32 v252, 48, v1", "v_lshl_add_u32 v252, v252, 3, v251",
                    ("grp", ["v_cmp_gt_u32 vcc, 72, v252", "s_and_saveexec_b64 s[28:29], vcc", ("ds", "ds_write_b128 v253, %s" % v(T + 8, 4), "augw"),
                             ("ds", "ds_write_b128 v253, %s offset:16" % v(T + 12, 4), "augw"), "s_mov_b64 exec, -1"])]
            return ops
        def aug_read(p):
            sk = 36 + (p & 1); pi = p - 1
            ops = ["s_add_u32 s%d, s96, %d" % (sk, pi), "s_and_b32 s%d, s%d, 3" % (sk, sk), "s_lshl_b32 s%d, s%d, 1" % (sk, sk),
                   "s_add_u32 s%d, s%d, s27" % (sk, sk), "s_add_u32 s%d, s%d, %d" % (sk, sk, g)]
            if pi == 4:
                ops += ["s_cmp_eq_u32 s27, 1", "s_cselect_b32 s%d, 0, 8" % sk]
            ops += ["s_lshl_b32 s28, s%d, 8" % sk, "v_mov_b32 v15, s28",
                    "v_cndmask_b32 v15, v15, 0, s[24:25]", "v_add_u32 v15, v15, v8",
                    ("ds", "ds_read_b64 %s, v15" % v(AUGR, 2), "aug")]
            return [("grp", ops)]
        def gelu_ops(p):
            ops = []
            for h2 in range(2):
                acc = ACCS[p & 1] + 8 * h2
                for i in range(8): ops.append("v_mul_f32 v%d, v%d, v%d" % (T + i, acc + i, acc + i))
                for i in range(8): ops.append("v_fma_f32 v%d, v%d, v10, v9" % (T + i, T + i))
                for i in range(8): ops.append("v_mul_f32 v%d, v%d, v%d" % (T + i, acc + i, T + i))
                for i in range(8): ops.append("v_exp_f32 v%d, v%d" % (T + i, T + i))
                for i in range(8): ops.append("v_fma_f32 v%d, v%d, v11, v11" % (T + i, T + i))
                for i in range(8): ops.append("v_rcp_f32 v%d, v%d" % (T + i, T + i))
                for i in range(8): ops.append("v_mul_f32 v%d, v%d, v%d" % (T + i, acc + i, T + i))
                for i in range(4): ops.append("v_cvt_pk_bf16_f32 v%d, v%d, v%d" % (T + 8 + 4 * h2 + i, T + 2 * i, T + 2 * i + 1))
                ops.append(("grp", ["s_add_u32 s28, s39, s%d" % (36 + (p & 1)), "s_lshl_b32 s28, s28, 10",
                                    ("vm", "buffer_store_dwordx4 %s, v7, s[4:7], s28 offen offset:%d%s" % (v(T + 8 + 4 * h2, 4), 512 * h2, SCH), "h%d" % p)]))
            return ops

        ntile = 6 if g == 0 else 5
        nsteps = 36 * ntile
        LA = NFR - 1
        def rd(i):
            phi, st = divmod(i, 18)
            b = FR + 4 * (i % NFR)
            if phi < 2:
                if i == 18: a("v_add_u32 v13, %d, v13" % UNIT)
                a.ds("ds_read_b128 %s, v13 offset:%d" % (v(b, 4), st * 2048), "f%d" % i)
            else:
                if i == 180:
                    a("s_lshl_b32 s29, s27, 9")
                    for r_ in (4, 5, 6): a("v_add_u32 v%d, s29, v%d" % (r_, r_))
                for h in range(2):
                    addr = (phi % 4) * UNIT + st * 2048 + 256 * h
                    k = addr // 49152
                    a.ds("ds_read_b64_tr_b16 %s, v%d offset:%d" % (v(b + 2 * h, 2), 4 + k, addr - k * 49152), "f%d" % i)
        pri = []
        def cnt_off(phi): return 40 + 4 * WS_PHI.index(phi)
        def signal(phi):
            a.vm_wait("u%d" % (phi + 1))
            a("s_mov_b64 exec, 1")
            a.ds("ds_add_u32 v12, v13 offset:%d" % cnt_off(phi), "sig")
            a("s_mov_b64 exec, -1")
        def barrier(phi):
            if phi in WS_PHI:
                ok = a.newlabel("wok"); lp = a.newlabel("wlp")
                a.lg_wait("cnt")
                a("v_readfirstlane_b32 s28, v255")
                a("s_cmp_eq_u32 s28, 8")
                a("s_cbranch_scc1 %s" % ok)
                a("s_mov_b32 s33, 0")
                a.label(lp)
                a("ds_read_b32 v255, v12 offset:%d" % cnt_off(phi))
                a("s_waitcnt lgkmcnt(0)")
                a("v_readfirstlane_b32 s28, v255")
                a("s_cmp_eq_u32 s28, 8")
                a("s_cbranch_scc1 %s" % ok)
                a("s_add_u32 s33, s33, 1")
                a("s_cmp_lt_u32 s33, 0x100000")
                a("s_cbranch_scc1 %s" % lp)
                a.label(ok)
                if hooks: hooks.after_barrier(a, g, phi)
                if phi + 3 <= 11: pri.extend(dma_list(phi + 3))
                return
            if phi + 1 >= 2: a.vm_wait("u%d" % (phi + 1))
            if 1 <= phi <= 2 and not hooks: a.stamp()
            if phi == 1: a.vm_wait_mark("wt")
            if phi == 10 and hooks: a.vm_wait("h3")
            a.lg_wait("augw"); a.lg_wait("xtw")
            a("s_barrier")
            if hooks: hooks.after_barrier(a, g, phi)
            if phi in (3, 8): a.stamp()
            u = phi + 3
            if u is not None and u <= 11: pri.extend(dma_list(u))
        for i in range(LA): rd(i)
        if g == 1: cs_flag()
        for tau in range(ntile):
            if tau == 0:
                wt = prog_wt()
                progs = [(0, 24, prog_side()), (26, 29, wt[:10]), (31, 35, wt[10:] + prog_st2())]
            elif tau == 1:
                ld, fin = prog_w2(0)
                progs = [(0, 3, prog_w2addr()), (4, 11, prog_dft()), (13, 14, ld), (8, 11, prog_cs0()), (25, 25, [("call", cs_fetch)]), (29, 34, fin)]
            elif tau == 2:
                ld, fin = prog_w2(1)
                late_aug = aug_read(1) + [("lwait", "aug"), "v_mfma_f32_32x32x16_bf16 %s, %s, %s, %s" % (v(ACCS[1], 16), v(AUGR, 4), v(XA, 4), v(ACCS[1], 16))]
                progs = [(3, 11, prog_cs2()), (13, 14, late_aug), (13, 14, ld), (17, 35, gelu_ops(1)), (26, 30, fin), (32, 33, aug_read(2))]
            else: progs = [(3, 31, gelu_ops(tau - 1)), (32, 33, aug_read(tau))]
            if NOW2P and tau in (1, 2):
                progs = [p_ for p_ in progs if p_[2] is not ld and p_[2] is not fin and not (tau == 1 and p_[0] == 0)]
            sched = [[] for _ in range(36)]
            for s0, s1, ops in progs:
                n = s1 - s0 + 1
                for k, o in enumerate(ops):
                    sched[s0 + (k * n) // len(ops)].append(o)
            acc = ACCS[tau & 1]
            for st in range(36):
                i = 36 * tau + st
                j = i + LA
                if (j + SIGD) % 18 == 0 and (j + SIGD) // 18 - 1 in WS_PHI:
                    if (j + SIGD) // 18 - 1 == WS_PHI[0]:
                        a("v_mov_b32 v12, %d" % FLG_LDS); a("v_mov_b32 v13, 1")
                    signal((j + SIGD) // 18 - 1)
                if (j + 2) % 18 == 0 and (j + 2) // 18 - 1 in WS_PHI:
                    a.ds("ds_read_b32 v255, v12 offset:%d" % cnt_off((j + 2) // 18 - 1), "cnt")
                if j < nsteps:
                    if j % 18 == 0:
                        barrier(j // 18 - 1)
                    rd(j)
                if pri and (st % 2 == 0 or len(pri) > ndma): emit_op(a, pri.pop(0))
                a.lg_wait("f%d" % i)
                b = FR + 4 * (i % NFR)
                x = XN + 4 * st
                c = "0" if st == 0 else v(acc, 16)
                if tau == 0:
                    a("v_mfma_f32_32x32x16_bf16 %s, %s, %s, %s" % (v(acc, 16), v(x, 4), v(b, 4), c))
                else:
                    a("v_mfma_f32_32x32x16_bf16 %s, %s, %s, %s" % (v(acc, 16), v(b, 4), v(x, 4), c))
                for o in sched[st]: emit_op(a, o)
            if tau == 0:
                a("v_mfma_f32_32x32x16_bf16 %s, %s, %s, %s" % (v(acc, 16), v(XA, 4), v(AUGR, 4), v(acc, 16)))
            elif tau != 1:
                a.lg_wait("aug")
                a("v_mfma_f32_32x32x16_bf16 %s, %s, %s, %s" % (v(acc, 16), v(AUGR, 4), v(XA, 4), v(acc, 16)))
        a("s_nop 7"); a("s_nop 4")
        last = gelu_ops(ntile - 1)
        if g == 1 and hooks:
            hooks.g1_end(a, last, barrier)
        elif g == 1:
            barrier(9)
            assert not pri
            for k, o in enumerate(last):
                if k == len(last) // 2: barrier(10)
                emit_op(a, o)
        else:
            for o in last: emit_op(a, o)
        if hooks:
            if g == 0: hooks.tail(a, g)
        elif g == 1:
            a("s_lshl_b32 s36, s19, 8")
            a("s_add_u32 s36, s36, s2")
            k0.job_finv(a, XN, 36, 4, 37)
        a.stamp()
        a.stamp(True)
        a.stamp_flush(4, STAMP_OFF, 18, T)
        a("s_endpgm")

    group(0)
    a.label("L_k1_g1")
    group(1)
    a.label("L_k1_end")
    a("s_endpgm")
    return (name, 256, 512, 163840 if hooks else K1_LDS, NV)
```

```python
from asmlib import *
from layout import *
import os
import k0, k1d
PF2 = int(os.environ.get('PF2', '0'))
from k1d import SP, FLG_LDS, UNIT
from k2 import T_M32F, T_TW1, T_M64, T_TW2, T_M32I

KS = 17408
NSLOT = 8
OWN_LDS = 143360
DBG_ALL, DBG_LATE, DBG_ALL2 = 128, 132, 64
OOB = 0x7ff00000
ZR = [SP + 4096, SP + 12288]
ZI = [SP + 8192, 69632]
SW_LDS = k1d.ZERO_LDS + 16
RC_LDS = FLG_LDS + 32
def slot_addr(n):
    s_ = n % NSLOT
    return s_ * KS + (4096 if s_ >= 4 else 0)
def red_addr(f): return 143360 + f * 1024 if f < 4 else (69632 + (f - 4) * 1024 if f < 8 else SP + 4096 + (f - 8) * 1024)
NK = 41
LCNT_LDS = FLG_LDS + 60

def spin_begin(a, name):
    lp = a.newlabel(name)
    a("s_mov_b32 s33, 0")
    a.label(lp)
    return lp
def spin_end(a, lp, sleep=4):
    out = a.newlabel("spinout")
    a("s_cbranch_scc1 %s" % out)
    if sleep: a("s_sleep %d" % sleep)
    a("s_add_u32 s33, s33, 1")
    a("s_cmp_lt_u32 s33, 0x40000")
    a("s_cbranch_scc1 %s" % lp)
    a.label(out)

def one_lane(a, lines):
    a("s_mov_b64 exec, 1")
    for l in lines: a(l)
    a("s_mov_b64 exec, -1")

XF_OFF = FLAG_OFF + 16384
def flag_store(a, val, s_off, woff=0):
    a("s_add_u32 s28, s59, %d" % val)
    a("v_mov_b32 v253, %d" % woff)
    a("v_mov_b32 v254, s28")
    one_lane(a, ["buffer_store_dword v254, v253, s[4:7], s%d offen sc1" % s_off])
def chk_range(a, R, n, lo, hi=4):
    a("s_add_u32 s28, s59, %d" % lo)
    for i in range(n): a("v_subrev_u32 v%d, s28, v%d" % (R + i, R + i))
    for i in range(1, n): a("v_max_u32 v%d, v%d, v%d" % (R, R, R + i))
    a("v_cmp_ge_u32 vcc, %d, v%d" % (hi - lo, R))
    a("s_nop 1")
    a("s_cmp_eq_u64 vcc, -1")
def all_load(a, R, stage, wave, tag=None):
    lines = ["s_mov_b32 s29, 0x%x" % (FLAG_OFF + (stage - 1) * 4096)]
    lines += ["buffer_load_dword v%d, v3, s[4:7], s29 offen offset:%d sc1" % (R + i, 1024 * i) for i in range(4)]
    if tag: k1d.emit_op(a, ("cond", "s_cmp_eq_u32 s18, %d" % wave, lines, tag))
    else:
        for l in lines: a(l)
def all_check(a, R, stage, wave, tag):
    ok = a.newlabel("aok")
    a("s_cmp_eq_u32 s18, %d" % wave)
    a("s_cbranch_scc0 %s" % ok)
    a.vm_wait_mark(tag)
    chk_range(a, R, 4, 0, 0)
    a("s_cbranch_scc1 %s" % ok)
    lp = spin_begin(a, "aspin")
    all_load(a, R, stage, wave)
    a("s_waitcnt vmcnt(0)")
    chk_range(a, R, 4, 0, 0)
    spin_end(a, lp, 8)
    a.label(ok)

class Hooks:
    def after_barrier(self, a, g, phi):
        if g == 0 and phi == 5:
            lab = a.newlabel("noall")
            a("s_cmp_eq_u32 s18, 0"); a("s_cbranch_scc0 %s" % lab)
            flag_store(a, 0, 101, 4096 if phi == 5 else 8192)
            a.label(lab)
        if g == 1 and phi == 8:
            all_load(a, 248, 2, 4, "allp")
    def ids2(self, a):
        a("s_lshr_b32 s26, s17, 2")
        a("s_and_b32 s27, s17, 3")
        a("s_mul_i32 s24, s26, 9")
        a("s_add_u32 s24, s24, 1")
        a("s_lshr_b32 s24, s24, 1")
        a("s_and_b32 s25, s26, 1")
    def tail(self, a, g):
        a.stamp()
        self.ids2(a)
        consumer(a)
        final(a)
    def g1_end(self, a, last, barrier):
        all_check(a, 248, 2, 4, "allp")
        nofft = a.newlabel("nofft"); done = a.newlabel("latedone")
        a("s_cmp_lt_u32 s2, 145")
        a("s_cbranch_scc0 %s" % nofft)
        vm0, ns0 = list(a.vmq), a.nstamp
        for isfft in (True, False):
            if not isfft: a.label(nofft)
            a.vmq, a.nstamp = list(vm0), ns0
            extra = []
            if isfft:
                a("s_and_b32 s52, s19, 1")
                a("s_lshr_b32 s53, s19, 1")
                a("s_lshl_b32 s54, s2, 1")
                a("s_add_u32 s54, s54, s53")
                extra = fft_preload(54, 52, 53)
            barrier(9)
            for kk, o in enumerate(last):
                if kk == len(last) // 2:
                    barrier(10)
                    if isfft:
                        for z in fft_zload(): k1d.emit_op(a, z)
                if extra: k1d.emit_op(a, extra.pop(0))
                k1d.emit_op(a, o)
            for o in extra: k1d.emit_op(a, o)
            a.stamp()
            self.ids2(a)
            L = Loader(a)
            if isfft:
                fft(a, 52, L)
            else:
                a.vm_wait("pg1")
                hdone(a, 8, 7)
                L.prefetch()
                a("s_sub_u32 s52, s2, 145")
                a("s_lshl_b32 s52, s52, 2")
                a("s_add_u32 s52, s52, s19")
                k0.job_finv_rm(a, 16, 52, 4, 44)
                a("s_add_u32 s52, s52, 444")
                k0.job_finv_rm(a, 40, 52, 4, 44)
                a.vm_mark("late")
            a.stamp()
            L.run()
            if isfft:
                a.stamp(); a.stamp(True)
                a.stamp_flush(4, STAMP_OFF, 18, 72)
                a("s_endpgm")

def hdone(a, vt, va):
    a("v_mov_b32 v%d, %d" % (va, RC_LDS + 4))
    a("v_mov_b32 v%d, 1" % vt)
    one_lane(a, ["ds_add_rtn_u32 v%d, v%d, v%d" % (vt, va, vt), "s_waitcnt lgkmcnt(0)"])
    a("v_readfirstlane_b32 s28, v%d" % vt)
    lab = a.newlabel("hnl")
    a("s_cmp_eq_u32 s28, 7"); a("s_cbranch_scc0 %s" % lab)
    if "sc1" not in k1d.SCH:
        a("buffer_wbl2 sc1")
        a("s_waitcnt vmcnt(0)")
    flag_store(a, 3, 101, 4)
    a.label(lab)

def dma_bases(a):
    for o in ["s_lshl_b32 s38, s19, 10",
              "s_mul_i32 s34, s26, %d" % (36 * 36 * 1024), "s_mul_i32 s28, s27, 288", "s_add_u32 s34, s34, s28",
              "s_add_u32 s35, s28, 0x%x" % W2P_OFF,
              "s_lshl_b32 s36, s16, 3", "s_add_u32 s36, s36, s19", "s_mul_i32 s36, s36, 144", "s_mul_i32 s28, s26, 36", "s_add_u32 s36, s36, s28",
              "s_lshl_b32 s36, s36, 10", "s_add_u32 s36, s36, 0x%x" % H_OFF, "s_lshl_b32 s96, s96, 1"]:
        a(o)
    for s_ in range(4):
        a("s_add_u32 s28, s27, %d" % s_)
        a("s_and_b32 s28, s28, 3")
        a("s_mul_i32 s%d, s28, 9" % (12 + s_))
        a("s_and_b32 s28, s28, 1")
        a("s_add_u32 s%d, s%d, s28" % (92 + s_, 12 + s_))
        a("s_cmp_eq_u32 s28, 0")
        a("s_cselect_b32 s28, 8, 0")
        a("s_add_u32 s%d, s%d, s28" % (12 + s_, 12 + s_))
def dma_ops(n, vl):
    slot = slot_addr(n)
    if n < 36:
        s_, i = divmod(n, 9)
        pre = ["s_add_u32 s32, s96, %d" % i, "s_and_b32 s32, s32, 7", "s_add_u32 s32, s32, s%d" % (92 + s_)] if i < 8 else ["s_mov_b32 s32, s%d" % (12 + s_)]
        pre += ["s_mul_i32 s31, s32, %d" % (36 * 1024), "s_add_u32 s31, s31, s34", "s_lshl_b32 s32, s32, 10", "s_add_u32 s32, s32, s36"]
    else:
        pre = ["s_add_u32 s31, s35, %d" % ((n - 36) * 36 * 1024)]
    RA = "s[84:87]" if n < 36 else "s[4:7]"
    ops = [("grp", pre),
           ("cond", "s_cmp_eq_u32 s19, 0", ["s_mov_b32 m0, %d" % (slot + 8192), "s_nop 0", "buffer_load_dwordx4 v11, %s, s31 offen sc1 lds" % RA], None)]
    for t in (0, 4):
        ops.append(("grp", ["s_add_u32 m0, s38, %d" % (slot + t * 1024), "s_nop 0",
                            ("vm", "buffer_load_dwordx4 v%d, %s, s31 offen sc1 lds" % (9 + t // 4, RA), "k%d" % n)]))
    if n < 36:
        for u in range(2):
            ops.append(("grp", ["s_add_u32 m0, s38, %d" % (slot + 9216 + u * 4096), "s_add_u32 s30, s32, %d" % (u * 4 * 144 * 1024),
                                ("vm", "buffer_load_dwordx4 v%d, s[4:7], s30 offen sc1 lds" % vl, "k%d" % n)]))
    else:
        for u in range(2):
            ops.append(("grp", ["s_add_u32 m0, s38, %d" % (slot + 9216 + u * 4096), "s_add_u32 s30, s37, %d" % (((n - 36) * 32 + u * 16) * 4096),
                                ("vm", "buffer_load_dwordx4 v4, s[4:7], s30 offen sc1 lds", "k%d" % n)]))
    return ops
def peer_addr(a, vd):
    for o in ["s_and_b32 s28, s2, 63", "v_and_b32 v%d, 3, v1" % vd, "v_lshlrev_b32 v%d, 6, v%d" % (vd, vd), "v_add_u32 v%d, s28, v%d" % (vd, vd),
              "v_lshlrev_b32 v%d, 4, v%d" % (vd, vd), "v_add_u32 v%d, 0x%x, v%d" % (vd, FLAG_OFF + 4, vd)]:
        a(o)

def kmap(kk):
    n, cc = divmod(kk, 4)
    return 9 * cc + (n + (cc & 1)) % 9

M64, TW, MF, WV, ZA, AC, PK, T0 = 88, 152, 184, 196, 212, 16, 48, 72
MI = 244
M32Q = [196, 200, 204, 208, 184, 188, 192, 252]
vLO, vFq, vFP, vSG = 12, 13, 14, 15
sRE, sIM, sT, sU, sZR, sZI, sROW, sZO = 44, 45, 46, 47, 48, 49, 50, 51
def m64r(t, u, ci): return M64 + ((2 * t + u) * 2 + ci) * 4
def fft_preload(s_col, s_hw, s_cs):
    ops = []
    X0, X1_ = 48, 49
    def ld(dst, pre, off, tag):
        ops.append(("grp", pre + [("vm", "buffer_load_dwordx4 %s, v3, s[4:7], s55 offen offset:%d sc1" % (v(dst, 4), off), tag)]))
    pre = ["s_min_u32 s55, s%d, 288" % s_col, "s_lshl_b32 s55, s55, 13", "s_lshl_b32 s56, s%d, 12" % s_hw, "s_add_u32 s55, s55, s56", "s_add_u32 s55, s55, 0x%x" % WT_OFF]
    for t in range(4): ld(WV + 4 * t, pre if t == 0 else [], t * 1024, "w")
    ld(m64r(0, 0, 0), ["s_mov_b32 s55, 0x%x" % (TAB_OFF + T_M64 * 1024)], 0, "m64")
    ld(m64r(0, 0, 1), [], 1024, "m64")
    ld(MF, ["s_mul_i32 s55, s%d, 3072" % s_hw, "s_add_u32 s55, s55, 0x%x" % (TAB_OFF + T_M32F * 1024)], 0, "mf")
    ld(MF + 4, [], 1024, "mf")
    ld(MI, ["s_mov_b32 s55, 0x%x" % (TAB_OFF + T_M32I * 1024)], 0, "m32i")
    ld(MI + 4, [], 1024, "m32i")
    ops.append(("grp", ["s_lshl_b32 s%d, s%d, 13" % (sRE, s_col), "s_add_u32 s%d, s%d, 4096" % (sIM, sRE),
                        "s_cmp_eq_u32 s%d, 0" % s_col, "s_cselect_b32 s%d, 0x%x, s%d" % (sIM, OOB, sIM),
                        "s_cmp_eq_u32 s%d, 288" % s_col, "s_cselect_b32 s%d, 0x%x, s%d" % (sIM, OOB, sIM), "s_cselect_b32 s%d, 4096, s%d" % (sRE, sRE),
                        "s_cmp_gt_u32 s%d, 288" % s_col, "s_cselect_b32 s%d, 0x%x, s%d" % (sRE, OOB, sRE), "s_cselect_b32 s%d, 0x%x, s%d" % (sIM, OOB, sIM),
                        "s_cmp_eq_u32 s%d, 0" % s_cs, "s_mov_b32 s%d, %d" % (sZR, ZR[1]), "s_mov_b32 s%d, %d" % (sZI, ZI[1]),
                        "s_cselect_b32 s%d, %d, s%d" % (sZR, ZR[0], sZR), "s_cselect_b32 s%d, %d, s%d" % (sZI, ZI[0], sZI),
                        "s_cmp_eq_u32 s%d, 0" % s_hw, "s_cselect_b32 s%d, s%d, s%d" % (sROW, sRE, sIM), "s_cselect_b32 s%d, s%d, s%d" % (sZO, sZR, sZI),
                        "s_lshl_b32 s%d, s%d, 3" % (sT, s_cs), "s_lshl_b32 s%d, s%d, 2" % (sU, s_hw), "s_add_u32 s%d, s%d, %d" % (sT, sT, FLG_LDS),
                        "s_add_u32 s%d, s%d, s%d" % (sU, sU, sT), "v_mov_b32 v%d, s%d" % (vFq, sU), "s_xor_b32 s%d, s%d, 4" % (sU, sU), "v_mov_b32 v%d, s%d" % (vFP, sU),
                        "s_lshl_b32 s%d, s%d, 2" % (sT, s_cs), "s_add_u32 s%d, s%d, %d" % (sT, sT, FLG_LDS + 16), "v_mov_b32 v%d, s%d" % (vSG, sT)]))
    ops += ["v_and_b32 v50, 15, v1", "s_lshl_b32 s56, s%d, 4" % s_hw, "v_add_u32 v50, s56, v50", "v_cvt_f32_u32 v50, v50",
            "v_mul_f32 v50, 0x%x, v50" % f32bits(-1.0 / 2048),
            "v_lshrrev_b32 v51, 4, v1", "v_lshlrev_b32 v51, 2, v51", "v_cvt_f32_u32 v51, v51", "v_mul_f32 v51, v51, v50"]
    for t in range(4):
        for r in range(4): ops.append("v_fmamk_f32 v%d, v50, 0x%x, v51" % (TW + 8 * t + 4 + r, f32bits(16.0 * t + r)))
        for r in range(4): ops.append("v_cos_f32 v%d, v%d" % (TW + 8 * t + r, TW + 8 * t + 4 + r))
        for r in range(4): ops.append("v_sin_f32 v%d, v%d" % (TW + 8 * t + 4 + r, TW + 8 * t + 4 + r))
    mid = len(ops)
    ops += [("vwait", "w"), "v_mov_b32 v52, 0x7fff7fff", "v_and_b32 v%d, v%d, v52" % (X0, WV)]
    for i in range(1, 16):
        ops += ["v_and_b32 v%d, v%d, v52" % (X1_, WV + i), "v_pk_max_u16 v%d, v%d, v%d" % (X0, X0, X1_)]
    ops += ["v_lshrrev_b32 v%d, 16, v%d" % (X1_, X0), "v_and_b32 v%d, 0xffff, v%d" % (X0, X0), "v_max_u32 v%d, v%d, v%d" % (X0, X0, X1_),
            "ds_max_u32 v%d, v%d" % (vSG, X0), "v_mov_b32 v%d, 1" % X1_, "ds_write_b32 v%d, v%d" % (vFq, X1_)]
    ops += [("vwait", "mf"), "v_and_b32 v%d, 1, v1" % vLO, "v_mov_b32 v52, 0xffff", "v_mul_u32_u24 v%d, 0x8000, v%d" % (vLO, vLO),
            "v_lshl_or_b32 v%d, v%d, 16, v%d" % (vLO, vLO, vLO)]
    for k in range(4):
        cr, ci = m64r(0, 0, 0) + k, m64r(0, 0, 1) + k
        c1, i1 = m64r(1, 0, 0) + k, m64r(1, 0, 1) + k
        ops += ["v_bfi_b32 v%d, v52, v%d, v%d" % (c1, cr, ci), "v_bfi_b32 v%d, v52, v%d, v%d" % (i1, ci, cr)]
        if k & 1: ops.append("v_xor_b32 v%d, 0x80008000, v%d" % (c1, c1))
        ops += ["v_xor_b32 v%d, 0x%x, v%d" % (i1, 0x8000 if k & 1 else 0x80000000, i1), "v_xor_b32 v%d, 0x80008000, v%d" % (MF + 8 + k, MF + 4 + k)]
    for t in (2, 3):
        for k in range(8): ops.append("v_xor_b32 v%d, 0x80000000, v%d" % (m64r(t, 0, 0) + k, m64r(t - 2, 0, 0) + k))
    for t in range(4):
        for k in range(8): ops.append("v_xor_b32 v%d, v%d, v%d" % (m64r(t, 1, 0) + k, vLO, m64r(t, 0, 0) + k))
    return ops
def fft_zload():
    ops = [("grp", ["v_add_u32 v53, s%d, v3" % sROW, "s_mov_b32 s%d, 0x%x" % (sT, X1_OFF), "s_mov_b32 m0, s%d" % sZO, "s_nop 0"] +
                   [("vm", "buffer_load_dwordx4 v53, s[4:7], s%d offen offset:%d sc1 lds" % (sT, n * 1024), "z") for n in range(4)])]
    return ops

def weave(a, mf, va):
    va = list(va)
    for i, x in enumerate(mf):
        a(x)
        n = (len(va) + len(mf) - i - 1) // (len(mf) - i)
        for _ in range(n): a(va.pop(0))

def fft(a, s_hw, L):
    vTR, vTI, vSC, vX, vY, vONE = T0 + 8, T0 + 9, T0 + 12, T0 + 13, T0 + 14, T0 + 15
    vL16 = 3
    R = "s[4:7]"
    WS = ZA
    a("v_lshrrev_b32 v%d, 4, v1" % vX)
    a("v_bfe_u32 v%d, v1, 2, 2" % vY)
    a("v_lshl_add_u32 v%d, v%d, 3, v%d" % (vY, vX, vY))
    a("v_lshlrev_b32 v%d, 7, v%d" % (vTR, vY))
    a("v_and_b32 v%d, 3, v1" % vY)
    a("v_lshl_add_u32 v%d, v%d, 3, v%d" % (vTR, vY, vTR))
    a("v_add_u32 v%d, s%d, v%d" % (vTI, sZI, vTR))
    a("v_add_u32 v%d, s%d, v%d" % (vTR, sZR, vTR))
    def signal(k):
        a("v_mov_b32 v%d, %d" % (vONE, k))
        a("ds_write_b32 v%d, v%d" % (vFq, vONE))
    def wait(k):
        lp = spin_begin(a, "pw")
        a("ds_read_b32 v%d, v%d" % (vONE, vFP))
        a("s_waitcnt lgkmcnt(0)")
        a("v_readfirstlane_b32 s28, v%d" % vONE)
        a("s_cmp_ge_u32 s28, %d" % k)
        spin_end(a, lp, 0)
    a.vm_wait("z")
    signal(2); wait(2)
    a("ds_read_b32 v%d, v%d" % (vX, vSG))
    for t in range(4):
        for p in range(2):
            for h in range(2):
                a("ds_read_b64_tr_b16 %s, v%d offset:%d" % (v(ZA + (2 * t + p) * 4 + 2 * h, 2), vTI if p else vTR, t * 32 + h * 512))
    CR, CI, NCI = MF, MF + 4, MF + 8
    mf = "v_mfma_f32_16x16x32_f16"
    a("s_waitcnt lgkmcnt(0)")
    signal(3)
    sa = []
    for t in range(4):
        zr, zi = ZA + 8 * t, ZA + 8 * t + 4
        sa += ["%s %s, %s, %s, 0" % (mf, v(AC + 8 * t, 4), v(zr, 4), v(CR, 4)), "%s %s, %s, %s, 0" % (mf, v(AC + 8 * t + 4, 4), v(zr, 4), v(CI, 4)),
               "%s %s, %s, %s, %s" % (mf, v(AC + 8 * t, 4), v(zi, 4), v(NCI, 4), v(AC + 8 * t, 4)),
               "%s %s, %s, %s, %s" % (mf, v(AC + 8 * t + 4, 4), v(zi, 4), v(CR, 4), v(AC + 8 * t + 4, 4))]
    weave(a, sa, ["v_lshrrev_b32 v%d, 7, v%d" % (vX, vX), "v_sub_u32 v%d, 247, v%d" % (vSG, vX), "v_max_i32 v%d, 1, v%d" % (vSG, vSG),
                  "v_lshlrev_b32 v%d, 23, v%d" % (vSG, vSG), "v_subrev_u32 v%d, 126, v%d" % (vX, vX), "v_mov_b32 v%d, 0x%x" % (vSC, f32bits(1.0 / 96)),
                  "v_ldexp_f32 v%d, v%d, v%d" % (vSC, vSC, vX)])
    def cmul(xr, xi, wr, wi, t0, t1):
        a("v_mul_f32 v%d, v%d, v%d" % (t0, xi, wi))
        a("v_mul_f32 v%d, v%d, v%d" % (t1, xr, wi))
        a("v_fma_f32 v%d, v%d, v%d, -v%d" % (xr, xr, wr, t0))
        a("v_fma_f32 v%d, v%d, v%d, v%d" % (xi, xi, wr, t1))
    def call(W):
        for t in range(4):
            for r in range(4):
                cmul(AC + 8 * t + r, AC + 8 * t + 4 + r, W + 8 * t + r, W + 8 * t + 4 + r, T0 + (2 * r) % 8, T0 + (2 * r + 1) % 8)
    def packs(neg_first):
        for u in range(2):
            for tt in range(2):
                t = 2 * u + tt
                for hh in range(2):
                    re0, im0 = AC + 8 * t + 2 * hh, AC + 8 * t + 4 + 2 * hh
                    d = 4 * u + 2 * tt + hh
                    a("v_cvt_pk_f16_f32 v%d, v%d, v%d" % (PK + d, re0, re0 + 1))
                    a("v_cvt_pk_f16_f32 v%d, v%d, v%d" % (PK + 8 + d, im0, im0 + 1))
                    n0 = re0 if neg_first else im0
                    a("v_cvt_pk_f16_f32 v%d, -v%d, -v%d" % (PK + 16 + d, n0, n0 + 1))
    call(TW)
    packs(False)
    m64 = m64r
    def stage64(data_is_b):
        out = []
        for u in range(2):
            for half in range(2):
                for t in range(4):
                    for part in range(2):
                        acc = AC + 8 * t + 4 * part
                        c = "0" if (u == 0 and half == 0) else v(acc, 4)
                        if data_is_b:
                            mat = m64(t, u, (part if half == 0 else 1 - part))
                            dat = PK + 4 * u if half == 0 else (PK + 16 + 4 * u if part == 0 else PK + 8 + 4 * u)
                            out.append("%s %s, %s, %s, %s" % (mf, v(acc, 4), v(mat, 4), v(dat, 4), c))
                        else:
                            mat = m64(t, u, half)
                            dat = (PK + 4 * u if part == 0 else PK + 8 + 4 * u) if half == 0 else (PK + 8 + 4 * u if part == 0 else PK + 16 + 4 * u)
                            out.append("%s %s, %s, %s, %s" % (mf, v(acc, 4), v(dat, 4), v(mat, 4), c))
        return out
    va = []
    for t in range(4):
        for r in range(4):
            w = WV + 4 * t + r
            va += ["v_lshlrev_b32 v%d, 16, v%d" % (WS + 8 * t + r, w), "v_and_b32 v%d, 0xffff0000, v%d" % (WS + 8 * t + 4 + r, w)]
        for r in range(8): va.append("v_mul_f32 v%d, v%d, v%d" % (WS + 8 * t + r, WS + 8 * t + r, vSG))
    a("s_nop 0")
    weave(a, stage64(True), va)
    a.vm_wait("pg1")
    hdone(a, 8, 7)
    L.prefetch()
    call(WS)
    packs(True)
    va = ["v_and_b32 v%d, 15, v1" % vX, "v_cvt_f32_u32 v%d, v%d" % (vX, vX), "v_mul_f32 v%d, 0x%x, v%d" % (vX, f32bits(1.0 / 2048), vX),
          "v_lshrrev_b32 v%d, 4, v1" % vY, "v_lshlrev_b32 v%d, 2, v%d" % (vY, vY), "s_lshl_b32 s%d, s%d, 4" % (sT, s_hw), "v_add_u32 v%d, s%d, v%d" % (vY, sT, vY),
          "v_cvt_f32_u32 v%d, v%d" % (vY, vY)]
    for t in range(4):
        if t: va.append("v_add_f32 v%d, 0x%x, v%d" % (vX, f32bits(16.0 / 2048), vX))
        va.append("v_mul_f32 v%d, v%d, v%d" % (TW + 8 * t + 4, vX, vY))
        for r in range(1, 4): va.append("v_fmamk_f32 v%d, v%d, 0x%x, v%d" % (TW + 8 * t + 4 + r, vX, f32bits(float(r)), TW + 8 * t + 4))
        for r in range(4): va.append("v_cos_f32 v%d, v%d" % (TW + 8 * t + r, TW + 8 * t + 4 + r))
        for r in range(4): va.append("v_sin_f32 v%d, v%d" % (TW + 8 * t + 4 + r, TW + 8 * t + 4 + r))
    a("s_nop 0")
    weave(a, stage64(False), va)
    a("v_mul_lo_u32 v%d, v%d, s%d" % (vX, vLO, s_hw))
    a("v_xor_b32 v%d, v%d, v%d" % (vY, vX, vLO))
    for nt in range(2):
        for oo in range(2):
            mk = vX if oo == 0 else vY
            if nt: a("v_xor_b32 v%d, 0x80000000, v%d" % (mk, mk))
            for p in range(2):
                for kq in range(4):
                    a("v_xor_b32 v%d, v%d, v%d" % (M32Q[(2 * nt + oo) * 2 + p] + kq, mk, MI + 4 * p + kq))
    call(TW)
    for t in range(4):
        for k in range(4):
            a("v_cvt_pk_f16_f32 v%d, v%d, v%d" % (PK + 4 * t + k, AC + 8 * t + 2 * k, AC + 8 * t + 2 * k + 1))
    a("s_xor_b32 s%d, s%d, 1" % (sT, s_hw))
    a("s_lshl_b32 s%d, s%d, 11" % (sT, sT))
    a("s_add_u32 s%d, s%d, s%d" % (sT, sT, sZR))
    a("v_add_u32 v%d, s%d, v%d" % (vX, sT, vL16))
    a("s_lshl_b32 s%d, s%d, 11" % (sT, s_hw))
    a("s_add_u32 s%d, s%d, s%d" % (sT, sT, sZR))
    a("v_add_u32 v%d, s%d, v%d" % (vTR, sT, vL16))
    wait(3)
    lab = a.newlabel("fft_hw1"); lab2 = a.newlabel("fft_j")
    a("s_cmp_eq_u32 s%d, 1" % s_hw)
    a("s_cbranch_scc1 %s" % lab)
    a("ds_write_b128 v%d, %s" % (vX, v(PK + 8, 4)))
    a("ds_write_b128 v%d, %s offset:1024" % (vX, v(PK + 12, 4)))
    a("s_branch %s" % lab2)
    a.label(lab)
    a("ds_write_b128 v%d, %s" % (vX, v(PK, 4)))
    a("ds_write_b128 v%d, %s offset:1024" % (vX, v(PK + 4, 4)))
    a("s_waitcnt lgkmcnt(0)")
    for i in range(8):
        a("v_mov_b32 v%d, v%d" % (PK + i, PK + 8 + i))
    a.label(lab2)
    signal(4)
    def accy(bt, nt, p): return AC + ((2 * bt + nt) * 2 + p) * 4
    def sA(oo):
        return ["%s %s, %s, %s, %s" % (mf, v(accy(bt, nt, p), 4), v(PK + 8 * oo + 4 * bt, 4), v(M32Q[(2 * nt + oo) * 2 + p], 4), "0" if oo == 0 else v(accy(bt, nt, p), 4))
                for bt in range(2) for nt in range(2) for p in range(2)]
    for x in sA(0): a(x)
    wait(4)
    a("ds_read_b128 %s, v%d" % (v(PK + 16, 4), vTR))
    a("ds_read_b128 %s, v%d offset:1024" % (v(PK + 20, 4), vTR))
    va = ["v_and_b32 v%d, 15, v1" % vY, "v_lshlrev_b32 v%d, 7, v%d" % (vY, vY), "v_lshrrev_b32 v%d, 4, v1" % vX, "v_lshl_add_u32 v%d, v%d, 3, v%d" % (vY, vX, vY),
          "s_lshl_b32 s%d, s%d, 6" % (sT, s_hw), "v_add_u32 v%d, s%d, v%d" % (vY, sT, vY), "v_bfe_u32 v%d, v1, 1, 3" % T0, "v_lshlrev_b32 v%d, 4, v%d" % (T0, T0),
          "v_xor_b32 v%d, v%d, v%d" % (vY, vY, T0), "v_xor_b32 v%d, 32, v%d" % (T0, vY), "v_add_u32 v%d, s%d, v%d" % (T0 + 4, sZR, vY),
          "v_add_u32 v%d, s%d, v%d" % (vTI, sZI, vY), "v_add_u32 v%d, s%d, v%d" % (T0 + 1, sZR, T0), "v_add_u32 v%d, s%d, v%d" % (T0 + 2, sZI, T0),
          "v_lshlrev_b32 v%d, 4, v%d" % (vX, vX), "v_xor_b32 v%d, v%d, v%d" % (vX, vX, vL16), "v_xor_b32 v%d, 64, v%d" % (T0 + 3, vX),
          "v_add_u32 v%d, s%d, v%d" % (vX, sZO, vX), "v_add_u32 v%d, s%d, v%d" % (T0 + 3, sZO, T0 + 3), "v_add_u32 v%d, s%d, v%d" % (vY, sROW, vL16)]
    for o in va: a(o)
    a("s_waitcnt lgkmcnt(0)")
    signal(5)
    for bt in range(2):
        for nt in range(2):
            for p in range(2):
                a("%s %s, %s, %s, %s" % (mf, v(accy(bt, nt, p), 4), v(PK + 16 + 4 * bt, 4), v(M32Q[(2 * nt + 1) * 2 + p], 4), v(accy(bt, nt, p), 4)))
    wait(5)
    for i in range(32):
        a("v_mul_f32 v%d, v%d, v%d" % (AC + i, AC + i, vSC))
        if i & 1: a("v_cvt_pk_bf16_f32 v%d, v%d, v%d" % (ZA + i // 2, AC + i - 1, AC + i))
    for bt in range(2):
        for nt in range(2):
            for p in range(2):
                k = (2 * bt + nt) * 2 + p
                a("ds_write_b64 v%d, %s offset:%d" % ([[T0 + 4, vTI], [T0 + 1, T0 + 2]][bt][p], v(ZA + 2 * k, 2), nt * 2048))
    signal(6); wait(6)
    for n in range(4):
        a("ds_read_b128 %s, v%d offset:%d" % (v(AC + 4 * n, 4), T0 + 3 if n & 1 else vX, n * 1024))
    a("s_mov_b32 s%d, 0x%x" % (sT, Y1_OFF))
    for n in range(4):
        a("s_waitcnt lgkmcnt(%d)" % (3 - n))
        a.vm("buffer_store_dwordx4 %s, v%d, %s, s%d offen offset:%d sc1" % (v(AC + 4 * n, 4), vY, R, sT, n * 1024), "y")
    a.vm_mark("late")

class Loader:
    def __init__(self, a):
        self.a = a
        for o in ["v_lshrrev_b32 v6, 4, v1", "s_and_b32 s28, s19, 1", "s_lshl_b32 s28, s28, 2", "v_add_u32 v5, s28, v6", "v_lshlrev_b32 v5, 1, v5",
                  "v_and_b32 v7, 15, v1", "v_xor_b32 v5, v5, v7", "v_lshlrev_b32 v5, 4, v5", "v_lshl_add_u32 v4, v6, 12, v5", "v_mov_b32 v6, 0",
                  "s_lshl_b32 s37, s24, 5", "s_lshl_b32 s28, s19, 2", "s_add_u32 s37, s37, s28", "s_lshl_b32 s37, s37, 12", "s_lshl_b32 s28, s16, 8",
                  "s_add_u32 s37, s37, s28", "s_add_u32 s37, s37, 0x%x" % Y1_OFF]:
            a(o)
        peer_addr(a, 5)
        a("s_load_dwordx2 s[90:91], s[0:1], %d" % KA_W2)
        dma_bases(a)
        for x_, add in ((9, 0), (10, 256), (11, 0)):
            if x_ == 11: a("v_add_u32 v8, 512, v1")
            else:
                a("s_lshl_b32 s28, s19, 6"); a("s_add_u32 s28, s28, %d" % add); a("v_add_u32 v8, s28, v1")
            a("v_mul_u32_u24 v%d, 3641, v8" % x_)
            a("v_lshrrev_b32 v%d, 16, v%d" % (x_, x_))
            a("v_mul_u32_u24 v7, 18, v%d" % x_)
            a("v_sub_u32 v7, v8, v7")
            a("v_mul_u32_u24 v%d, 1152, v%d" % (x_, x_))
            a("v_lshl_add_u32 v%d, v7, 4, v%d" % (x_, x_))
        a("s_waitcnt lgkmcnt(0)")
        a.srd(84, 90, F * D * 2)
        a("s_mul_i32 s28, s24, %d" % (36 * 1024))
        a("s_add_u32 s35, s35, s28")
        self.prog_load(1)
        self.u = 0
        self.issued = 0
    def prog_load(self, t): self.a.vm("buffer_load_dword v2, v5, s[4:7], 0 offen sc1", "pg%d" % t)
    def prog_check(self, t):
        a = self.a
        ok = a.newlabel("pok")
        a.vm_wait("pg%d" % t)
        chk_range(a, 2, 1, t, 3)
        a("s_cbranch_scc1 %s" % ok)
        lp = spin_begin(a, "pgw")
        a("buffer_load_dword v2, v5, s[4:7], 0 offen sc1")
        a("s_waitcnt vmcnt(0)")
        chk_range(a, 2, 1, t, 3)
        spin_end(a, lp)
        a.label(ok)
    def issue(self, n):
        if n == 5: self.prog_load(3)
        if n == 9: self.prog_check(3)
        for o in dma_ops(n, 3): k1d.emit_op(self.a, o)
        self.issued = n + 1
    def prefetch(self):
        for n in range(4): self.issue(n)
    def svc(self):
        a = self.a; u = self.u
        a.vm_wait("k%d" % min(2 * u + 2, 40))
        if u == 2: a.vm_wait_mark("late")
        if u == 14: all_check(a, 12, 4, 6, "g4")
        if u % 4 == 0: a.stamp()
        a("s_barrier")
        if u == 2:
            lab = a.newlabel("svc"); a("s_cmp_eq_u32 s19, 3"); a("s_cbranch_scc0 %s" % lab)
            flag_store(a, 0, 101, 12288)
            a.label(lab)
        if u == 11: all_load(a, 12, 4, 6, "g4")
        for n in range(self.issued, min(2 * u + 9 if u else 8, 41)): self.issue(n)
        self.u += 1
    def run(self):
        while self.u < 21: self.svc()
        final(self.a)

def consumer(a):
    ACC = 96
    BUF = [8, 52]
    def lds_ref(addr, b0):
        k = addr // 49152
        return b0 + k, addr - k * 49152
    a("v_mov_b32 v2, v3")
    a("v_add_u32 v3, 49152, v2")
    a("v_add_u32 v4, 98304, v2")
    a("s_lshl_b32 s28, s19, 11")
    a("s_add_u32 s28, s28, 9216")
    a("v_add_u32 v5, s28, v2")
    a("v_add_u32 v6, 49152, v5")
    a("v_add_u32 v7, 98304, v5")
    for o in ["v_lshrrev_b32 v174, 5, v1", "v_lshlrev_b32 v174, 4, v174", "v_bfe_u32 v175, v1, 4, 1", "v_lshl_add_u32 v174, v175, 2, v174",
              "v_bfe_u32 v175, v1, 2, 2", "v_add_u32 v174, v174, v175", "v_bfe_u32 v175, v1, 1, 1", "s_lshl_b32 s28, s19, 2", "v_add_u32 v175, s28, v175",
              "v_and_b32 v176, 7, v174", "v_lshlrev_b32 v176, 1, v176", "v_xor_b32 v175, v175, v176", "v_xor_b32 v176, 2, v175", "v_lshlrev_b32 v174, 8, v174",
              "v_and_b32 v177, 1, v1", "v_lshl_add_u32 v174, v177, 3, v174", "v_add_u32 v174, 9216, v174", "v_lshl_add_u32 v168, v175, 4, v174",
              "v_lshl_add_u32 v171, v176, 4, v174"]:
        a(o)
    for o in ["v_lshrrev_b32 v178, 5, v1", "v_lshlrev_b32 v178, 4, v178", "v_bfe_u32 v179, v1, 4, 1", "v_lshl_add_u32 v178, v179, 2, v178",
              "v_bfe_u32 v179, v1, 2, 2", "v_add_u32 v178, v178, v179", "v_mul_u32_u24 v178, 288, v178", "v_and_b32 v179, 3, v1", "v_lshl_add_u32 v178, v179, 3, v178"]:
        a(o)
    for b in (168, 171, 178):
        a("v_add_u32 v%d, 49152, v%d" % (b + 1, b))
        a("v_add_u32 v%d, 98304, v%d" % (b + 2, b))
    def reads(n):
        B = BUF[n & 1]; slot = slot_addr(n); out = []
        if n < 36:
            for mt in range(2):
                br, off = lds_ref(slot + mt * 1024, 5)
                out.append("ds_read_b128 %s, v%d offset:%d" % (v(B + 4 * mt, 4), br, off))
        else:
            for mt in range(2):
                for hh in range(2):
                    br, off = lds_ref(slot + hh * 2048, 168 + 3 * mt)
                    out.append("ds_read_b64_tr_b16 %s, v%d offset:%d" % (v(B + 4 * mt + 2 * hh, 2), br, off))
        for t in range(9):
            for hh in range(2):
                br, off = lds_ref(slot + t * 32 + hh * 2304, 178)
                out.append("ds_read_b64_tr_b16 %s, v%d offset:%d" % (v(B + 8 + 4 * t + 2 * hh, 2), br, off))
        return out
    def kstep(n, rd, late=()):
        B = BUF[n & 1]
        rd = list(rd); late = list(late)
        per = [[] for _ in range(18)]
        for i, o in enumerate(rd): per[(i * 15) // len(rd)].append(o)
        for i, o in enumerate(late): per[13 + i].append(o)
        k = 0
        for t in range(9):
            for mt in range(2):
                acc = ACC + (2 * t + mt) * 4
                a("v_mfma_f32_16x16x32_bf16 %s, %s, %s, %s" % (v(acc, 4), v(B + 8 + 4 * t, 4), v(B + 4 * mt, 4), "0" if n == 0 else v(acc, 4)))
                for o in per[k]: k1d.emit_op(a, o)
                k += 1
    a("s_waitcnt vmcnt(0)")
    hdone(a, 174, 175)
    a.stamp()
    a("s_barrier")
    a.stamp()
    for r_ in reads(0): a(r_)
    def step(n, last):
        a("s_waitcnt lgkmcnt(0)")
        if n % 2 == 0 and n > 0: a("s_barrier")
        kstep(n, [] if last else reads(n + 1))
    for n in range(39):
        step(n, False)
        if n % 8 == 7: a.stamp()
    l39 = a.newlabel("c39"); epi = a.newlabel("cepi")
    a("s_cmp_eq_u32 s25, 1")
    a("s_cbranch_scc1 %s" % l39)
    step(39, False)
    step(40, True)
    a("s_branch %s" % epi)
    a.label(l39)
    step(39, True)
    a("s_barrier")
    a.label(epi)
    a.stamp()
    own = a.newlabel("own"); j2 = a.newlabel("sent")
    a("s_cmp_eq_u32 s19, s26")
    a("s_cbranch_scc1 %s" % own)
    a("s_andn2_b32 s28, s2, 3")
    a("s_or_b32 s28, s28, s19")
    a("s_lshl_b32 s30, s28, 7")
    a("s_add_u32 s30, s30, 0x%x" % XF_OFF)
    a("s_lshl_b32 s28, s28, 2")
    a("s_add_u32 s28, s28, s26")
    a("s_mul_i32 s28, s28, %d" % (9 * 1024))
    a("s_add_u32 s28, s28, 0x%x" % P_OFF)
    for t in range(9):
        for e in range(4):
            a("v_cvt_pk_bf16_f32 v%d, v%d, v%d" % (28 + 4 * t + e, ACC + 8 * t + 2 * e, ACC + 8 * t + 2 * e + 1))
        if t % 4 == 0 and t > 0: a("s_add_u32 s28, s28, 4096")
        a("buffer_store_dwordx4 %s, v2, s[4:7], s28 offen offset:%d sc1" % (v(28 + 4 * t, 4), (t % 4) * 1024))
    a("s_lshl_b32 s29, s26, 2")
    a("s_add_u32 s30, s30, s29")
    a("s_waitcnt vmcnt(0)")
    flag_store(a, 0, 30)
    a("s_branch %s" % j2)
    a.label(own)
    a("v_add_u32 v3, %d, v2" % OWN_LDS)
    a("s_nop 4")
    for tl in range(18):
        a("ds_write_b128 v3, %s offset:%d" % (v(ACC + 4 * tl, 4), tl * 1024))
    a("s_waitcnt lgkmcnt(0)")
    a.label(j2)
    a("v_mov_b32 v3, v2")

def final(a):
    a.stamp()
    a("s_load_dwordx4 s[52:55], s[0:1], %d" % KA_B2)
    a("v_and_b32 v4, 15, v1")
    a("s_lshl_b32 s28, s16, 7")
    a("s_lshl_b32 s29, s26, 5")
    a("s_add_u32 s28, s28, s29")
    a("v_add_u32 v4, s28, v4")
    a("v_mul_u32_u24 v4, 1152, v4")
    a("v_lshrrev_b32 v5, 4, v1")
    a("v_lshlrev_b32 v5, 3, v5")
    a("s_mul_i32 s28, s27, 288")
    a("s_lshl_b32 s29, s18, 5")
    a("s_add_u32 s28, s28, s29")
    a("v_add_u32 v5, s28, v5")
    a("v_add_u32 v4, v4, v5")
    a("v_add_u32 v6, %d, v4" % (16 * 1152))
    a("s_lshl_b32 s30, s18, 11")
    a("v_add_u32 v7, s30, v3")
    a("v_add_u32 v7, %d, v7" % OWN_LDS)
    a("v_and_b32 v8, 3, v1")
    a("v_min_u32 v8, 2, v8")
    a("s_add_u32 s28, s26, 1")
    a("v_add_u32 v8, s28, v8")
    a("v_and_b32 v8, 3, v8")
    a("v_lshlrev_b32 v8, 2, v8")
    a("s_lshl_b32 s34, s2, 7")
    a("s_add_u32 s34, s34, 0x%x" % XF_OFF)
    a("s_mul_i32 s35, s2, %d" % (4 * 9 * 1024))
    a("s_lshl_b32 s30, s18, 10")
    a("s_add_u32 s35, s35, s30")
    a("s_add_u32 s35, s35, 0x%x" % P_OFF)
    a("s_waitcnt lgkmcnt(0)")
    a.srd(44, 52, D * 2)
    a.srd(48, 54, S * D * 2)
    X, Bv, P, O = 16, 24, 32, 64
    def rnd(k, stage):
        off = 256 * k
        if stage == 0:
            a("buffer_load_dwordx2 %s, v4, s[40:43], 0 offen offset:%d" % (v(X + 4 * k, 2), off))
            a("buffer_load_dwordx2 %s, v6, s[40:43], 0 offen offset:%d" % (v(X + 4 * k + 2, 2), off))
            a("buffer_load_dwordx2 %s, v5, s[44:47], 0 offen offset:%d" % (v(Bv + 2 * k, 2), off))
        if stage == 1:
            for mt in range(2):
                a("ds_read_b128 %s, v7 offset:%d" % (v(O + 8 * k + 4 * mt, 4), 16384 * k + 1024 * mt))
        if stage == 2:
            for i in range(3):
                a("s_add_u32 s29, s26, %d" % (i + 1))
                a("s_and_b32 s29, s29, 3")
                a("s_mul_i32 s29, s29, %d" % (9 * 1024))
                a("s_add_u32 s29, s29, s35")
                if k: a("s_add_u32 s29, s29, 8192")
                a("buffer_load_dwordx4 %s, v3, s[4:7], s29 offen sc1" % v(P + 12 * k + 4 * i, 4))
        if stage == 3:
            def addp(dst, src):
                a("v_lshlrev_b32 v10, 16, v%d" % src)
                a("v_and_b32 v11, 0xffff0000, v%d" % src)
                a("v_add_f32 v%d, v%d, v10" % (dst, dst))
                a("v_add_f32 v%d, v%d, v11" % (dst + 1, dst + 1))
            for e in range(4):
                addp(O + 8 * k + 2 * e, X + 4 * k + e)
                addp(O + 8 * k + 2 * e, Bv + 2 * k + (e & 1))
        if stage == 4:
            for i in range(3):
                for e in range(4):
                    a("v_lshlrev_b32 v10, 16, v%d" % (P + 12 * k + 4 * i + e))
                    a("v_and_b32 v11, 0xffff0000, v%d" % (P + 12 * k + 4 * i + e))
                    a("v_add_f32 v%d, v%d, v10" % (O + 8 * k + 2 * e, O + 8 * k + 2 * e))
                    a("v_add_f32 v%d, v%d, v11" % (O + 8 * k + 2 * e + 1, O + 8 * k + 2 * e + 1))
            for e in range(4):
                a("v_cvt_pk_bf16_f32 v%d, v%d, v%d" % (X + 4 * k + e, O + 8 * k + 2 * e, O + 8 * k + 2 * e + 1))
            a("buffer_store_dwordx2 %s, v4, s[48:51], 0 offen offset:%d" % (v(X + 4 * k, 2), off))
            a("buffer_store_dwordx2 %s, v6, s[48:51], 0 offen offset:%d" % (v(X + 4 * k + 2, 2), off))
    def both(stage):
        rnd(0, stage)
        lab = a.newlabel("f8")
        a("s_cmp_eq_u32 s18, 0"); a("s_cbranch_scc0 %s" % lab)
        rnd(1, stage)
        a.label(lab)
    both(0)
    a("s_barrier")
    both(1)
    lp = spin_begin(a, "xpoll")
    a("buffer_load_dword v9, v8, s[4:7], s34 offen sc1")
    a("s_waitcnt vmcnt(0)")
    chk_range(a, 9, 1, 0, 0)
    spin_end(a, lp, 2)
    a.stamp()
    both(2)
    a("s_waitcnt lgkmcnt(0)")
    both(3)
    a("s_waitcnt vmcnt(0)")
    both(4)

def gen_mega(a):
    return k1d.gen_k1(a, Hooks(), "mega_kernel")

if __name__ == "__main__":
    import gen
    gen.build([gen_mega], "m1.s")
    gen.build([gen_mega], "m1t.s", True)
```
